```python
import torch

def _softmax(x, axis=-1):
    return torch.softmax(x, dim=axis)
def _gelu(x):
    return torch.nn.functional.gelu(x, approximate="tanh")
def _silu(x):
    return torch.nn.functional.silu(x)
def _sigmoid(x):
    return torch.sigmoid(x)
def _layernorm(x, axis=-1, eps=1e-5):
    m = x.mean(dim=axis, keepdim=True)
    v = x.var(dim=axis, keepdim=True, unbiased=False)
    return (x - m) / torch.sqrt(v + eps)
def _scatter_add(tgt, idx, src, axis=0):
    return tgt.clone().index_add_(axis, idx, src)
def _segment_sum(src, seg, n):
    out = torch.zeros((n,) + src.shape[1:], dtype=src.dtype)
    return out.index_add_(0, seg, src)
def _pad(x, pw):
    flat = tuple(v for pair in reversed(pw) for v in pair)
    return torch.nn.functional.pad(x, flat)

kernel_name = 'sequential_preLN__softmax_full_mha__mixer_channel_mlp__prompt'

def setup_inputs():

    _w = (lambda a: (lambda t: t.to(torch.bfloat16) if t.is_floating_point() else t)(torch.as_tensor(a)))
    def _A_setup():
        B, S, D = 1, 2048, 448
        return {
            "x": _w((lambda *s: torch.randn(*s, dtype=torch.bfloat16) * 0.05)(B, S, D)),
            "wqkv": _w((lambda *s: torch.randn(*s, dtype=torch.bfloat16) * 0.05)(D, 3 * D)),
            "wo": _w((lambda *s: torch.randn(*s, dtype=torch.bfloat16) * 0.05)(D, D)),
        }
    _A_in = _A_setup()

    def _B_setup():
        B, S, D, F = 1, 2048, 448, 1792
        return {
            "x": _w((lambda *s: torch.randn(*s, dtype=torch.bfloat16) * 0.05)(B, S, D)),
            "w1": _w((lambda *s: torch.randn(*s, dtype=torch.bfloat16) * 1.6)(D, F) * (D ** -0.5)),
            "b1": _w((lambda *s: torch.randn(*s, dtype=torch.bfloat16) * 0.8)(F)),
            "w2": _w((lambda *s: torch.randn(*s, dtype=torch.bfloat16) * 0.05)(F, D) * (F ** -0.5)),
            "b2": _w((lambda *s: torch.randn(*s, dtype=torch.bfloat16) * 0.05)(D)),
        }
    _B_in = _B_setup()

    return {
        "A_x": _A_in["x"],
        "A_wqkv": _A_in["wqkv"],
        "A_wo": _A_in["wo"],
        "B_x": _B_in["x"],
        "B_w1": _B_in["w1"],
        "B_b1": _B_in["b1"],
        "B_w2": _B_in["w2"],
        "B_b2": _B_in["b2"],
    }

def reference(A_x, A_wqkv, A_wo, B_x, B_w1, B_b1, B_w2, B_b2):
    def _A_ref(x, wqkv, wo):
        B, S, D = x.shape
        H = 16; Dh = D // H
        qkv = (lambda x, *d: x.permute(*d))((x @ wqkv).reshape(B, S, 3, H, Dh), 2, 0, 3, 1, 4)
        q, k, v = qkv[0], qkv[1], qkv[2]
        scale = Dh ** -0.5
        scores = torch.einsum("bhqd,bhkd->bhqk", q, k) * scale
        p = _softmax(scores, axis=-1)
        o = torch.einsum("bhqk,bhkd->bhqd", p, v)
        return (lambda x, *d: x.permute(*d))(o, 0, 2, 1, 3).reshape(B, S, D) @ wo

    def _B_ref(x, w1, b1, w2, b2):
        y = _layernorm(x, axis=-1)
        h = _gelu(torch.einsum("bsd,df->bsf", y, w1) + b1)
        return torch.einsum("bsf,fd->bsd", h, w2) + b2

    x = A_x
    h = x + _A_ref(_layernorm(x, axis=-1), A_wqkv, A_wo)
    h2 = h + _B_ref(_layernorm(h, axis=-1), B_w1, B_b1, B_w2, B_b2)
    return h2
```

```python
import re

TRANS = ("v_exp_f32", "v_log_f32", "v_rcp_f32", "v_rsq_f32", "v_sqrt_f32", "v_sin_f32", "v_cos_f32",
         "v_exp_f16", "v_rcp_iflag_f32")

def v(n, c=1): return f"v{n}" if c == 1 else f"v[{n}:{n+c-1}]"
def a(n, c=1): return f"a{n}" if c == 1 else f"a[{n}:{n+c-1}]"
def s(n, c=1): return f"s{n}" if c == 1 else f"s[{n}:{n+c-1}]"

_reg_re = re.compile(r"^-?(?:abs\()?\|?([vas])(?:(\d+)|\[(\d+):(\d+)\])\|?\)?$")

def regs_of(op):
    op = op.strip()
    if op in ("vcc", "exec", "m0", "scc"):
        return {op}
    if op in ("vcc_lo", "vcc_hi"): return {"vcc"}
    if op in ("exec_lo", "exec_hi"): return {"exec"}
    m = _reg_re.match(op)
    if not m: return set()
    k = m.group(1)
    if m.group(2) is not None: return {(k, int(m.group(2)))}
    return {(k, i) for i in range(int(m.group(3)), int(m.group(4)) + 1)}

class Ins:
    __slots__ = ("text", "op", "cls", "w", "r", "A", "B", "C", "passes", "lds", "wide", "data", "target", "states", "cnt")
    def __init__(self, text):
        self.text = text
        t = text.split(";")[0].strip()
        parts = t.split(None, 1)
        op = parts[0]
        for suf in ("_e32", "_e64"):
            if op.endswith(suf): op = op[:-4]
        self.op = op
        rest = parts[1] if len(parts) > 1 else ""
        ops, depth, cur = [], 0, ""
        for ch in rest:
            if ch in "[(": depth += 1
            if ch in "])": depth -= 1
            if ch == "," and depth == 0:
                ops.append(cur.strip()); cur = ""
            else: cur += ch
        if cur.strip(): ops.append(cur.strip())
        mods = ""
        if ops:
            last = ops[-1].split()
            if len(last) > 1:
                ops[-1] = last[0]; mods = " ".join(last[1:])
        self.w, self.r = set(), set()
        self.A = self.B = self.C = None
        self.passes = 0; self.lds = False; self.wide = False; self.data = set(); self.target = None
        self.states = 1; self.cnt = None
        R = [regs_of(o) for o in ops]
        if op == "s_nop":
            self.cls = "nop"; self.states = int(ops[0], 0) + 1
        elif op.startswith("v_mfma"):
            self.cls = "mfma"; self.w = R[0]; self.A, self.B, self.C = R[1], R[2], R[3]
            self.r = R[1] | R[2] | R[3] | {"exec"}
            self.passes = 8 if "32x32" in op else 4
        elif op.startswith("v_"):
            self.cls = "valu"
            if op in TRANS: self.cls = "trans"
            if op.startswith("v_dot"): self.cls = "dot"
            if op.startswith("v_permlane") and "swap" in op:
                self.w = R[0] | R[1]; self.r = R[0] | R[1]
            elif op in ("v_add_co_u32", "v_sub_co_u32", "v_addc_co_u32", "v_subb_co_u32", "v_mad_u64_u32"):
                self.w = R[0] | R[1]; self.r = set().union(*R[2:])
            elif op == "v_nop":
                pass
            else:
                self.w = R[0]; self.r = set().union(*R[1:]) if len(R) > 1 else set()
                if op in ("v_fmac_f32", "v_dot2c_f32_bf16", "v_writelane_b32", "v_pk_fmac_f16"): self.r |= R[0]
                if op.startswith("v_cmpx"): self.w |= {"exec"}
            self.r |= {"exec"}
        elif op.startswith("buffer_") or op.startswith("global_"):
            self.cls = "vmem"; self.cnt = "vm"
            if op in ("buffer_inv", "buffer_wbl2"):
                pass
            elif "lds" in mods.split() or "_lds_" in op:
                self.lds = True; self.r = set().union(*R) | {"m0"}
            elif "_load" in op:
                self.w = R[0]; self.r = set().union(*R[1:])
                if "d16" in op: self.r |= R[0]
            elif "_store" in op:
                self.r = set().union(*R)
                self.data = R[0] if op.startswith("buffer") else R[1]
                self.wide = op.endswith("x4") or op.endswith("x3")
            elif "_atomic" in op:
                self.r = set().union(*R)
                if "sc0" in mods.split(): self.w = R[0]
            self.r |= {"exec"}
        elif op.startswith("ds_"):
            self.cls = "ds"; self.cnt = "lgkm"
            if op.startswith("ds_read") or op.startswith("ds_bpermute") or op.startswith("ds_swizzle") or op.startswith("ds_permute"):
                self.w = R[0]; self.r = set().union(*R[1:])
            else:
                self.r = set().union(*R)
            self.r |= {"exec"}
        elif op.startswith("s_load") or op.startswith("s_buffer_load") or op in ("s_memtime", "s_memrealtime"):
            self.cls = "smem"; self.cnt = "smem"; self.w = R[0]; self.r = set().union(*R[1:]) if len(R) > 1 else set()
        elif op in ("s_waitcnt", "s_barrier", "s_endpgm", "s_setprio", "s_sleep"):
            self.cls = "misc"
        elif op == "s_branch" or op.startswith("s_cbranch"):
            self.cls = "branch"; self.target = ops[0]
            if "scc" in op: self.r = {"scc"}
            if "vcc" in op: self.r = {"vcc"}
            if "exec" in op: self.r = {"exec"}
        elif op.startswith("s_cmp") or op.startswith("s_bitcmp"):
            self.cls = "salu"; self.w = {"scc"}; self.r = set().union(*R)
        elif op.startswith("s_"):
            self.cls = "salu"; self.w = R[0] | {"scc"}; self.r = set().union(*R[1:]) if len(R) > 1 else set()
            if op in ("s_mov_b32", "s_mov_b64", "s_movk_i32", "s_cselect_b32", "s_cselect_b64", "s_mul_i32", "s_mul_hi_u32", "s_getpc_b64", "s_getreg_b32"):
                self.w = R[0]
            if "saveexec" in op: self.w |= {"exec"}; self.r |= {"exec"}
            if op in ("s_addk_i32", "s_mulk_i32"): self.r |= R[0]
            if op in ("s_cselect_b32", "s_cselect_b64", "s_addc_u32", "s_subb_u32"): self.r |= {"scc"}
        else:
            raise ValueError("unknown instruction " + text)

def is_valu(i): return i.cls in ("valu", "trans", "dot")
def vregs(st): return {x for x in st if isinstance(x, tuple) and x[0] in "va"}
def sregs(st): return {x for x in st if (isinstance(x, tuple) and x[0] == "s") or x == "vcc"}

def hazard(p, c):
    n = 0
    pw_v = vregs(p.w)
    if is_valu(p):
        if c.cls == "mfma" and pw_v & c.r: n = max(n, 3 if p.cls == "dot" else 2)
        if p.cls == "trans" and is_valu(c) and c.cls != "trans" and pw_v & c.r: n = max(n, 1)
        if p.cls == "trans" and c.cls in ("vmem", "ds") and pw_v & c.r: n = max(n, 1)
        if c.op in ("v_readfirstlane_b32", "v_readlane_b32") and pw_v & c.r: n = max(n, 1)
        if c.op.startswith("v_permlane") and pw_v & c.r: n = max(n, 2)
        if "dpp" in c.text and pw_v & c.r: n = max(n, 2)
        ps = sregs(p.w)
        if ps:
            if is_valu(c) and ps & c.r: n = max(n, 4 if c.op in ("v_readlane_b32", "v_writelane_b32") else 2)
            if c.cls == "vmem" and ps & c.r: n = max(n, 5)
            if c.cls in ("salu", "smem", "branch") and ps & c.r: n = max(n, 1)
        if "exec" in p.w and (c.cls in ("mfma",) or c.op.startswith("v_permlane") or c.op.startswith("v_read")): n = max(n, 4)
        if p.cls == "dot" and pw_v & (c.r | c.w) and c.cls != "nop":
            if c.op == p.op:
                srcs = c.text.split(";")[0].split(None, 1)[1].split(",")
                ab = regs_of(srcs[1]) | regs_of(srcs[2].split()[0])
                if pw_v & ab: n = max(n, 3)
            else: n = max(n, 3)
    if p.cls == "mfma":
        big = p.passes == 8
        if c.cls == "mfma":
            if p.w & (c.A | c.B): n = max(n, 12 if big else 8)
            if p.w & c.C:
                if not (p.w == c.C and p.passes == c.passes): n = max(n, 10 if big else 6)
            elif p.w & c.w and p.w != c.w: n = max(n, 10 if big else 6)
        elif is_valu(c) or c.cls in ("vmem", "ds"):
            if p.w & (c.r | c.w): n = max(n, 12 if big else 8)
            if is_valu(c) and p.C & c.w: n = max(n, 7 if big else 3)
    if p.cls == "salu" and "m0" in p.w and c.cls == "vmem" and c.lds: n = max(n, 1)
    if p.cls == "vmem" and p.wide and p.data & c.w:
        n = max(n, 2 if is_valu(c) or c.cls == "mfma" else 1)
    return n

class Prog:
    def __init__(self):
        self.items = []
        self.vm = []
        self.lg = []
        self.sm = []
        self.auto = True
        self.uid = 0
        self.dummy = {('v', k) for k in range(244, 248)}
    def raw(self, t): self.items.append(("raw", t))
    def label(self, n): self.items.append(("label", n))
    def newlabel(self, base):
        self.uid += 1
        return f"L_{base}_{self.uid}"
    def cmt(self, t): self.raw("    ; " + t)
    def _apply_wait(self, text):
        m = re.search(r"vmcnt\((\d+)\)", text)
        if m:
            n = int(m.group(1)); self.vm = self.vm[len(self.vm) - n:] if n < len(self.vm) and n > 0 else ([] if n == 0 else self.vm)
        m = re.search(r"lgkmcnt\((\d+)\)", text)
        if m:
            n = int(m.group(1))
            if n == 0: self.lg = []; self.sm = []
            elif not self.sm and n < len(self.lg): self.lg = self.lg[len(self.lg) - n:]
    def __call__(self, text, tag=None):
        for line in text.strip().split("\n"):
            line = line.strip()
            if not line or line.startswith(";"): continue
            self._emit(line, tag)
    def _emit(self, line, tag):
        i = Ins(line)
        if i.op == "s_waitcnt":
            self._apply_wait(line); self.items.append(i); return
        if self.auto:
            touch = i.r | i.w
            w = []
            idx = max((k for k, (dst, _) in enumerate(self.vm) if dst & touch), default=-1)
            if idx >= 0: w.append(f"vmcnt({min(63, len(self.vm) - 1 - idx)})")
            if any(dst & touch for dst, _ in self.sm): w.append("lgkmcnt(0)")
            else:
                idx = max((k for k, (dst, _) in enumerate(self.lg) if dst & touch), default=-1)
                if idx >= 0:
                    w.append("lgkmcnt(0)" if self.sm else f"lgkmcnt({min(15, len(self.lg) - 1 - idx)})")
            if w:
                t = "s_waitcnt " + " ".join(w)
                self._apply_wait(t); self.items.append(Ins(t))
        if i.cnt == "vm": self.vm.append((set(i.w) - self.dummy, tag))
        elif i.cnt == "lgkm": self.lg.append((set(i.w), tag))
        elif i.cnt == "smem": self.sm.append((set(i.w), tag))
        assert len(self.vm) <= 63, "too many outstanding vmem ops for vmcnt"
        self.items.append(i)
    def wait_vm(self, tag):
        idx = max((k for k, (_, t) in enumerate(self.vm) if t == tag), default=-1)
        if idx >= 0: self(f"s_waitcnt vmcnt({len(self.vm) - 1 - idx})")
    def wait_lg(self, tag):
        idx = max((k for k, (_, t) in enumerate(self.lg) if t == tag), default=-1)
        if idx >= 0: self(f"s_waitcnt lgkmcnt({0 if self.sm else min(15, len(self.lg) - 1 - idx)})")
    def state(self): return ([(frozenset(d)) for d, _ in self.vm], [(frozenset(d)) for d, _ in self.lg], len(self.sm))
    def save(self): return (list(self.vm), list(self.lg), list(self.sm))
    def restore(self, st): self.vm, self.lg, self.sm = list(st[0]), list(st[1]), list(st[2])
    def reset(self): self.vm, self.lg, self.sm = [], [], []
    @staticmethod
    def _need(hist, c):
        need, dist = 0, 0
        for p in reversed(hist):
            h = hazard(p, c)
            if h > dist: need = max(need, h - dist)
            dist += p.states
            if dist >= 20: break
        return need
    def finalize(self):
        out, hist = [], []
        nops = 0
        for it in self.items:
            if isinstance(it, Ins):
                n = self._need(hist, it)
                if n:
                    nop = Ins(f"s_nop {n-1}"); out.append(nop); hist.append(nop); nops += n
                out.append(it); hist.append(it)
                if it.op in ("s_branch", "s_endpgm"): hist = []
                hist = hist[-24:]
            else: out.append(it)
        changed = True
        while changed:
            changed = False
            lab = {it[1]: k for k, it in enumerate(out) if not isinstance(it, Ins) and it[0] == "label"}
            for k, it in enumerate(out):
                if isinstance(it, Ins) and it.cls == "branch":
                    hist = []
                    for x in out[max(0, k - 40):k + 1]:
                        if isinstance(x, Ins):
                            hist.append(x)
                            if x is not it and x.op in ("s_branch", "s_endpgm"): hist = []
                    j = lab[it.target]; dist = 0; worst = 0
                    h2 = list(hist)
                    while j < len(out) and dist < 20:
                        x = out[j]; j += 1
                        if not isinstance(x, Ins): continue
                        worst = max(worst, self._need(h2, x))
                        h2.append(x); dist += x.states
                        if x.op in ("s_branch", "s_endpgm"): break
                    if worst:
                        out.insert(k, Ins(f"s_nop {worst-1}")); changed = True; nops += worst
                        break
        self.nops = nops
        txt = []
        for it in out:
            if isinstance(it, Ins): txt.append("    " + it.text)
            elif it[0] == "label": txt.append(it[1] + ":")
            else: txt.append(it[1])
        return "\n".join(txt) + "\n"
```

```python
import sys, math, struct
from asmlib import *

NAME = "sequential_preLN__softmax_full_mha__mixer_channel_mlp__prompt"
def f2u(x): return struct.unpack("<I", struct.pack("<f", x))[0]
def hx(x): return f"0x{x & 0xffffffff:08x}"
def fl(x): return hx(f2u(x))

WS_QK = 0
WS_V  = 0x400000
WS_O  = 0x600000
WS_H  = 0x800000
WS_ST = 0x9E0000
WS_H1 = 0xA40000
WS_END = WS_H1 + 64 * 224 * 512
WS_SIZE = 0x1200000

sX, sWQ, sWO, sW1, sB1, sW2, sB2, sOUT, sWS = 8, 12, 16, 20, 24, 28, 32, 36, 40
SRD = {sX: (0, 2048*448*2), sWQ: (8, 448*1344*2), sWO: (16, 448*448*2), sW1: (32, 448*1792*2), sB1: (40, 1792*2),
       sW2: (48, 1792*448*2), sB2: (56, 448*2), sOUT: (64, 2048*448*2), sWS: (80, WS_SIZE)}
sWAVE, sONES = 44, 45
LOG2E = 1.4426950408889634
EPS = 1e-5

def srd(n): return s(n, 4)

def prologue(p, name, srds):
    p.raw(f".globl {name}\n.p2align 8\n.type {name},@function")
    p.label(name)
    p.reset()
    p(f"s_cmp_ge_u32 s2, 256")
    p(f"s_cbranch_scc1 L_end_{name}")
    for r in srds:
        p(f"s_load_dwordx2 {s(r,2)}, s[0:1], {SRD[r][0]}")
    for r in srds:
        p(f"s_mov_b32 {s(r+2)}, {hx(SRD[r][1])}")
        p(f"s_mov_b32 {s(r+3)}, 0x00020000")
    p(f"v_lshrrev_b32 v2, 6, v0")
    p(f"v_and_b32 v1, 63, v0")
    p(f"v_readfirstlane_b32 {s(sWAVE)}, v2")
    p(f"s_mov_b32 {s(sONES)}, 0x3f803f80")

def epilogue(p, name):
    p.label(f"L_end_{name}")
    p("s_endpgm")

def mfma(p, d, A, B, C=None):
    p(f"v_mfma_f32_32x32x16_bf16 {d}, {A}, {B}, {C if C is not None else d}")

def split_hi_lo_pack(p, dst, src, tmp):
    p(f"v_cvt_pk_bf16_f32 {v(tmp)}, {v(src)}, {v(src)}")
    p(f"v_and_b32 {v(tmp)}, 0xffff0000, {v(tmp)}")
    p(f"v_sub_f32 {v(tmp)}, {v(src)}, {v(tmp)}")
    p(f"v_cvt_pk_bf16_f32 {v(dst)}, {v(src)}, {v(tmp)}")

def half_sum(p, x, tmp):
    p(f"v_mov_b32 {v(tmp)}, {v(x)}")
    p(f"v_permlane32_swap_b32 {v(tmp)}, {v(x)}")
    p(f"v_add_f32 {v(x)}, {v(x)}, {v(tmp)}")

def tr_addr(p, dst, pitch, swap, perm_rows, t1, t2, xor_mode=None, ct=0):
    p(f"v_bfe_u32 {v(t1)}, v1, 2, 2")
    p(f"v_lshrrev_b32 {v(t2)}, 5, v1")
    p(f"v_lshl_add_u32 {v(t2)}, {v(t2)}, {2 if perm_rows else 3}, {v(t1)}")
    p(f"v_mul_u32_u24 {v(dst)}, {pitch}, {v(t2)}")
    if xor_mode == 128:
        p(f"v_lshrrev_b32 {v(t1)}, 1, {v(t1)}")
        p(f"v_xor_b32 {v(t1)}, {ct}, {v(t1)}")
        p(f"v_lshl_add_u32 {v(dst)}, {v(t1)}, 6, {v(dst)}")
    elif xor_mode == 256:
        p(f"v_xor_b32 {v(t1)}, {ct}, {v(t1)}")
        p(f"v_lshl_add_u32 {v(dst)}, {v(t1)}, 6, {v(dst)}")
    p(f"v_bfe_u32 {v(t1)}, v1, 4, 1")
    p(f"v_lshl_add_u32 {v(dst)}, {v(t1)}, 5, {v(dst)}")
    if swap:
        p(f"v_and_b32 {v(t1)}, 1, v1")
        p(f"v_lshl_add_u32 {v(dst)}, {v(t1)}, 4, {v(dst)}")
        p(f"v_bfe_u32 {v(t1)}, v1, 1, 1")
        p(f"v_lshl_add_u32 {v(dst)}, {v(t1)}, 3, {v(dst)}")
    else:
        p(f"v_and_b32 {v(t1)}, 3, v1")
        p(f"v_lshl_add_u32 {v(dst)}, {v(t1)}, 3, {v(dst)}")

def P1(p):
    name = "p1_kernel"
    prologue(p, name, [sX, sWQ, sWS])
    sR, sCB, sT0, sT1, sXB, sWB, sM0, sRT = 46, 47, 48, 49, 50, 51, 52, 53
    p(f"""
    s_and_b32 {s(sT0)}, s2, 3
    s_lshl_b32 {s(sT0)}, {s(sT0)}, 2
    s_bfe_u32 {s(sT1)}, s2, 0x20003
    s_add_u32 {s(sR)}, {s(sT0)}, {s(sT1)}
    s_bfe_u32 {s(sT0)}, s2, 0x10002
    s_lshl_b32 {s(sT0)}, {s(sT0)}, 3
    s_lshr_b32 {s(sT1)}, s2, 5
    s_add_u32 {s(sCB)}, {s(sT0)}, {s(sT1)}
    s_cmp_ge_u32 {s(sCB)}, 15
    s_cbranch_scc1 L_end_{name}
    """)
    vXE, vXO, vW, vXR, vWR, vWC, vT1, vT2, vL16 = 3, 4, 5, 8, 12, 13, 14, 15, 16
    vS, vQ, vCS = 17, 19, 21
    vXF, vWF, vCF, vACC, vXS = 24, 32, 56, 68, 116
    LW, LX, LSC = 0, 86016, 151552
    p(f"""
    v_lshrrev_b32 {v(vT1)}, 3, v1
    v_mul_u32_u24 {v(vT1)}, 896, {v(vT1)}
    v_lshrrev_b32 {v(vT2)}, 4, v1
    v_xor_b32 {v(vT2)}, {v(vT2)}, v1
    v_and_b32 {v(vT2)}, 7, {v(vT2)}
    v_lshl_add_u32 {v(vXE)}, {v(vT2)}, 4, {v(vT1)}
    v_xor_b32 {v(vT2)}, 4, {v(vT2)}
    v_lshl_add_u32 {v(vXO)}, {v(vT2)}, 4, {v(vT1)}
    v_lshlrev_b32 {v(vL16)}, 4, v1
    """)
    for pt in range(3):
        p(f"""
        v_add_u32 {v(vT1)}, {64*pt}, v1
        v_mul_u32_u24 {v(vT2)}, 5462, {v(vT1)}
        v_lshrrev_b32 {v(vT2)}, 16, {v(vT2)}
        v_mul_u32_u24 {v(vW+pt)}, {2688 - 192}, {v(vT2)}
        v_lshl_add_u32 {v(vW+pt)}, {v(vT1)}, 4, {v(vW+pt)}
        """)
    p(f"""
    s_lshl_b32 {s(sRT)}, {s(sR)}, 2
    s_add_u32 {s(sRT)}, {s(sRT)}, {s(sWAVE)}
    s_mul_i32 {s(sXB)}, {s(sRT)}, {32*896}
    s_mul_i32 {s(sWB)}, {s(sCB)}, 192
    s_cmp_ge_u32 {s(sCB)}, 10
    s_cselect_b32 {s(sT0)}, 128, 0
    s_sub_u32 {s(sWB)}, {s(sWB)}, {s(sT0)}
    s_mul_i32 {s(sT0)}, {s(sWAVE)}, {16*2688}
    s_add_u32 {s(sWB)}, {s(sWB)}, {s(sT0)}
    s_lshl_b32 {s(sM0)}, {s(sWAVE)}, 14
    s_add_u32 {s(sM0)}, {s(sM0)}, {LX}
    s_mul_i32 {s(sT1)}, {s(sWAVE)}, 3072
    s_waitcnt lgkmcnt(0)
    """)
    for c in range(7):
        for q in range(4):
            va = vXE if q % 2 == 0 else vXO
            p(f"s_add_u32 {s(sT0)}, {s(sXB)}, {q*8*896 + c*128}")
            if c < 4:
                p(f"s_add_u32 m0, {s(sM0)}, {c*4096 + q*1024}")
                p(f"buffer_load_dwordx4 {v(va)}, {srd(sX)}, {s(sT0)} offen lds", tag=f"c{c}")
            else:
                p(f"buffer_load_dwordx4 {v(vXS + (c-4)*16 + q*4, 4)}, {v(va)}, {srd(sX)}, {s(sT0)} offen", tag=f"c{c}")
        p(f"s_add_u32 {s(sT0)}, {s(sWB)}, {c*64*2688}")
        for pt in range(3):
            p(f"s_add_u32 m0, {s(sT1)}, {LW + c*12288 + pt*1024}")
            p(f"buffer_load_dwordx4 {v(vW+pt)}, {srd(sWQ)}, {s(sT0)} offen lds", tag=f"c{c}")
    p(f"""
    v_and_b32 {v(vT1)}, 31, v1
    v_lshlrev_b32 {v(vXR+3)}, 7, {v(vT1)}
    v_add_u32 {v(vXR+3)}, {s(sM0)}, {v(vXR+3)}
    v_bfe_u32 {v(vT1)}, v1, 1, 3
    v_lshrrev_b32 {v(vT2)}, 5, v1
    v_xor_b32 {v(vT1)}, {v(vT1)}, {v(vT2)}
    """)
    for sp in range(4):
        p(f"v_xor_b32 {v(vT2)}, {2*sp}, {v(vT1)}")
        p(f"v_lshl_add_u32 {v(vXR+sp)}, {v(vT2)}, 4, {v(vXR+3)}")
    p(f"v_add_u32 {v(vL16)}, {s(sM0)}, {v(vL16)}")
    for i in range(2):
        p(f"v_mov_b32 {v(vS+i)}, 0\nv_mov_b32 {v(vQ+i)}, 0")
    for i in range(3): p(f"v_mov_b32 {v(vCS+i)}, 0")
    p(f"s_cmp_ge_u32 {s(sCB)}, 10")
    p(f"s_cbranch_scc1 L_p1_v")
    st = p.save()
    for isV in (0, 1):
        if isV:
            p.label("L_p1_v"); p.restore(st)
        tr_addr(p, vWR, 192, swap=not isV, perm_rows=False, t1=vT1, t2=vT2)
        p(f"v_add_u32 {v(vWC)}, {s(sT1)}, {v(vWR)}")
        def gate(c):
            p.wait_vm(f"c{c}")
            if c >= 4:
                for q in range(4):
                    p(f"ds_write_b128 {v(vL16)}, {v(vXS + (c-4)*16 + q*4, 4)} offset:{(c-4)*4096 + q*1024}")
            p("s_barrier")
            if c == 4:
                p(f"v_add_u32 {v(vWR)}, 49152, {v(vWR)}\nv_add_u32 {v(vWC)}, 49152, {v(vWC)}")
        def reads(sx):
            c, sp = sx // 4, sx % 4
            b = sx % 2
            p(f"ds_read_b128 {v(vXF + 4*b, 4)}, {v(vXR+sp)} offset:{(c % 4)*4096}")
            base = (sx % 16) * 3072
            for t in range(3):
                p(f"ds_read_b64_tr_b16 {v(vWF + 12*b + 4*t, 2)}, {v(vWR)} offset:{base + 64*t}")
                p(f"ds_read_b64_tr_b16 {v(vWF + 12*b + 4*t + 2, 2)}, {v(vWR)} offset:{base + 64*t + 768}")
        def csreads(c):
            base = (c % 4) * 12288
            for t in range(3):
                p(f"ds_read_b64_tr_b16 {v(vCF + 4*t, 2)}, {v(vWC)} offset:{base + 64*t}")
                p(f"ds_read_b64_tr_b16 {v(vCF + 4*t + 2, 2)}, {v(vWC)} offset:{base + 64*t + 768}")
        gate(0); reads(0)
        for sx in range(28):
            b = sx % 2
            if sx + 1 < 28:
                if (sx + 1) % 4 == 0: gate((sx + 1) // 4)
                reads(sx + 1)
            if sx % 4 == 1: csreads(sx // 4)
            xf = v(vXF + 4*b, 4)
            for t in range(3):
                wf = v(vWF + 12*b + 4*t, 4)
                acc = v(vACC + 16*t, 16)
                A, B = (xf, wf) if isV else (wf, xf)
                mfma(p, acc, A, B, "0" if sx == 0 else None)
                if t < 2:
                    for j in range(2):
                        r = vXF + 4*b + 2*t + j
                        p(f"v_dot2c_f32_bf16 {v(vS+j)}, {s(sONES)}, {v(r)}")
                        p(f"v_dot2c_f32_bf16 {v(vQ+j)}, {v(r)}, {v(r)}")
                if sx % 4 == 2:
                    for j in range(4):
                        p(f"v_dot2c_f32_bf16 {v(vCS+t)}, {s(sONES)}, {v(vCF + 4*t + j)}")
        vA, vB2, vM, vR = vXF, vXF + 4, vWF, vWF + 1
        for t in range(3): half_sum(p, vCS + t, vT1)
        p(f"""
        v_and_b32 {v(vT1)}, 31, v1
        v_lshlrev_b32 {v(vT1)}, 4, {v(vT1)}
        v_add_u32 {v(vT1)}, {LSC}, {v(vT1)}
        s_lshl_b32 {s(sT0)}, {s(sWAVE)}, 2
        v_add_u32 {v(vT2)}, {s(sT0)}, {v(vT1)}
        """)
        for t in range(3): p(f"ds_write_b32 {v(vT2)}, {v(vCS+t)} offset:{t*512}")
        p(f"v_add_f32 {v(vS)}, {v(vS)}, {v(vS+1)}\nv_add_f32 {v(vQ)}, {v(vQ)}, {v(vQ+1)}")
        half_sum(p, vS, vT2); half_sum(p, vQ, vT2)
        p(f"""
        s_waitcnt lgkmcnt(0)
        s_barrier
        """)
        for t in range(3): p(f"ds_read_b128 {v(vCF + 4*t, 4)}, {v(vT1)} offset:{t*512}")
        p(f"""
        v_mul_f32 {v(vM)}, {fl(-1.0/448)}, {v(vS)}
        v_mul_f32 {v(vQ)}, {fl(1.0/448)}, {v(vQ)}
        v_fma_f32 {v(vQ)}, -{v(vM)}, {v(vM)}, {v(vQ)}
        v_max_f32 {v(vQ)}, 0, {v(vQ)}
        v_add_f32 {v(vQ)}, {fl(EPS)}, {v(vQ)}
        v_rsq_f32 {v(vR)}, {v(vQ)}
        """)
        p(f"""
        v_cvt_pk_bf16_f32 {v(vB2)}, {v(vM)}, {v(vM)}
        v_and_b32 {v(vT2)}, 0xffff0000, {v(vB2)}
        v_sub_f32 {v(vT2)}, {v(vM)}, {v(vT2)}
        v_cvt_pk_bf16_f32 {v(vT2)}, {v(vT2)}, {v(vT2)}
        v_cmp_lt_u32 vcc, 31, v1
        v_cndmask_b32 {v(vB2)}, {v(vB2)}, {v(vT2)}, vcc
        v_mov_b32 {v(vB2+1)}, 0
        v_mov_b32 {v(vB2+2)}, 0
        v_mov_b32 {v(vB2+3)}, 0
        """)
        if isV:
            vRR = vXS
            p(f"""
            s_lshl_b32 {s(sT0)}, {s(sWAVE)}, 7
            s_add_u32 {s(sT0)}, {s(sT0)}, {LSC + 1536}
            v_and_b32 {v(vT2)}, 31, v1
            v_lshl_add_u32 {v(vT2)}, {v(vT2)}, 2, {s(sT0)}
            ds_write_b32 {v(vT2)}, {v(vR)}
            v_lshrrev_b32 {v(vT2)}, 5, v1
            v_lshl_add_u32 {v(vT2)}, {v(vT2)}, 4, {s(sT0)}
            """)
            for q in range(4): p(f"ds_read_b128 {v(vRR + 4*q, 4)}, {v(vT2)} offset:{q*32}")
        vAU = vWF + 4
        for t in range(3):
            c0 = vCF + 4*t
            p(f"v_add_f32 {v(c0)}, {v(c0)}, {v(c0+1)}\nv_add_f32 {v(c0+2)}, {v(c0+2)}, {v(c0+3)}\nv_add_f32 {v(c0)}, {v(c0)}, {v(c0+2)}")
            split_hi_lo_pack(p, vAU + 4*t, c0, vT2)
            for j in range(1, 4): p(f"v_mov_b32 {v(vAU + 4*t + j)}, 0")
        for t in range(3):
            A, B = (v(vB2, 4), v(vAU + 4*t, 4)) if isV else (v(vAU + 4*t, 4), v(vB2, 4))
            mfma(p, v(vACC + 16*t, 16), A, B)
        vSA = vT1
        if not isV:
            p(f"""
            v_lshlrev_b32 {v(vSA)}, 4, v1
            s_mul_i32 {s(sT0)}, {s(sRT)}, {112*512}
            s_mul_i32 {s(sT1)}, {s(sCB)}, {3*4*512}
            s_add_u32 {s(sT0)}, {s(sT0)}, {s(sT1)}
            s_mul_i32 {s(sXB)}, {s(sCB)}, 3
            """)
            if WS_QK: p(f"s_add_u32 {s(sT0)}, {s(sT0)}, {WS_QK}")
            for t in range(3):
                if t > 0:
                    p(f"s_cmp_ge_u32 {s(sXB)}, {28 - t}")
                    p(f"s_cbranch_scc1 L_end_{name}")
                p(f"s_cmp_lt_u32 {s(sXB)}, {14 - t}")
                p(f"s_cselect_b32 {s(sT1)}, {fl(28**-0.5 * LOG2E)}, 1.0")
                p(f"v_mul_f32 {v(vT2)}, {s(sT1)}, {v(vR)}")
                acc = vACC + 16*t
                for j in range(16): p(f"v_mul_f32 {v(acc+j)}, {v(vT2)}, {v(acc+j)}")
                for j in range(8): p(f"v_cvt_pk_bf16_f32 {v(acc+j)}, {v(acc+2*j)}, {v(acc+2*j+1)}")
                for m in range(2):
                    p(f"buffer_store_dwordx4 {v(acc+4*m, 4)}, {v(vSA)}, {srd(sWS)}, {s(sT0)} offen offset:{m*1024}")
                p(f"s_add_u32 {s(sT0)}, {s(sT0)}, 2048")
            p(f"s_branch L_end_{name}")
        else:
            p(f"""
            v_lshrrev_b32 {v(vSA)}, 5, v1
            v_mul_u32_u24 {v(vSA)}, {448*16 - 512}, {v(vSA)}
            v_lshl_add_u32 {v(vSA)}, v1, 4, {v(vSA)}
            s_mul_i32 {s(sT0)}, {s(sRT)}, {4*448*16}
            s_mul_i32 {s(sT1)}, {s(sCB)}, {3*512}
            s_add_u32 {s(sT0)}, {s(sT0)}, {s(sT1)}
            s_add_u32 {s(sT0)}, {s(sT0)}, {WS_V - 10*3*512}
            s_add_u32 {s(sT1)}, {s(sT0)}, {2*448*16}
            """)
            for t in range(3):
                if t == 2:
                    p(f"s_cmp_ge_u32 {s(sCB)}, 14")
                    p(f"s_cbranch_scc1 L_end_{name}")
                acc = vACC + 16*t
                for j in range(16): p(f"v_mul_f32 {v(acc+j)}, {v(vRR+j)}, {v(acc+j)}")
                for j in range(8): p(f"v_cvt_pk_bf16_f32 {v(acc+j)}, {v(acc+2*j)}, {v(acc+2*j+1)}")
                p(f"buffer_store_dwordx4 {v(acc, 4)}, {v(vSA)}, {srd(sWS)}, {s(sT0)} offen offset:{t*512}")
                p(f"buffer_store_dwordx4 {v(acc+4, 4)}, {v(vSA)}, {srd(sWS)}, {s(sT1)} offen offset:{t*512}")
    epilogue(p, name)
    return name, 168, 0, 163840

def P2(p):
    name = "p2_kernel"
    prologue(p, name, [sWS])
    sH, sR, sT0, sT1, sKB, sVB, sCNT, sEX = 46, 47, 48, 49, 50, 51, 52, 54
    p(f"""
    s_and_b32 {s(sT0)}, s2, 7
    s_lshl_b32 {s(sT0)}, {s(sT0)}, 1
    s_bfe_u32 {s(sT1)}, s2, 0x10003
    s_add_u32 {s(sH)}, {s(sT0)}, {s(sT1)}
    s_lshr_b32 {s(sR)}, s2, 4
    """)
    vL16, vVA, vT1, vT2, vMA, vMB = 3, 4, 5, 6, 7, 8
    vQF, vSB, vPB = 12, 44, 76
    vRD = 92
    aO, aKV = 0, 64
    NB = 4
    p(f"""
    v_lshlrev_b32 {v(vL16)}, 4, v1
    v_lshrrev_b32 {v(vT1)}, 5, v1
    v_mul_u32_u24 {v(vVA)}, {448*16 - 512}, {v(vT1)}
    v_add_u32 {v(vVA)}, {v(vVA)}, {v(vL16)}
    s_mul_i32 {s(sT0)}, {s(sH)}, 7
    s_lshr_b32 {s(sT0)}, {s(sT0)}, 1
    s_lshl_b32 {s(sT0)}, {s(sT0)}, 9
    s_mul_i32 {s(sT1)}, {s(sR)}, {4*112*512}
    s_add_u32 {s(sT1)}, {s(sT1)}, {s(sT0)}
    s_mul_i32 {s(sKB)}, {s(sWAVE)}, {16*112*512}
    s_add_u32 {s(sKB)}, {s(sKB)}, {s(sT0)}
    s_add_u32 {s(sKB)}, {s(sKB)}, {WS_QK + 56*512}
    s_mul_i32 {s(sVB)}, {s(sWAVE)}, {16*4*448*16}
    s_mul_i32 {s(sT0)}, {s(sH)}, 448
    s_add_u32 {s(sVB)}, {s(sVB)}, {s(sT0)}
    s_add_u32 {s(sVB)}, {s(sVB)}, {WS_V}
    s_mov_b32 {s(sEX)}, 0x0fffffff
    s_mov_b32 {s(sEX+1)}, 0x0fffffff
    s_waitcnt lgkmcnt(0)
    """)
    if WS_QK: p(f"s_add_u32 {s(sT1)}, {s(sT1)}, {WS_QK}")
    for t in range(4):
        for sx in range(2):
            p(f"buffer_load_dwordx4 {v(vQF + 8*t + 4*sx, 4)}, {v(vL16)}, {srd(sWS)}, {s(sT1)} offen offset:{sx*1024}")
        p(f"s_add_u32 {s(sT1)}, {s(sT1)}, {112*512}")
    p(f"v_mov_b32 {v(vT1)}, {s(sONES)}")
    for b in range(NB):
        for j in range(8): p(f"v_accvgpr_write_b32 {a(aKV + 16*b + 8 + j)}, {v(vT1)}")
    def loadkv(b):
        p(f"buffer_load_dwordx4 {a(aKV + 16*b, 4)}, {v(vL16)}, {srd(sWS)}, {s(sKB)} offen")
        p(f"buffer_load_dwordx4 {a(aKV + 16*b + 4, 4)}, {v(vL16)}, {srd(sWS)}, {s(sKB)} offen offset:1024")
        p(f"s_add_u32 {s(sT0)}, {s(sVB)}, {2*448*16}")
        p(f"s_mov_b64 exec, {s(sEX,2)}")
        p(f"buffer_load_dwordx4 {a(aKV + 16*b + 8, 4)}, {v(vVA)}, {srd(sWS)}, {s(sVB)} offen")
        p(f"buffer_load_dwordx4 {a(aKV + 16*b + 12, 4)}, {v(vVA)}, {srd(sWS)}, {s(sT0)} offen")
        p(f"s_mov_b64 exec, -1")
        p(f"s_add_u32 {s(sKB)}, {s(sKB)}, {112*512}")
        p(f"s_add_u32 {s(sVB)}, {s(sVB)}, {4*448*16}")
    for b in range(NB - 1): loadkv(b)
    for j in range(64): p(f"v_accvgpr_write_b32 {a(aO + j)}, 0")
    for j in range(8): p(f"v_mov_b32 {v(vPB + 8 + j)}, 0")
    p(f"""
    s_and_b32 {s(sT0)}, {s(sH)}, 1
    s_cmp_eq_u32 {s(sT0)}, 1
    s_cselect_b32 {s(sT0)}, 0, -1
    s_cselect_b32 {s(sT1)}, -1, 0
    v_cmp_lt_u32 vcc, 31, v1
    v_mov_b32 {v(vT1)}, {s(sT0)}
    v_mov_b32 {v(vT2)}, {s(sT1)}
    v_cndmask_b32 {v(vMA)}, {v(vT1)}, -1, vcc
    v_cndmask_b32 {v(vMB)}, -1, {v(vT2)}, vcc
    """)
    for t in range(4):
        q = vQF + 8*t
        for j in (0, 1): p(f"v_and_b32 {v(q+j)}, {v(vMA)}, {v(q+j)}")
        for j in (6, 7): p(f"v_and_b32 {v(q+j)}, {v(vMB)}, {v(q+j)}")
    def smf(n, half, kb):
        t = n % 4
        S = v(vSB + 16*(n % 2), 16)
        mfma(p, S, a(aKV + 16*kb + 4*half, 4), v(vQF + 8*t + 4*half, 4), "0" if half == 0 else None)
    def pvmf(n, half, kb):
        t = n % 4
        mfma(p, a(aO + 16*t, 16), a(aKV + 16*kb + 8 + 4*half, 4), v(vPB + 8*(n % 2) + 4*half, 4))
    def expcvt(n, qd):
        S = vSB + 16*(n % 2) + 4*qd
        for j in range(4): p(f"v_exp_f32 {v(S+j)}, {v(S+j)}")
        for j in range(2): p(f"v_cvt_pk_bf16_f32 {v(vPB + 8*(n % 2) + 2*qd + j)}, {v(S+2*j)}, {v(S+2*j+1)}")
    smf(0, 0, 0); smf(0, 1, 0)
    p(f"s_mov_b32 {s(sCNT)}, 4")
    p.raw(".p2align 6")
    p.label("L_p2_loop")
    st_in = p.state()
    for n in range(16):
        step = n // 4
        kb_next = ((n + 1) // 4) % NB
        kb_prev = ((n - 1) // 4) % NB
        smf(n + 1, 0, kb_next); expcvt(n, 0)
        smf(n + 1, 1, kb_next); expcvt(n, 1)
        pvmf(n - 1, 0, kb_prev); expcvt(n, 2)
        pvmf(n - 1, 1, kb_prev)
        if n % 4 == 0: loadkv((step + NB - 1) % NB)
        expcvt(n, 3)
    assert p.state() == st_in, (p.state(), st_in)
    p(f"""
    s_sub_u32 {s(sCNT)}, {s(sCNT)}, 1
    s_cmp_lg_u32 {s(sCNT)}, 0
    s_cbranch_scc1 L_p2_loop
    """)
    pvmf(15, 0, 3); pvmf(15, 1, 3)
    p(f"""
    s_lshl_b32 {s(sT0)}, {s(sWAVE)}, 12
    v_add_u32 {v(vT1)}, {s(sT0)}, {v(vL16)}
    s_lshl_b32 {s(sT0)}, {s(sWAVE)}, 14
    v_add_u32 {v(vT2)}, {s(sT0)}, {v(vL16)}
    """)
    for t in range(4):
        for q in range(4):
            p(f"ds_write_b128 {v(vT1)}, {a(aO + 16*t + 4*q, 4)} offset:{t*16384 + q*1024}")
    p("s_waitcnt vmcnt(0) lgkmcnt(0)\ns_barrier")
    vO = vSB
    for q in range(4): p(f"ds_read_b128 {v(vO + 4*q, 4)}, {v(vT2)} offset:{q*1024}")
    for w in range(1, 4):
        for q in range(4): p(f"ds_read_b128 {v(vRD + 16*(w-1) + 4*q, 4)}, {v(vT2)} offset:{w*4096 + q*1024}")
    for w in range(3):
        for j in range(16): p(f"v_add_f32 {v(vO+j)}, {v(vO+j)}, {v(vRD + 16*w + j)}")
    p(f"""
    v_mov_b32 {v(vT1)}, {v(vO+12)}
    v_mov_b32 {v(vT2)}, {v(vO+12)}
    v_permlane32_swap_b32 {v(vT2)}, {v(vT1)}
    v_rcp_f32 {v(vT1)}, {v(vT1)}
    v_cmp_lt_u32 vcc, 31, v1
    """)
    for j in range(16): p(f"v_mul_f32 {v(vO+j)}, {v(vT1)}, {v(vO+j)}")
    for j in range(8): p(f"v_cvt_pk_bf16_f32 {v(vO+j)}, {v(vO+2*j)}, {v(vO+2*j+1)}")
    for j in (6, 7): p(f"v_cndmask_b32 {v(vO+j)}, {v(vO+j)}, 0, vcc")
    p(f"""
    s_lshl_b32 {s(sT0)}, {s(sR)}, 2
    s_add_u32 {s(sT0)}, {s(sT0)}, {s(sWAVE)}
    s_lshl_b32 {s(sT0)}, {s(sT0)}, 4
    s_add_u32 {s(sT0)}, {s(sT0)}, {s(sH)}
    s_lshl_b32 {s(sT0)}, {s(sT0)}, 11
    s_add_u32 {s(sT0)}, {s(sT0)}, {WS_O}
    buffer_store_dwordx4 {v(vO, 4)}, {v(vL16)}, {srd(sWS)}, {s(sT0)} offen
    buffer_store_dwordx4 {v(vO+4, 4)}, {v(vL16)}, {srd(sWS)}, {s(sT0)} offen offset:1024
    """)
    epilogue(p, name)
    return name, 140, 128, 65536

def role_gm(p, name, sG, sM, sT0):
    p(f"""
    s_and_b32 {s(sT0)}, s2, 7
    s_lshl_b32 {s(sT0)}, {s(sT0)}, 1
    s_bfe_u32 {s(sG)}, s2, 0x10003
    s_add_u32 {s(sG)}, {s(sG)}, {s(sT0)}
    s_lshr_b32 {s(sM)}, s2, 4
    s_cmp_ge_u32 {s(sM)}, 14
    s_cbranch_scc1 L_end_{name}
    """)

def dma128_addr(p, dst, rowstride, t1, t2):
    p(f"""
    v_lshrrev_b32 {v(t1)}, 3, v1
    v_mul_u32_u24 {v(dst)}, {rowstride}, {v(t1)}
    v_bfe_u32 {v(t1)}, v1, 4, 1
    v_lshlrev_b32 {v(t1)}, 2, {v(t1)}
    v_and_b32 {v(t2)}, 7, v1
    v_xor_b32 {v(t1)}, {v(t1)}, {v(t2)}
    v_lshl_add_u32 {v(dst)}, {v(t1)}, 4, {v(dst)}
    """)

def P3(p):
    name = "p3_kernel"
    prologue(p, name, [sX, sWO, sWS])
    sG, sM, sT0, sT1, sRH, sC7, sRT, sKH, sCT = 46, 47, 48, 49, 50, 51, 52, 53, 54
    role_gm(p, name, sG, sM, sT0)
    vL16, vDA, vT1, vT2, vA0, vA1, vXA = 3, 4, 5, 6, 7, 8, 9
    vOF, vWF, vACC, vXV, vRD = 12, 76, 92, 124, 132
    LSC = 59392
    p(f"""
    s_cmp_ge_u32 {s(sM)}, 7
    s_cselect_b32 {s(sRH)}, 1, 0
    s_cselect_b32 {s(sT0)}, 7, 0
    s_sub_u32 {s(sC7)}, {s(sM)}, {s(sT0)}
    s_lshr_b32 {s(sT0)}, {s(sWAVE)}, 1
    s_and_b32 {s(sKH)}, {s(sWAVE)}, 1
    s_lshl_b32 {s(sRT)}, {s(sG)}, 2
    s_lshl_b32 {s(sT1)}, {s(sRH)}, 1
    s_add_u32 {s(sRT)}, {s(sRT)}, {s(sT1)}
    s_add_u32 {s(sRT)}, {s(sRT)}, {s(sT0)}
    s_lshl_b32 {s(sCT)}, {s(sC7)}, 1
    s_add_u32 {s(sCT)}, {s(sCT)}, {s(sKH)}
    v_lshlrev_b32 {v(vL16)}, 4, v1
    """)
    dma128_addr(p, vDA, 896, vT1, vT2)
    p(f"""
    s_mul_i32 {s(sT0)}, {s(sWAVE)}, {8*896}
    s_lshl_b32 {s(sT1)}, {s(sC7)}, 7
    s_add_u32 {s(sT0)}, {s(sT0)}, {s(sT1)}
    s_lshl_b32 {s(sT1)}, {s(sWAVE)}, 10
    s_waitcnt lgkmcnt(0)
    """)
    for i in range(15):
        p(f"s_add_u32 m0, {s(sT1)}, {i*4096}")
        p(f"buffer_load_dwordx4 {v(vDA)}, {srd(sWO)}, {s(sT0)} offen lds", tag="wo")
        p(f"s_add_u32 {s(sT0)}, {s(sT0)}, {32*896}")
    LSC = 61440
    p(f"""
    s_lshl_b32 {s(sT0)}, {s(sRT)}, 15
    s_lshl_b32 {s(sT1)}, {s(sKH)}, 14
    s_add_u32 {s(sT0)}, {s(sT0)}, {s(sT1)}
    s_add_u32 {s(sT0)}, {s(sT0)}, {WS_O}
    """)
    for f in range(16):
        if f % 4 == 0 and f: p(f"s_add_u32 {s(sT0)}, {s(sT0)}, 4096")
        p(f"buffer_load_dwordx4 {v(vOF + 4*f, 4)}, {v(vL16)}, {srd(sWS)}, {s(sT0)} offen offset:{(f % 4)*1024}")
    p(f"""
    v_and_b32 {v(vT1)}, 31, v1
    v_mul_u32_u24 {v(vXA)}, 896, {v(vT1)}
    v_lshrrev_b32 {v(vT1)}, 5, v1
    v_lshl_add_u32 {v(vXA)}, {v(vT1)}, 4, {v(vXA)}
    s_mul_i32 {s(sT0)}, {s(sRT)}, {32*896}
    s_lshl_b32 {s(sT1)}, {s(sCT)}, 6
    s_add_u32 {s(sT0)}, {s(sT0)}, {s(sT1)}
    buffer_load_dwordx4 {v(vXV, 4)}, {v(vXA)}, {srd(sX)}, {s(sT0)} offen
    buffer_load_dwordx4 {v(vXV+4, 4)}, {v(vXA)}, {srd(sX)}, {s(sT0)} offen offset:32
    """)
    tr_addr(p, vA0, 128, swap=True, perm_rows=True, t1=vT1, t2=vT2, xor_mode=128, ct=0)
    p(f"v_xor_b32 {v(vA1)}, 64, {v(vA0)}")
    p(f"""
    s_mul_i32 {s(sT0)}, {s(sKH)}, {8*28*128}
    v_add_u32 {v(vA0)}, {s(sT0)}, {v(vA0)}
    v_add_u32 {v(vA1)}, {s(sT0)}, {v(vA1)}
    """)
    p.wait_vm("wo")
    p("s_barrier")
    def reads(f):
        hd, sx = f // 2, f % 2
        base = (28*hd + 16*sx) * 128
        b = f % 2
        for ct, va in ((0, vA0), (1, vA1)):
            p(f"ds_read_b64_tr_b16 {v(vWF + 8*b + 4*ct, 2)}, {v(va)} offset:{base}")
            p(f"ds_read_b64_tr_b16 {v(vWF + 8*b + 4*ct + 2, 2)}, {v(va)} offset:{base + 8*128}")
    reads(0)
    for f in range(16):
        if f + 1 < 16: reads(f + 1)
        for ct in range(2):
            mfma(p, v(vACC + 16*ct, 16), v(vWF + 8*(f % 2) + 4*ct, 4), v(vOF + 4*f, 4), "0" if f == 0 else None)
    p(f"""
    s_xor_b32 {s(sT0)}, {s(sWAVE)}, 1
    s_lshl_b32 {s(sT0)}, {s(sT0)}, 12
    s_add_u32 {s(sT0)}, {s(sT0)}, {LSC}
    v_add_u32 {v(vT1)}, {s(sT0)}, {v(vL16)}
    s_lshl_b32 {s(sT0)}, {s(sWAVE)}, 12
    s_add_u32 {s(sT0)}, {s(sT0)}, {LSC}
    v_add_u32 {v(vT2)}, {s(sT0)}, {v(vL16)}
    s_cmp_eq_u32 {s(sKH)}, 0
    s_cbranch_scc1 L_p3_k0
    """)
    st = p.save()
    for q in range(4): p(f"ds_write_b128 {v(vT1)}, {v(vACC + 4*q, 4)} offset:{q*1024}")
    p("s_waitcnt lgkmcnt(0)")
    for j in range(16): p(f"v_mov_b32 {v(vACC + j)}, {v(vACC + 16 + j)}")
    p("s_branch L_p3_j")
    p.label("L_p3_k0"); p.restore(st)
    for q in range(4): p(f"ds_write_b128 {v(vT1)}, {v(vACC + 16 + 4*q, 4)} offset:{q*1024}")
    p("s_waitcnt lgkmcnt(0)")
    p.label("L_p3_j")
    p("s_barrier")
    for q in range(4): p(f"ds_read_b128 {v(vRD + 4*q, 4)}, {v(vT2)} offset:{q*1024}")
    for j in range(8):
        p(f"v_lshlrev_b32 {v(vT1)}, 16, {v(vXV+j)}\nv_add_f32 {v(vACC+2*j)}, {v(vACC+2*j)}, {v(vT1)}")
        p(f"v_and_b32 {v(vT1)}, 0xffff0000, {v(vXV+j)}\nv_add_f32 {v(vACC+2*j+1)}, {v(vACC+2*j+1)}, {v(vT1)}")
    for j in range(16): p(f"v_add_f32 {v(vACC+j)}, {v(vACC+j)}, {v(vRD+j)}")
    for j in range(8): p(f"v_cvt_pk_bf16_f32 {v(vACC+j)}, {v(vACC+2*j)}, {v(vACC+2*j+1)}")
    p(f"""
    s_mul_i32 {s(sT0)}, {s(sRT)}, {56*512}
    s_lshl_b32 {s(sT1)}, {s(sCT)}, 11
    s_add_u32 {s(sT0)}, {s(sT0)}, {s(sT1)}
    s_add_u32 {s(sT0)}, {s(sT0)}, {WS_H}
    buffer_store_dwordx4 {v(vACC, 4)}, {v(vL16)}, {srd(sWS)}, {s(sT0)} offen
    buffer_store_dwordx4 {v(vACC+4, 4)}, {v(vL16)}, {srd(sWS)}, {s(sT0)} offen offset:1024
    v_mov_b32 {v(vRD)}, 0
    v_mov_b32 {v(vRD+1)}, 0
    """)
    for j in range(8):
        p(f"v_dot2c_f32_bf16 {v(vRD)}, {s(sONES)}, {v(vACC+j)}")
        p(f"v_dot2c_f32_bf16 {v(vRD+1)}, {v(vACC+j)}, {v(vACC+j)}")
    half_sum(p, vRD, vT1); half_sum(p, vRD + 1, vT1)
    p(f"""
    s_mul_i32 {s(sT0)}, {s(sRT)}, {14*256}
    s_lshl_b32 {s(sT1)}, {s(sCT)}, 8
    s_add_u32 {s(sT0)}, {s(sT0)}, {s(sT1)}
    s_add_u32 {s(sT0)}, {s(sT0)}, {WS_ST}
    v_lshlrev_b32 {v(vT1)}, 3, v1
    s_mov_b32 exec_hi, 0
    buffer_store_dwordx2 {v(vRD, 2)}, {v(vT1)}, {srd(sWS)}, {s(sT0)} offen
    """)
    epilogue(p, name)
    return name, 148, 0, 61440 + 16384

def P4(p):
    name = "p4_kernel"
    prologue(p, name, [sW1, sB1, sWS])
    sG, sM, sT0, sT1, sRT = 46, 47, 48, 49, 50
    role_gm(p, name, sG, sM, sT0)
    vL16, vDA, vT1, vT2, vA, vAC, vB1 = 3, 4, 5, 6, 8, 12, 13
    vK1, vK2, vSD, vTK = 14, 15, 16, 20
    vHF, vWF, vACC, vSTt, vAU, vG = 24, 136, 152, 216, 232, 248
    LSC = 114688
    p(f"""
    v_lshlrev_b32 {v(vL16)}, 4, v1
    v_lshrrev_b32 {v(vT1)}, 4, v1
    v_mul_u32_u24 {v(vDA)}, 3584, {v(vT1)}
    v_lshlrev_b32 {v(vT1)}, 2, {v(vT1)}
    v_and_b32 {v(vT2)}, 15, v1
    v_xor_b32 {v(vT1)}, {v(vT1)}, {v(vT2)}
    v_lshl_add_u32 {v(vDA)}, {v(vT1)}, 4, {v(vDA)}
    s_lshl_b32 {s(sRT)}, {s(sG)}, 2
    s_add_u32 {s(sRT)}, {s(sRT)}, {s(sWAVE)}
    s_mul_i32 {s(sT0)}, {s(sWAVE)}, {4*3584}
    s_lshl_b32 {s(sT1)}, {s(sM)}, 8
    s_add_u32 {s(sT0)}, {s(sT0)}, {s(sT1)}
    s_lshl_b32 {s(sT1)}, {s(sWAVE)}, 10
    s_waitcnt lgkmcnt(0)
    """)
    for i in range(28):
        p(f"s_add_u32 m0, {s(sT1)}, {i*4096}")
        p(f"buffer_load_dwordx4 {v(vDA)}, {srd(sW1)}, {s(sT0)} offen lds", tag="w1")
        p(f"s_add_u32 {s(sT0)}, {s(sT0)}, {16*3584}")
    p(f"""
    v_and_b32 {v(vT1)}, 19, v1
    v_bfe_u32 {v(vT2)}, v1, 2, 1
    v_lshl_add_u32 {v(vT1)}, {v(vT2)}, 3, {v(vT1)}
    v_bfe_u32 {v(vT2)}, v1, 3, 1
    v_lshl_add_u32 {v(vT1)}, {v(vT2)}, 2, {v(vT1)}
    v_lshlrev_b32 {v(vT1)}, 1, {v(vT1)}
    s_lshl_b32 {s(sT0)}, {s(sM)}, 8
    s_lshl_b32 {s(sT1)}, {s(sWAVE)}, 6
    s_add_u32 {s(sT0)}, {s(sT0)}, {s(sT1)}
    buffer_load_ushort {v(vB1)}, {v(vT1)}, {srd(sB1)}, {s(sT0)} offen
    """)
    p.wait_vm("w1")
    p(f"""
    s_mul_i32 {s(sT0)}, {s(sRT)}, {14*256}
    s_add_u32 {s(sT0)}, {s(sT0)}, {WS_ST}
    v_lshlrev_b32 {v(vT1)}, 3, v1
    """)
    for j in range(7): p(f"buffer_load_dwordx2 {v(vSTt + 2*j, 2)}, {v(vT1)}, {srd(sWS)}, {s(sT0)} offen offset:{j*512}")
    p(f"s_mul_i32 {s(sT0)}, {s(sRT)}, {56*512}\ns_add_u32 {s(sT0)}, {s(sT0)}, {WS_H}")
    for f in range(28):
        if f % 4 == 0 and f: p(f"s_add_u32 {s(sT0)}, {s(sT0)}, 4096")
        p(f"buffer_load_dwordx4 {v(vHF + 4*f, 4)}, {v(vL16)}, {srd(sWS)}, {s(sT0)} offen offset:{(f % 4)*1024}")
    tr_addr(p, vA, 256, swap=True, perm_rows=False, t1=vT1, t2=vT2, xor_mode=256, ct=0)
    for ct in range(1, 4): p(f"v_xor_b32 {v(vA+ct)}, {64*ct}, {v(vA)}")
    p(f"s_lshl_b32 {s(sT0)}, {s(sWAVE)}, 6\nv_xor_b32 {v(vAC)}, {s(sT0)}, {v(vA)}")
    p("s_barrier")
    vCS = vAU
    p(f"v_mov_b32 {v(vCS)}, 0\nv_mov_b32 {v(vCS+1)}, 0")
    for sx in range(28):
        if sx == 16: p(f"v_add_u32 {v(vAC)}, 65536, {v(vAC)}")
        b = sx % 4
        base = (sx % 16) * 4096
        p(f"ds_read_b64_tr_b16 {v(vWF + 4*b, 2)}, {v(vAC)} offset:{base}")
        p(f"ds_read_b64_tr_b16 {v(vWF + 4*b + 2, 2)}, {v(vAC)} offset:{base + 1024}")
        if sx >= 2:
            for j in range(4): p(f"v_dot2c_f32_bf16 {v(vCS + j % 2)}, {s(sONES)}, {v(vWF + 4*((sx-2) % 4) + j)}")
    for sx in (26, 27):
        for j in range(4): p(f"v_dot2c_f32_bf16 {v(vCS + j % 2)}, {s(sONES)}, {v(vWF + 4*(sx % 4) + j)}")
    p(f"v_add_f32 {v(vCS)}, {v(vCS)}, {v(vCS+1)}")
    half_sum(p, vCS, vT1)
    split_hi_lo_pack(p, vG, vCS, vT1)
    p(f"""
    v_mov_b32 {v(vG+1)}, {v(vB1)}
    v_mov_b32 {v(vG+2)}, 0
    v_mov_b32 {v(vG+3)}, 0
    s_lshl_b32 {s(sT0)}, {s(sWAVE)}, 10
    s_add_u32 {s(sT0)}, {s(sT0)}, {LSC}
    v_add_u32 {v(vT1)}, {s(sT0)}, {v(vL16)}
    ds_write_b128 {v(vT1)}, {v(vG, 4)}
    v_add_u32 {v(vT1)}, {LSC}, {v(vL16)}
    s_waitcnt lgkmcnt(0)
    s_barrier
    """)
    for ct in range(4): p(f"ds_read_b128 {v(vAU + 4*ct, 4)}, {v(vT1)} offset:{ct*1024}")
    for j in range(1, 7):
        p(f"v_add_f32 {v(vSTt)}, {v(vSTt)}, {v(vSTt+2*j)}\nv_add_f32 {v(vSTt+1)}, {v(vSTt+1)}, {v(vSTt+2*j+1)}")
    half_sum(p, vSTt, vT1); half_sum(p, vSTt + 1, vT1)
    vM, vV = vSTt + 2, vSTt + 3
    k1 = -2.0 * math.sqrt(2.0 / math.pi) * LOG2E
    k2 = k1 * 0.044715
    p(f"""
    v_mul_f32 {v(vM)}, {fl(-1.0/448)}, {v(vSTt)}
    v_mul_f32 {v(vV)}, {fl(1.0/448)}, {v(vSTt+1)}
    v_fma_f32 {v(vV)}, -{v(vM)}, {v(vM)}, {v(vV)}
    v_max_f32 {v(vV)}, 0, {v(vV)}
    v_add_f32 {v(vT1)}, {fl(EPS)}, {v(vV)}
    v_fmamk_f32 {v(vT1)}, {v(vT1)}, {fl(EPS)}, {v(vV)}
    v_rsq_f32 {v(vT2)}, {v(vT1)}
    v_sqrt_f32 {v(vSD)}, {v(vT1)}
    v_mul_f32 {v(vK1)}, {fl(k1)}, {v(vT2)}
    v_mul_f32 {v(vK2)}, {v(vT2)}, {v(vT2)}
    v_mul_f32 {v(vK2)}, {v(vK2)}, {v(vT2)}
    v_mul_f32 {v(vK2)}, {fl(k2)}, {v(vK2)}
    v_cmp_lt_u32 vcc, 31, v1
    v_cvt_pk_bf16_f32 {v(vTK)}, {v(vM)}, {v(vM)}
    v_and_b32 {v(vT2)}, 0xffff0000, {v(vTK)}
    v_sub_f32 {v(vT2)}, {v(vM)}, {v(vT2)}
    v_cvt_pk_bf16_f32 {v(vT2)}, {v(vT2)}, {v(vT2)}
    v_cndmask_b32 {v(vTK)}, {v(vTK)}, {v(vT2)}, vcc
    v_cvt_pk_bf16_f32 {v(vTK+1)}, {v(vSD)}, {v(vSD)}
    v_and_b32 {v(vT2)}, 0xffff0000, {v(vTK+1)}
    v_sub_f32 {v(vT2)}, {v(vSD)}, {v(vT2)}
    v_cvt_pk_bf16_f32 {v(vT2)}, {v(vT2)}, {v(vT2)}
    v_cndmask_b32 {v(vTK+1)}, {v(vTK+1)}, {v(vT2)}, vcc
    v_mov_b32 {v(vTK+2)}, 0
    v_mov_b32 {v(vTK+3)}, 0
    """)
    p(f"""
    s_mul_i32 {s(sT0)}, {s(sRT)}, {224*512}
    s_lshl_b32 {s(sT1)}, {s(sM)}, 13
    s_add_u32 {s(sT0)}, {s(sT0)}, {s(sT1)}
    s_add_u32 {s(sT0)}, {s(sT0)}, {WS_H1}
    """)
    def gelu_ops(ct):
        ops = []
        acc = vACC + 16*ct
        for j0 in range(0, 16, 4):
            for j in range(4): ops.append(f"v_mul_f32 {v(vG+j)}, {v(acc+j0+j)}, {v(acc+j0+j)}")
            for j in range(4): ops.append(f"v_fma_f32 {v(vG+j)}, {v(vG+j)}, {v(vK2)}, {v(vK1)}")
            for j in range(4): ops.append(f"v_mul_f32 {v(vG+j)}, {v(vG+j)}, {v(acc+j0+j)}")
            for j in range(4): ops.append(f"v_exp_f32 {v(vG+j)}, {v(vG+j)}")
            for j in range(4): ops.append(f"v_fma_f32 {v(vG+j)}, {v(vG+j)}, {v(vSD)}, {v(vSD)}")
            for j in range(4): ops.append(f"v_rcp_f32 {v(vG+j)}, {v(vG+j)}")
            for j in range(4): ops.append(f"v_mul_f32 {v(vG+j)}, {v(vG+j)}, {v(acc+j0+j)}")
            for j in range(2): ops.append(f"v_cvt_pk_bf16_f32 {v(acc + j0//2 + j)}, {v(vG+2*j)}, {v(vG+2*j+1)}")
        for m in range(2):
            o = ct*2048 + m*1024
            ops.append(f"s_add_u32 {s(sT1)}, {s(sT0)}, {o}")
            ops.append(f"buffer_store_dwordx4 {v(acc+4*m, 4)}, {v(vL16)}, {srd(sWS)}, {s(sT1)} offen")
        return ops
    for ps in range(2):
        cts = (2*ps, 2*ps + 1)
        fill = gelu_ops(0) + gelu_ops(1) if ps == 1 else []
        per = (len(fill) + 57) // 58
        def reads(sx):
            if sx == 16:
                for ct in cts: p(f"v_add_u32 {v(vA+ct)}, 65536, {v(vA+ct)}")
            base = (sx % 16) * 4096
            for k, ct in enumerate(cts):
                p(f"ds_read_b64_tr_b16 {v(vWF + 8*(sx % 2) + 4*k, 2)}, {v(vA+ct)} offset:{base}")
                p(f"ds_read_b64_tr_b16 {v(vWF + 8*(sx % 2) + 4*k + 2, 2)}, {v(vA+ct)} offset:{base + 1024}")
        reads(0)
        for k, ct in enumerate(cts):
            mfma(p, v(vACC + 16*ct, 16), v(vAU + 4*ct, 4), v(vTK, 4), "0")
            for o in fill[:per]: p(o)
            fill = fill[per:]
        for sx in range(28):
            if sx + 1 < 28: reads(sx + 1)
            for k, ct in enumerate(cts):
                mfma(p, v(vACC + 16*ct, 16), v(vWF + 8*(sx % 2) + 4*k, 4), v(vHF + 4*sx, 4))
                for o in fill[:per]: p(o)
                fill = fill[per:]
        for o in fill: p(o)
    for o in gelu_ops(2) + gelu_ops(3): p(o)
    epilogue(p, name)
    return name, 256, 0, 114688 + 4096

def P5(p):
    name = "p5_kernel"
    prologue(p, name, [sW2, sB2, sOUT, sWS])
    sG, sM, sT0, sT1, sRH, sC7, sRT0, sRT, sCT, sW2B, sLB, sHB = 46, 47, 48, 49, 50, 51, 52, 53, 54, 55, 56, 57
    role_gm(p, name, sG, sM, sT0)
    vL16, vDA, vT1, vT2, vA0, vA1, vXA = 3, 4, 5, 6, 7, 8, 9
    vHV, vBV, vWF, vACC, vHF = 12, 20, 28, 44, 108
    RING = 18
    p(f"""
    s_cmp_ge_u32 {s(sM)}, 7
    s_cselect_b32 {s(sRH)}, 1, 0
    s_cselect_b32 {s(sT0)}, 7, 0
    s_sub_u32 {s(sC7)}, {s(sM)}, {s(sT0)}
    s_lshl_b32 {s(sRT0)}, {s(sG)}, 2
    s_lshl_b32 {s(sT1)}, {s(sRH)}, 1
    s_add_u32 {s(sRT0)}, {s(sRT0)}, {s(sT1)}
    s_lshr_b32 {s(sT0)}, {s(sWAVE)}, 1
    s_add_u32 {s(sRT)}, {s(sRT0)}, {s(sT0)}
    s_and_b32 {s(sT0)}, {s(sWAVE)}, 1
    s_lshl_b32 {s(sCT)}, {s(sC7)}, 1
    s_add_u32 {s(sCT)}, {s(sCT)}, {s(sT0)}
    v_lshlrev_b32 {v(vL16)}, 4, v1
    s_mul_i32 {s(sW2B)}, {s(sWAVE)}, {448*896}
    s_lshl_b32 {s(sT1)}, {s(sC7)}, 7
    s_add_u32 {s(sW2B)}, {s(sW2B)}, {s(sT1)}
    s_mul_i32 {s(sLB)}, {s(sWAVE)}, {RING*2048}
    s_mul_i32 {s(sHB)}, {s(sRT0)}, {224*512}
    s_mul_i32 {s(sT1)}, {s(sWAVE)}, {56*512}
    s_add_u32 {s(sHB)}, {s(sHB)}, {s(sT1)}
    s_add_u32 {s(sHB)}, {s(sHB)}, {WS_H1}
    """)
    dma128_addr(p, vDA, 896, vT1, vT2)
    p("s_waitcnt lgkmcnt(0)")
    def issue(sx):
        for q in range(2):
            p(f"s_add_u32 m0, {s(sLB)}, {(sx % RING)*2048 + q*1024}")
            p(f"s_add_u32 {s(sT0)}, {s(sW2B)}, {(16*sx + 8*q)*896}")
            p(f"buffer_load_dwordx4 {v(vDA)}, {srd(sW2)}, {s(sT0)} offen lds", tag=f"w{sx}")
        for r in range(2):
            p(f"s_add_u32 {s(sT0)}, {s(sHB)}, {r*224*512 + sx*1024}")
            p(f"buffer_load_dwordx4 {v(vHF + 8*(sx % 14) + 4*r, 4)}, {v(vL16)}, {srd(sWS)}, {s(sT0)} offen")
    p(f"""
    s_mul_i32 {s(sT0)}, {s(sRT)}, {56*512}
    s_lshl_b32 {s(sT1)}, {s(sCT)}, 11
    s_add_u32 {s(sT0)}, {s(sT0)}, {s(sT1)}
    s_add_u32 {s(sT0)}, {s(sT0)}, {WS_H}
    buffer_load_dwordx4 {v(vHV, 4)}, {v(vL16)}, {srd(sWS)}, {s(sT0)} offen
    buffer_load_dwordx4 {v(vHV+4, 4)}, {v(vL16)}, {srd(sWS)}, {s(sT0)} offen offset:1024
    v_lshrrev_b32 {v(vT1)}, 5, v1
    v_lshlrev_b32 {v(vT1)}, 4, {v(vT1)}
    s_lshl_b32 {s(sT0)}, {s(sCT)}, 6
    buffer_load_dwordx4 {v(vBV, 4)}, {v(vT1)}, {srd(sB2)}, {s(sT0)} offen
    buffer_load_dwordx4 {v(vBV+4, 4)}, {v(vT1)}, {srd(sB2)}, {s(sT0)} offen offset:32
    """)
    PRE = 13
    for sx in range(PRE): issue(sx)
    tr_addr(p, vA0, 128, swap=True, perm_rows=False, t1=vT1, t2=vT2, xor_mode=128, ct=0)
    p(f"v_add_u32 {v(vA0)}, {s(sLB)}, {v(vA0)}\nv_xor_b32 {v(vA1)}, 64, {v(vA0)}")
    def reads(sx):
        p.wait_vm(f"w{sx}")
        base = (sx % RING) * 2048
        for ct, va in ((0, vA0), (1, vA1)):
            p(f"ds_read_b64_tr_b16 {v(vWF + 8*(sx % 2) + 4*ct, 2)}, {v(va)} offset:{base}")
            p(f"ds_read_b64_tr_b16 {v(vWF + 8*(sx % 2) + 4*ct + 2, 2)}, {v(va)} offset:{base + 512}")
    reads(0)
    for sx in range(28):
        if sx + 1 < 28: reads(sx + 1)
        for r in range(2):
            for ct in range(2):
                mfma(p, v(vACC + 16*(2*r + ct), 16), v(vWF + 8*(sx % 2) + 4*ct, 4), v(vHF + 8*(sx % 14) + 4*r, 4), "0" if sx == 0 else None)
        if sx + PRE < 28: issue(sx + PRE)
    p(f"""
    s_lshl_b32 {s(sT0)}, {s(sWAVE)}, 12
    v_add_u32 {v(vT1)}, {s(sT0)}, {v(vL16)}
    s_lshl_b32 {s(sT0)}, {s(sWAVE)}, 14
    v_add_u32 {v(vT2)}, {s(sT0)}, {v(vL16)}
    s_barrier
    """)
    for t in range(4):
        for q in range(4):
            p(f"ds_write_b128 {v(vT1)}, {v(vACC + 16*t + 4*q, 4)} offset:{t*16384 + q*1024}")
    p("s_waitcnt lgkmcnt(0)\ns_barrier")
    for w in range(4):
        for q in range(4): p(f"ds_read_b128 {v(vHF + 16*w + 4*q, 4)}, {v(vT2)} offset:{w*4096 + q*1024}")
    vO = vACC
    for j in range(8):
        p(f"v_lshlrev_b32 {v(vO+2*j)}, 16, {v(vHV+j)}\nv_lshlrev_b32 {v(vT1)}, 16, {v(vBV+j)}\nv_add_f32 {v(vO+2*j)}, {v(vO+2*j)}, {v(vT1)}")
        p(f"v_and_b32 {v(vO+2*j+1)}, 0xffff0000, {v(vHV+j)}\nv_and_b32 {v(vT1)}, 0xffff0000, {v(vBV+j)}\nv_add_f32 {v(vO+2*j+1)}, {v(vO+2*j+1)}, {v(vT1)}")
    for w in range(4):
        for j in range(16): p(f"v_add_f32 {v(vO+j)}, {v(vO+j)}, {v(vHF + 16*w + j)}")
    for j in range(8): p(f"v_cvt_pk_bf16_f32 {v(vO+j)}, {v(vO+2*j)}, {v(vO+2*j+1)}")
    p(f"""
    v_and_b32 {v(vT1)}, 31, v1
    v_mul_u32_u24 {v(vXA)}, 896, {v(vT1)}
    v_lshrrev_b32 {v(vT1)}, 5, v1
    v_lshl_add_u32 {v(vXA)}, {v(vT1)}, 4, {v(vXA)}
    s_mul_i32 {s(sT0)}, {s(sRT)}, {32*896}
    s_lshl_b32 {s(sT1)}, {s(sCT)}, 6
    s_add_u32 {s(sT0)}, {s(sT0)}, {s(sT1)}
    buffer_store_dwordx4 {v(vO, 4)}, {v(vXA)}, {srd(sOUT)}, {s(sT0)} offen
    buffer_store_dwordx4 {v(vO+4, 4)}, {v(vXA)}, {srd(sOUT)}, {s(sT0)} offen offset:32
    """)
    epilogue(p, name)
    return name, 220, 0, 4*RING*2048

def main(outpath):
    p = Prog()
    ks = [f(p) for f in (P1, P2, P3, P4, P5)]
    body = p.finalize()
    hdr = open(f"cdna_kernels/{NAME}.s.ref").read().split("; Override launch")[0]
    for name, nv, na, lds in ks:
        hdr += f"; @launch kernel={name} grid=(256,1,1) block=(256,1,1) lds={lds}\n"
    txt = hdr + '.amdgcn_target "amdgcn-amd-amdhsa--gfx950"\n.text\n' + body + '.section .rodata,"a"\n'
    for name, nv, na, lds in ks:
        ao = (nv + 3) // 4 * 4
        txt += f""".p2align 6
.amdhsa_kernel {name}
  .amdhsa_next_free_vgpr {ao + na}
  .amdhsa_next_free_sgpr 102
  .amdhsa_accum_offset {ao}
  .amdhsa_group_segment_fixed_size 0
  .amdhsa_kernarg_size 88
  .amdhsa_user_sgpr_count 2
  .amdhsa_user_sgpr_kernarg_segment_ptr 1
  .amdhsa_system_sgpr_workgroup_id_x 1
.end_amdhsa_kernel
"""
    open(outpath, "w").write(txt)
    print("nops inserted:", p.nops, "bytes:", len(txt))

if __name__ == "__main__":
    main(sys.argv[1] if len(sys.argv) > 1 else f"cdna_kernels/{NAME}.s")
```

```python
import sys, math, struct
from asmlib import *

NAME = "sequential_preLN__softmax_full_mha__mixer_channel_mlp__prompt"
def f2u(x): return struct.unpack("<I", struct.pack("<f", x))[0]
def hx(x): return f"0x{x & 0xffffffff:08x}"
def fl(x): return hx(f2u(x))

WS_QK = 0
WS_V  = 0x400000
WS_O  = 0x600000
WS_H  = 0x800000
WS_ST = 0x9E0000
WS_AU = 0xA20000
WS_H1 = 0xA40000
WS_FL = 0x1180000
FB, FC, FD0, FD1 = WS_FL, WS_FL + 0x20000, WS_FL + 0x40000, WS_FL + 0x60000
FX = WS_FL + 0x80000
WS_SIZE = 0x1210000

sX, sWQ, sWO, sW1, sB1, sW2, sB2, sOUT, sWS = 8, 12, 16, 20, 24, 28, 32, 36, 40
SRD = {sX: (0, 2048*448*2), sWQ: (8, 448*1344*2), sWO: (16, 448*448*2), sW1: (32, 448*1792*2), sB1: (40, 1792*2),
       sW2: (48, 1792*448*2), sB2: (56, 448*2), sOUT: (64, 2048*448*2), sWS: (80, WS_SIZE)}
sWAVE, sONES = 44, 45
LOG2E = 1.4426950408889634
EPS = 1e-5
STAMPS = False
NST = 14
def srd(n): return s(n, 4)

def stamp(p, k):
    if STAMPS: p(f"s_memtime {s(64 + 2*k, 2)}")

def prologue(p, name, srds):
    p.raw(f".globl {name}\n.p2align 8\n.type {name},@function")
    p.label(name)
    p.reset()
    p(f"s_cmp_ge_u32 s2, 256")
    p(f"s_cbranch_scc1 L_exit_{name}")
    if STAMPS:
        for k in range(1, NST): p(f"s_mov_b64 {s(64+2*k,2)}, 0")
        p(f"s_memrealtime s[92:93]")
    stamp(p, 0)
    for r in srds: p(f"s_load_dwordx2 {s(r,2)}, s[0:1], {SRD[r][0]}")
    for r in srds:
        p(f"s_mov_b32 {s(r+2)}, {hx(SRD[r][1])}")
        p(f"s_mov_b32 {s(r+3)}, 0x00020000")
    p(f"v_lshrrev_b32 v2, 6, v0")
    p(f"v_and_b32 v1, 63, v0")
    p(f"v_readfirstlane_b32 {s(sWAVE)}, v2")
    p(f"s_mov_b32 {s(sONES)}, 0x3f803f80")

def epilogue(p, name, kidx):
    p.label(f"L_end_{name}")
    if STAMPS:
        p.reset()
        p("s_mov_b64 exec, -1")
        p("s_waitcnt vmcnt(0)")
        stamp(p, NST - 1)
        p(f"s_memrealtime s[94:95]")
        p("s_waitcnt lgkmcnt(0)")
        for k in range(16): p(f"v_mov_b32 v{4+k}, {s(64 + 2*k)}")
        p(f"""
        s_lshl_b32 s3, s2, 8
        s_lshl_b32 s4, {s(sWAVE)}, 6
        s_add_u32 s3, s3, s4
        s_add_u32 s3, s3, {(31 << 20) + kidx * 65536}
        v_mov_b32 v2, s3
        s_mov_b32 {s(sWS+2)}, 0x2000000
        s_mov_b64 exec, 1
        """)
        for k in range(4): p(f"buffer_store_dwordx4 {v(4+4*k, 4)}, v2, {srd(sWS)}, 0 offen offset:{16*k}")
    p("s_waitcnt vmcnt(0)")
    p.label(f"L_exit_{name}")
    p("s_endpgm")

def mfma(p, d, A, B, C=None):
    p(f"v_mfma_f32_32x32x16_bf16 {d}, {A}, {B}, {C if C is not None else d}")

def split_hi_lo_pack(p, dst, src, tmp):
    p(f"v_cvt_pk_bf16_f32 {v(tmp)}, {v(src)}, {v(src)}")
    p(f"v_and_b32 {v(tmp)}, 0xffff0000, {v(tmp)}")
    p(f"v_sub_f32 {v(tmp)}, {v(src)}, {v(tmp)}")
    p(f"v_cvt_pk_bf16_f32 {v(dst)}, {v(src)}, {v(tmp)}")

def hi_or_lo(p, dst, src, tmp):
    p(f"v_cvt_pk_bf16_f32 {v(dst)}, {v(src)}, {v(src)}")
    p(f"v_and_b32 {v(tmp)}, 0xffff0000, {v(dst)}")
    p(f"v_sub_f32 {v(tmp)}, {v(src)}, {v(tmp)}")
    p(f"v_cvt_pk_bf16_f32 {v(tmp)}, {v(tmp)}, {v(tmp)}")
    p(f"v_cndmask_b32 {v(dst)}, {v(dst)}, {v(tmp)}, vcc")

def half_sum(p, x, tmp):
    p(f"v_mov_b32 {v(tmp)}, {v(x)}")
    p(f"v_permlane32_swap_b32 {v(tmp)}, {v(x)}")
    p(f"v_add_f32 {v(x)}, {v(x)}, {v(tmp)}")

def tr_addr(p, dst, pitch, swap, perm_rows, t1, t2, xor128=False):
    p(f"v_bfe_u32 {v(t1)}, v1, 2, 2")
    p(f"v_lshrrev_b32 {v(t2)}, 5, v1")
    p(f"v_lshl_add_u32 {v(t2)}, {v(t2)}, {2 if perm_rows else 3}, {v(t1)}")
    p(f"v_mul_u32_u24 {v(dst)}, {pitch}, {v(t2)}")
    if xor128:
        p(f"v_lshrrev_b32 {v(t1)}, 1, {v(t1)}")
        p(f"v_lshl_add_u32 {v(dst)}, {v(t1)}, 6, {v(dst)}")
    p(f"v_bfe_u32 {v(t1)}, v1, 4, 1")
    p(f"v_lshl_add_u32 {v(dst)}, {v(t1)}, 5, {v(dst)}")
    if swap:
        p(f"v_and_b32 {v(t1)}, 1, v1")
        p(f"v_lshl_add_u32 {v(dst)}, {v(t1)}, 4, {v(dst)}")
        p(f"v_bfe_u32 {v(t1)}, v1, 1, 1")
        p(f"v_lshl_add_u32 {v(dst)}, {v(t1)}, 3, {v(dst)}")
    else:
        p(f"v_and_b32 {v(t1)}, 3, v1")
        p(f"v_lshl_add_u32 {v(dst)}, {v(t1)}, 3, {v(dst)}")

def dma128_addr(p, dst, rowstride, t1, t2):
    p(f"""
    v_lshrrev_b32 {v(t1)}, 3, v1
    v_mul_u32_u24 {v(dst)}, {rowstride}, {v(t1)}
    v_bfe_u32 {v(t1)}, v1, 4, 1
    v_lshlrev_b32 {v(t1)}, 2, {v(t1)}
    v_and_b32 {v(t2)}, 7, v1
    v_xor_b32 {v(t1)}, {v(t1)}, {v(t2)}
    v_lshl_add_u32 {v(dst)}, {v(t1)}, 4, {v(dst)}
    """)

def K1(p):
    name = "k1_kernel"
    prologue(p, name, [sX, sWQ, sWO, sW1, sB1, sW2, sWS])
    sR, sCB, sT0, sT1, sXB, sWB, sM0, sRT, sKC, sT2, sT3, sPC = 46, 47, 48, 49, 50, 51, 52, 53, 54, 55, 56, 58
    p(f"""
    s_and_b32 {s(sT0)}, s2, 3
    s_lshl_b32 {s(sT0)}, {s(sT0)}, 2
    s_bfe_u32 {s(sT1)}, s2, 0x20003
    s_add_u32 {s(sR)}, {s(sT0)}, {s(sT1)}
    s_bfe_u32 {s(sT0)}, s2, 0x10002
    s_lshl_b32 {s(sT0)}, {s(sT0)}, 3
    s_lshr_b32 {s(sT2)}, s2, 5
    s_add_u32 {s(sCB)}, {s(sT0)}, {s(sT2)}
    s_cmp_ge_u32 {s(sCB)}, 15
    s_cbranch_scc1 L_k1_aux
    s_lshl_b32 {s(sT1)}, {s(sT1)}, 1
    s_add_u32 {s(sKC)}, {s(sT2)}, {s(sT1)}
    s_sub_u32 {s(sT0)}, {s(sKC)}, 7
    s_cmp_ge_u32 {s(sKC)}, 7
    s_cselect_b32 {s(sKC)}, {s(sT0)}, {s(sKC)}
    """)
    st_aux = p.save()
    vXE, vXO, vW, vXR, vWR, vWC, vT1, vT2, vL16 = 3, 4, 5, 8, 12, 13, 14, 15, 16
    vS, vQ, vCS = 17, 18, 19
    vM, vR = 22, 23
    vXF, vWF, vCF, vACC, vXS = 24, 56, 92, 104, 152
    vTC = 200
    LW, LX, LSC = 0, 86016, 151552
    p(f"""
    v_lshrrev_b32 {v(vT1)}, 3, v1
    v_mul_u32_u24 {v(vT1)}, 896, {v(vT1)}
    v_lshrrev_b32 {v(vT2)}, 4, v1
    v_xor_b32 {v(vT2)}, {v(vT2)}, v1
    v_and_b32 {v(vT2)}, 7, {v(vT2)}
    v_lshl_add_u32 {v(vXE)}, {v(vT2)}, 4, {v(vT1)}
    v_xor_b32 {v(vT2)}, 4, {v(vT2)}
    v_lshl_add_u32 {v(vXO)}, {v(vT2)}, 4, {v(vT1)}
    v_add_u32 {v(vXO)}, {8*896}, {v(vXO)}
    v_lshlrev_b32 {v(vL16)}, 4, v1
    """)
    for pt in range(3):
        p(f"""
        v_add_u32 {v(vT1)}, {64*pt}, v1
        v_mul_u32_u24 {v(vT2)}, 5462, {v(vT1)}
        v_lshrrev_b32 {v(vT2)}, 16, {v(vT2)}
        v_mul_u32_u24 {v(vW+pt)}, {2688 - 192}, {v(vT2)}
        v_lshl_add_u32 {v(vW+pt)}, v1, 4, {v(vW+pt)}
        """)
    p(f"""
    s_lshl_b32 {s(sRT)}, {s(sR)}, 2
    s_add_u32 {s(sRT)}, {s(sRT)}, {s(sWAVE)}
    s_mul_i32 {s(sXB)}, {s(sRT)}, {32*896}
    s_mul_i32 {s(sWB)}, {s(sCB)}, 192
    s_cmp_ge_u32 {s(sCB)}, 10
    s_cselect_b32 {s(sT0)}, 128, 0
    s_sub_u32 {s(sWB)}, {s(sWB)}, {s(sT0)}
    s_mul_i32 {s(sT0)}, {s(sWAVE)}, {16*2688}
    s_add_u32 {s(sWB)}, {s(sWB)}, {s(sT0)}
    s_lshl_b32 {s(sM0)}, {s(sWAVE)}, 14
    s_add_u32 {s(sM0)}, {s(sM0)}, {LX}
    s_mul_i32 {s(sT1)}, {s(sWAVE)}, 3072
    s_waitcnt lgkmcnt(0)
    """)
    for c in range(7):
        p(f"""
        s_lshl_b32 {s(sT0)}, {s(sKC)}, 7
        s_add_u32 {s(sT0)}, {s(sT0)}, {s(sXB)}
        s_add_u32 {s(sT2)}, {s(sT0)}, {16*896}
        s_mul_i32 {s(sT3)}, {s(sKC)}, {64*2688}
        s_add_u32 {s(sT3)}, {s(sT3)}, {s(sWB)}
        """)
        for q in range(4):
            va = vXE if q % 2 == 0 else vXO
            so = sT0 if q < 2 else sT2
            if c < 4:
                p(f"s_add_u32 m0, {s(sM0)}, {c*4096 + q*1024}")
                p(f"buffer_load_dwordx4 {v(va)}, {srd(sX)}, {s(so)} offen lds", tag=f"c{c}")
            else:
                p(f"buffer_load_dwordx4 {v(vXS + (c-4)*16 + q*4, 4)}, {v(va)}, {srd(sX)}, {s(so)} offen", tag=f"c{c}")
        p(f"s_add_u32 m0, {s(sT1)}, {LW + c*12288}")
        p(f"s_add_u32 {s(sKC)}, {s(sKC)}, 1")
        for pt in range(3):
            p(f"buffer_load_dwordx4 {v(vW+pt)}, {srd(sWQ)}, {s(sT3)} offen offset:{pt*1024} lds", tag=f"c{c}")
        p(f"s_cmp_eq_u32 {s(sKC)}, 7\ns_cselect_b32 {s(sKC)}, 0, {s(sKC)}")
        if c == 0:
            p(f"""
            v_and_b32 {v(vT1)}, 31, v1
            v_lshlrev_b32 {v(vXR+3)}, 7, {v(vT1)}
            v_add_u32 {v(vXR+3)}, {s(sM0)}, {v(vXR+3)}
            v_bfe_u32 {v(vT1)}, v1, 1, 3
            v_lshrrev_b32 {v(vT2)}, 5, v1
            v_xor_b32 {v(vT1)}, {v(vT1)}, {v(vT2)}
            """)
            for sp in range(4):
                p(f"v_xor_b32 {v(vT2)}, {2*sp}, {v(vT1)}")
                p(f"v_lshl_add_u32 {v(vXR+sp)}, {v(vT2)}, 4, {v(vXR+3)}")
            p(f"v_add_u32 {v(vL16)}, {s(sM0)}, {v(vL16)}")
            for r in (vS, vQ, vCS, vCS+1, vCS+2): p(f"v_mov_b32 {v(r)}, 0")
    p(f"""
    s_lshl_b32 {s(sT0)}, s2, 2
    s_add_u32 {s(sT0)}, {s(sT0)}, {s(sWAVE)}
    s_lshl_b32 {s(sT2)}, {s(sT0)}, 11
    s_lshl_b32 {s(sT3)}, {s(sT0)}, 9
    v_lshlrev_b32 {v(vT1)}, 7, v1
    s_mov_b64 exec, 0xffff
    buffer_load_dword {v(vTC)}, {v(vT1)}, {srd(sW2)}, {s(sT2)} offen
    s_mov_b64 exec, 0xf
    buffer_load_dword {v(vTC+1)}, {v(vT1)}, {srd(sWO)}, {s(sT3)} offen
    s_mov_b64 exec, -1
    """)
    stamp(p, 1)
    p(f"s_cmp_ge_u32 {s(sCB)}, 10")
    p(f"s_cbranch_scc1 L_k1_v")
    st = p.save()
    for isV in (0, 1):
        if isV:
            p.label("L_k1_v"); p.restore(st)
        tr_addr(p, vWR, 192, swap=not isV, perm_rows=False, t1=vT1, t2=vT2)
        p(f"v_add_u32 {v(vWC)}, {s(sT1)}, {v(vWR)}")
        vWR2, vWC2 = vXE, vXO
        p(f"v_add_u32 {v(vWR2)}, 49152, {v(vWR)}\nv_add_u32 {v(vWC2)}, 49152, {v(vWC)}")
        def gate(c):
            p.wait_vm(f"c{c}")
            if c >= 4:
                for q in range(4):
                    p(f"ds_write_b128 {v(vL16)}, {v(vXS + (c-4)*16 + q*4, 4)} offset:{(c-4)*4096 + q*1024}")
            p("s_barrier")
            for sp in range(4):
                p(f"ds_read_b128 {v(vXF + 16*(c % 2) + 4*sp, 4)}, {v(vXR+sp)} offset:{(c % 4)*4096}")
            base = (c % 4) * 12288
            for t in range(3):
                va = vWC if c < 4 else vWC2
                p(f"ds_read_b64_tr_b16 {v(vCF + 4*t, 2)}, {v(va)} offset:{base + 64*t}")
                p(f"ds_read_b64_tr_b16 {v(vCF + 4*t + 2, 2)}, {v(va)} offset:{base + 64*t + 768}")
        def wreads(sx):
            b = sx % 3
            base = (sx % 16) * 3072
            va = vWR if sx < 16 else vWR2
            for t in range(3):
                p(f"ds_read_b64_tr_b16 {v(vWF + 12*b + 4*t, 2)}, {v(va)} offset:{base + 64*t}")
                p(f"ds_read_b64_tr_b16 {v(vWF + 12*b + 4*t + 2, 2)}, {v(va)} offset:{base + 64*t + 768}")
        def burst(c):
            for j in range(16):
                r = vXF + 16*(c % 2) + j
                p(f"v_dot2c_f32_bf16 {v(vS)}, {s(sONES)}, {v(r)}")
                p(f"v_dot2c_f32_bf16 {v(vQ)}, {v(r)}, {v(r)}")
            for j in range(12): p(f"v_dot2c_f32_bf16 {v(vCS + j // 4)}, {s(sONES)}, {v(vCF + j)}")
        def mm(sx, fill=None):
            c, sp = sx // 4, sx % 4
            xf = v(vXF + 16*(c % 2) + 4*sp, 4)
            for t in range(3):
                wf = v(vWF + 12*(sx % 3) + 4*t, 4)
                A, B = (xf, wf) if isV else (wf, xf)
                mfma(p, v(vACC + 16*t, 16), A, B, "0" if sx == 0 else None)
                if fill:
                    for _ in range(5):
                        if fill: p(fill.pop(0))
        q = Prog(); q.auto = False
        vB2, vAU, vRR = vXF + 16, vXS + 16, vXS
        for t in range(3): half_sum(q, vCS + t, vT1)
        q(f"""
        v_and_b32 {v(vT1)}, 31, v1
        v_lshlrev_b32 {v(vT1)}, 4, {v(vT1)}
        v_add_u32 {v(vT1)}, {LSC}, {v(vT1)}
        s_lshl_b32 {s(sT0)}, {s(sWAVE)}, 2
        v_add_u32 {v(vT2)}, {s(sT0)}, {v(vT1)}
        """)
        for t in range(3): q(f"ds_write_b32 {v(vT2)}, {v(vCS+t)} offset:{t*512}")
        half_sum(q, vS, vT2); half_sum(q, vQ, vT2)
        q(f"""
        v_mul_f32 {v(vM)}, {fl(-1.0/448)}, {v(vS)}
        v_mul_f32 {v(vQ)}, {fl(1.0/448)}, {v(vQ)}
        v_fma_f32 {v(vQ)}, -{v(vM)}, {v(vM)}, {v(vQ)}
        v_max_f32 {v(vQ)}, 0, {v(vQ)}
        v_add_f32 {v(vQ)}, {fl(EPS)}, {v(vQ)}
        v_rsq_f32 {v(vR)}, {v(vQ)}
        v_cmp_lt_u32 vcc, 31, v1
        """)
        hi_or_lo(q, vB2, vM, vT2)
        for j in range(1, 4): q(f"v_mov_b32 {v(vB2+j)}, 0")
        if isV:
            q(f"""
            s_lshl_b32 {s(sT0)}, {s(sWAVE)}, 7
            s_add_u32 {s(sT0)}, {s(sT0)}, {LSC + 1536}
            v_and_b32 {v(vT2)}, 31, v1
            v_lshl_add_u32 {v(vT2)}, {v(vT2)}, 2, {s(sT0)}
            ds_write_b32 {v(vT2)}, {v(vR)}
            v_lshrrev_b32 {v(vT2)}, 5, v1
            v_lshl_add_u32 {v(vT2)}, {v(vT2)}, 4, {s(sT0)}
            """)
            for k in range(4): q(f"ds_read_b128 {v(vRR + 4*k, 4)}, {v(vT2)} offset:{k*32}")
        for t in range(3):
            for j in range(1, 4): q(f"v_mov_b32 {v(vAU + 4*t + j)}, 0")
        fin = [i.text for i in q.items]

        gate(0); stamp(p, 2); wreads(0); wreads(1)
        for c in range(7):
            burst(c)
            for sp in range(4):
                sx = 4*c + sp
                if sp == 2 and c < 6:
                    gate(c + 1)
                    if c + 1 in (3, 6): stamp(p, 3 if c + 1 == 3 else 4)
                if sx + 2 < 28: wreads(sx + 2)
                mm(sx, fin if c == 6 else None)
        for o in fin: p(o)
        stamp(p, 5)
        p("s_waitcnt lgkmcnt(0)\ns_barrier")
        for t in range(3): p(f"ds_read_b128 {v(vCF + 4*t, 4)}, {v(vT1)} offset:{t*512}")
        for t in range(3):
            c0 = vCF + 4*t
            p(f"v_add_f32 {v(c0)}, {v(c0)}, {v(c0+1)}\nv_add_f32 {v(c0+2)}, {v(c0+2)}, {v(c0+3)}\nv_add_f32 {v(c0)}, {v(c0)}, {v(c0+2)}")
            split_hi_lo_pack(p, vAU + 4*t, c0, vT2)
        for t in range(3):
            A, B = (v(vB2, 4), v(vAU + 4*t, 4)) if isV else (v(vAU + 4*t, 4), v(vB2, 4))
            mfma(p, v(vACC + 16*t, 16), A, B)
        stamp(p, 6)
        vSA = vT1
        if not isV:
            p(f"""
            v_lshlrev_b32 {v(vSA)}, 4, v1
            s_mul_i32 {s(sT0)}, {s(sRT)}, {112*512}
            s_mul_i32 {s(sT1)}, {s(sCB)}, {3*4*512}
            s_add_u32 {s(sT0)}, {s(sT0)}, {s(sT1)}
            s_mul_i32 {s(sXB)}, {s(sCB)}, 3
            """)
            for t in range(3):
                if t > 0:
                    p(f"s_cmp_ge_u32 {s(sXB)}, {28 - t}")
                    p(f"s_cbranch_scc1 L_end_{name}")
                p(f"s_cmp_lt_u32 {s(sXB)}, {14 - t}")
                p(f"s_cselect_b32 {s(sT1)}, {fl(28**-0.5 * LOG2E)}, 1.0")
                p(f"v_mul_f32 {v(vM)}, {s(sT1)}, {v(vR)}")
                acc = vACC + 16*t
                for j in range(8): p(f"v_pk_mul_f32 {v(acc+2*j, 2)}, {v(acc+2*j, 2)}, {v(vM, 2)} op_sel_hi:[1,0]")
                for j in range(8): p(f"v_cvt_pk_bf16_f32 {v(acc+j)}, {v(acc+2*j)}, {v(acc+2*j+1)}")
                for m in range(2):
                    p(f"buffer_store_dwordx4 {v(acc+4*m, 4)}, {v(vSA)}, {srd(sWS)}, {s(sT0)} offen offset:{m*1024}")
                p(f"s_add_u32 {s(sT0)}, {s(sT0)}, 2048")
            p(f"s_branch L_end_{name}")
        else:
            p(f"""
            v_lshrrev_b32 {v(vSA)}, 5, v1
            v_mul_u32_u24 {v(vSA)}, {448*16 - 512}, {v(vSA)}
            v_lshl_add_u32 {v(vSA)}, v1, 4, {v(vSA)}
            s_mul_i32 {s(sT0)}, {s(sRT)}, {4*448*16}
            s_mul_i32 {s(sT1)}, {s(sCB)}, {3*512}
            s_add_u32 {s(sT0)}, {s(sT0)}, {s(sT1)}
            s_add_u32 {s(sT0)}, {s(sT0)}, {WS_V - 10*3*512}
            s_add_u32 {s(sT1)}, {s(sT0)}, {2*448*16}
            """)
            for t in range(3):
                if t == 2:
                    p(f"s_cmp_ge_u32 {s(sCB)}, 14")
                    p(f"s_cbranch_scc1 L_end_{name}")
                acc = vACC + 16*t
                for j in range(8): p(f"v_pk_mul_f32 {v(acc+2*j, 2)}, {v(acc+2*j, 2)}, {v(vRR+2*j, 2)}")
                for j in range(8): p(f"v_cvt_pk_bf16_f32 {v(acc+j)}, {v(acc+2*j)}, {v(acc+2*j+1)}")
                p(f"buffer_store_dwordx4 {v(acc, 4)}, {v(vSA)}, {srd(sWS)}, {s(sT0)} offen offset:{t*512}")
                p(f"buffer_store_dwordx4 {v(acc+4, 4)}, {v(vSA)}, {srd(sWS)}, {s(sT1)} offen offset:{t*512}")
            p(f"s_branch L_end_{name}")
    p.label("L_k1_aux"); p.restore(st_aux)
    vA, vD, vSM, vB = 3, 16, 4, 128
    vT1, vT2, vT3 = 12, 13, 14
    p(f"""
    s_lshl_b32 {s(sT0)}, {s(sR)}, 2
    s_add_u32 {s(sT0)}, {s(sT0)}, {s(sWAVE)}
    s_lshl_b32 {s(sT0)}, {s(sT0)}, 13
    s_add_u32 {s(sT0)}, {s(sT0)}, {WS_FL}
    v_lshlrev_b32 {v(vT1)}, 7, v1
    v_mov_b32 {v(vT2)}, 0
    s_waitcnt lgkmcnt(0)
    buffer_store_dword {v(vT2)}, {v(vT1)}, {srd(sWS)}, {s(sT0)} offen
    s_cmp_ge_u32 {s(sR)}, 14
    s_cbranch_scc1 L_end_{name}
    """)
    p(f"""
    v_lshrrev_b32 {v(vT1)}, 3, v1
    v_mul_u32_u24 {v(vA)}, 3584, {v(vT1)}
    v_and_b32 {v(vT1)}, 7, v1
    v_lshl_add_u32 {v(vA)}, {v(vT1)}, 4, {v(vA)}
    s_lshr_b32 {s(sT1)}, {s(sWAVE)}, 1
    s_lshl_b32 {s(sT0)}, {s(sR)}, 1
    s_add_u32 {s(sXB)}, {s(sT0)}, {s(sT1)}
    s_lshl_b32 {s(sT0)}, {s(sXB)}, 7
    s_and_b32 {s(sT1)}, {s(sWAVE)}, 1
    s_mul_i32 {s(sT1)}, {s(sT1)}, {224*3584}
    s_add_u32 {s(sT0)}, {s(sT0)}, {s(sT1)}
    """)
    for i in range(28):
        p(f"buffer_load_dwordx4 {v(vD + 4*i, 4)}, {v(vA)}, {srd(sW1)}, {s(sT0)} offen")
        p(f"s_add_u32 {s(sT0)}, {s(sT0)}, {8*3584}")
    p(f"""
    v_and_b32 {v(vT1)}, 19, v1
    v_bfe_u32 {v(vT2)}, v1, 2, 1
    v_lshl_add_u32 {v(vT1)}, {v(vT2)}, 3, {v(vT1)}
    v_bfe_u32 {v(vT2)}, v1, 3, 1
    v_lshl_add_u32 {v(vT3)}, {v(vT2)}, 2, {v(vT1)}
    v_lshlrev_b32 {v(vT1)}, 1, {v(vT3)}
    s_lshl_b32 {s(sT2)}, {s(sR)}, 2
    s_add_u32 {s(sT2)}, {s(sT2)}, {s(sWAVE)}
    s_lshl_b32 {s(sT0)}, {s(sT2)}, 6
    buffer_load_ushort {v(vB+1)}, {v(vT1)}, {srd(sB1)}, {s(sT0)} offen
    """)
    for j in range(8): p(f"v_mov_b32 {v(vSM+j)}, 0")
    for i in range(28):
        for j in range(4):
            r = vD + 4*i + j
            p(f"v_lshlrev_b32 {v(vT1)}, 16, {v(r)}\nv_add_f32 {v(vSM+2*j)}, {v(vSM+2*j)}, {v(vT1)}")
            p(f"v_and_b32 {v(vT2)}, 0xffff0000, {v(r)}\nv_add_f32 {v(vSM+2*j+1)}, {v(vSM+2*j+1)}, {v(vT2)}")
    p(f"""
    s_lshl_b32 {s(sT0)}, {s(sWAVE)}, 11
    v_lshl_add_u32 {v(vT1)}, v1, 5, {s(sT0)}
    ds_write_b128 {v(vT1)}, {v(vSM, 4)}
    ds_write_b128 {v(vT1)}, {v(vSM+4, 4)} offset:16
    s_waitcnt lgkmcnt(0)
    s_barrier
    """)
    p(f"""
    s_lshr_b32 {s(sT0)}, {s(sWAVE)}, 1
    s_lshl_b32 {s(sT0)}, {s(sT0)}, 12
    s_and_b32 {s(sT1)}, {s(sWAVE)}, 1
    s_lshl_b32 {s(sT1)}, {s(sT1)}, 7
    s_add_u32 {s(sT0)}, {s(sT0)}, {s(sT1)}
    v_lshl_add_u32 {v(vT1)}, {v(vT3)}, 2, {s(sT0)}
    v_lshrrev_b32 {v(vT2)}, 5, v1
    v_lshl_add_u32 {v(vT1)}, {v(vT2)}, 11, {v(vT1)}
    """)
    for k in range(8): p(f"ds_read_b32 {v(vD+k)}, {v(vT1)} offset:{k*256}")
    for k in range(1, 8): p(f"v_add_f32 {v(vD)}, {v(vD)}, {v(vD+k)}")
    half_sum(p, vD, vT1)
    split_hi_lo_pack(p, vB, vD, vT1)
    p(f"""
    v_mov_b32 {v(vB+2)}, 0
    v_mov_b32 {v(vB+3)}, 0
    v_lshlrev_b32 {v(vT1)}, 4, v1
    s_lshl_b32 {s(sT0)}, {s(sT2)}, 10
    s_add_u32 {s(sT0)}, {s(sT0)}, {WS_AU}
    buffer_store_dwordx4 {v(vB, 4)}, {v(vT1)}, {srd(sWS)}, {s(sT0)} offen
    """)
    epilogue(p, name, 0)
    return name, 204, 0, 163840

def poll(p, vP, vPA, sOff, sCnt, base):
    L = p.newlabel(base); Lx = L + "_x"
    p(f"s_mov_b32 {s(sCnt)}, 0x40000")
    p.label(L)
    p(f"buffer_load_dword {v(vP)}, {v(vPA)}, {srd(sWS)}, {s(sOff)} offen sc1")
    p(f"s_sub_u32 {s(sCnt)}, {s(sCnt)}, 1")
    p(f"s_cbranch_scc1 {Lx}")
    p(f"s_waitcnt vmcnt(0)")
    p(f"v_cmp_ne_u32 vcc, 1, {v(vP)}")
    p(f"s_cbranch_vccnz {L}")
    p.label(Lx)
    p(f"s_waitcnt vmcnt(0)")

def setflag(p, vOne, vZ, sOff):
    p(f"""
    s_mov_b64 exec, 1
    buffer_store_dword {v(vOne)}, {v(vZ)}, {srd(sWS)}, {s(sOff)} offen sc1
    s_mov_b64 exec, -1
    """)

def K2(p):
    name = "k2_kernel"
    prologue(p, name, [sWS, sX, sWO, sW1, sW2, sB2, sOUT])
    sH, sR, sT0, sT1, sT2, sT3 = 46, 47, 48, 49, 50, 51
    sG, sM = sH, sR
    sKB, sVB, sCNT, sEX, sDS, sDL = 52, 53, 54, 56, 58, 59
    sC7, sRT0, sRT3, sCT, sKH = 60, 61, 62, 63, 55
    LH0, LH1, LA = 0, 57344, 114688
    LWO, LEX = 105472, 89088
    p(f"""
    s_and_b32 {s(sT0)}, s2, 7
    s_lshl_b32 {s(sT0)}, {s(sT0)}, 1
    s_bfe_u32 {s(sT1)}, s2, 0x10003
    s_add_u32 {s(sH)}, {s(sT0)}, {s(sT1)}
    s_lshr_b32 {s(sR)}, s2, 4
    """)
    vL16, vT1, vT2, vT3, vT4 = 2, 3, 4, 5, 6
    vVA, vVA2, vDW1, vD9 = 7, 8, 9, 10
    vZ = 11
    vQF, vSB, vPB, vRD = 12, 44, 76, 92
    vXV, vHV, vBV, vAU = 140, 148, 156, 164
    vOne, vXA = 180, 181
    aO, aKV = 0, 64
    NB = 4
    p(f"""
    v_lshlrev_b32 {v(vL16)}, 4, v1
    v_lshrrev_b32 {v(vT1)}, 5, v1
    v_mul_u32_u24 {v(vVA)}, {448*16 - 512}, {v(vT1)}
    v_add_u32 {v(vVA)}, {v(vVA)}, {v(vL16)}
    v_add_u32 {v(vVA2)}, {2*448*16}, {v(vVA)}
    s_mul_i32 {s(sT0)}, {s(sH)}, 7
    s_lshr_b32 {s(sT0)}, {s(sT0)}, 1
    s_lshl_b32 {s(sT0)}, {s(sT0)}, 9
    s_mul_i32 {s(sT1)}, {s(sR)}, {4*112*512}
    s_add_u32 {s(sT1)}, {s(sT1)}, {s(sT0)}
    s_mul_i32 {s(sKB)}, {s(sWAVE)}, {16*112*512}
    s_add_u32 {s(sKB)}, {s(sKB)}, {s(sT0)}
    s_add_u32 {s(sKB)}, {s(sKB)}, {WS_QK + 56*512}
    s_mul_i32 {s(sVB)}, {s(sWAVE)}, {16*4*448*16}
    s_mul_i32 {s(sT0)}, {s(sH)}, 448
    s_add_u32 {s(sVB)}, {s(sVB)}, {s(sT0)}
    s_add_u32 {s(sVB)}, {s(sVB)}, {WS_V}
    s_mov_b32 {s(sEX)}, 0x0fffffff
    s_mov_b32 {s(sEX+1)}, 0x0fffffff
    v_mov_b32 {v(vT1)}, {s(sONES)}
    """)
    for j in range(8): p(f"v_accvgpr_write_b32 {a(aKV + 8 + j)}, {v(vT1)}")
    p("s_waitcnt lgkmcnt(0)")
    def loadkv(b):
        p(f"buffer_load_dwordx4 {a(aKV + 16*b, 4)}, {v(vL16)}, {srd(sWS)}, {s(sKB)} offen")
        p(f"buffer_load_dwordx4 {a(aKV + 16*b + 4, 4)}, {v(vL16)}, {srd(sWS)}, {s(sKB)} offen offset:1024")
        p(f"s_mov_b64 exec, {s(sEX,2)}")
        p(f"buffer_load_dwordx4 {a(aKV + 16*b + 8, 4)}, {v(vVA)}, {srd(sWS)}, {s(sVB)} offen")
        p(f"buffer_load_dwordx4 {a(aKV + 16*b + 12, 4)}, {v(vVA2)}, {srd(sWS)}, {s(sVB)} offen")
        p(f"s_mov_b64 exec, -1")
        p(f"s_add_u32 {s(sKB)}, {s(sKB)}, {112*512}")
        p(f"s_add_u32 {s(sVB)}, {s(sVB)}, {4*448*16}")
    for t in range(4):
        for sx in range(2):
            p(f"buffer_load_dwordx4 {v(vQF + 8*t + 4*sx, 4)}, {v(vL16)}, {srd(sWS)}, {s(sT1)} offen offset:{sx*1024}")
        p(f"s_add_u32 {s(sT1)}, {s(sT1)}, {112*512}")
        if t == 0: loadkv(0)
    for b in range(1, NB):
        for j in range(8): p(f"v_accvgpr_write_b32 {a(aKV + 16*b + 8 + j)}, {v(vT1)}")
    p(f"""
    s_cmp_ge_u32 {s(sM)}, 7
    s_cselect_b32 {s(sT1)}, 2, 0
    s_cselect_b32 {s(sT0)}, 7, 0
    s_sub_u32 {s(sC7)}, {s(sM)}, {s(sT0)}
    s_lshl_b32 {s(sRT0)}, {s(sG)}, 2
    s_add_u32 {s(sRT0)}, {s(sRT0)}, {s(sT1)}
    s_lshr_b32 {s(sT0)}, {s(sWAVE)}, 1
    s_add_u32 {s(sRT3)}, {s(sRT0)}, {s(sT0)}
    s_and_b32 {s(sKH)}, {s(sWAVE)}, 1
    s_lshl_b32 {s(sCT)}, {s(sC7)}, 1
    s_add_u32 {s(sCT)}, {s(sCT)}, {s(sKH)}
    v_and_b32 {v(vT1)}, 31, v1
    v_mul_u32_u24 {v(vXA)}, 896, {v(vT1)}
    v_lshrrev_b32 {v(vT1)}, 5, v1
    v_lshlrev_b32 {v(vT1)}, 4, {v(vT1)}
    v_add_u32 {v(vXA)}, {v(vT1)}, {v(vXA)}
    s_mul_i32 {s(sT0)}, {s(sRT3)}, {32*896}
    s_lshl_b32 {s(sT1)}, {s(sCT)}, 6
    s_add_u32 {s(sT0)}, {s(sT0)}, {s(sT1)}
    v_add_u32 {v(vXA)}, {s(sT0)}, {v(vXA)}
    buffer_load_dwordx4 {v(vXV, 4)}, {v(vXA)}, {srd(sX)}, 0 offen
    buffer_load_dwordx4 {v(vXV+4, 4)}, {v(vXA)}, {srd(sX)}, 0 offen offset:32
    buffer_load_dwordx4 {v(vBV, 4)}, {v(vT1)}, {srd(sB2)}, {s(sT1)} offen
    buffer_load_dwordx4 {v(vBV+4, 4)}, {v(vT1)}, {srd(sB2)}, {s(sT1)} offen offset:32
    s_lshl_b32 {s(sT0)}, {s(sM)}, 11
    s_add_u32 {s(sT0)}, {s(sT0)}, {WS_AU}
    s_add_u32 {s(sT1)}, {s(sT0)}, {28*1024}
    buffer_load_dwordx4 {v(vAU, 4)}, {v(vL16)}, {srd(sWS)}, {s(sT0)} offen
    buffer_load_dwordx4 {v(vAU+4, 4)}, {v(vL16)}, {srd(sWS)}, {s(sT0)} offen offset:1024
    buffer_load_dwordx4 {v(vAU+8, 4)}, {v(vL16)}, {srd(sWS)}, {s(sT1)} offen
    buffer_load_dwordx4 {v(vAU+12, 4)}, {v(vL16)}, {srd(sWS)}, {s(sT1)} offen offset:1024
    """)
    dma128_addr(p, vDW1, 3584, vT1, vT2)
    dma128_addr(p, vD9, 896, vT1, vT2)
    p(f"""
    s_min_u32 {s(sT2)}, {s(sWAVE)}, 2
    s_mul_i32 {s(sT0)}, {s(sT2)}, {24*896}
    s_lshl_b32 {s(sT1)}, {s(sC7)}, 7
    s_add_u32 {s(sT0)}, {s(sT0)}, {s(sT1)}
    s_mul_i32 {s(sT2)}, {s(sT2)}, 3072
    """)
    for i in range(3):
        p(f"s_add_u32 m0, {s(sT2)}, {LWO + i*1024}")
        p(f"buffer_load_dwordx4 {v(vD9)}, {srd(sWO)}, {s(sT0)} offen lds")
        p(f"s_add_u32 {s(sT0)}, {s(sT0)}, {8*896}")
    for b in range(1, NB - 1): loadkv(b)
    for j in range(64): p(f"v_accvgpr_write_b32 {a(aO + j)}, 0")
    for j in range(8): p(f"v_mov_b32 {v(vPB + 8 + j)}, 0")
    p(f"""
    v_mov_b32 {v(vZ)}, 0
    v_mov_b32 {v(vOne)}, 1
    s_mul_i32 {s(sDS)}, {s(sWAVE)}, {8*3584}
    s_lshl_b32 {s(sT0)}, {s(sM)}, 7
    s_add_u32 {s(sDS)}, {s(sDS)}, {s(sT0)}
    s_lshl_b32 {s(sDL)}, {s(sWAVE)}, 10
    s_and_b32 {s(sT0)}, {s(sH)}, 1
    s_cmp_eq_u32 {s(sT0)}, 1
    s_cselect_b32 {s(sT0)}, 0, -1
    s_cselect_b32 {s(sT1)}, -1, 0
    v_cmp_lt_u32 vcc, 31, v1
    v_mov_b32 {v(vT1)}, {s(sT0)}
    v_mov_b32 {v(vT2)}, {s(sT1)}
    v_cndmask_b32 {v(vT3)}, {v(vT1)}, -1, vcc
    v_cndmask_b32 {v(vT4)}, -1, {v(vT2)}, vcc
    """)
    stamp(p, 1)
    for t in range(4):
        q = vQF + 8*t
        for j in (0, 1): p(f"v_and_b32 {v(q+j)}, {v(vT3)}, {v(q+j)}")
        for j in (6, 7): p(f"v_and_b32 {v(q+j)}, {v(vT4)}, {v(q+j)}")
    def smf(n, half, kb):
        t = n % 4
        mfma(p, v(vSB + 16*(n % 2), 16), a(aKV + 16*kb + 4*half, 4), v(vQF + 8*t + 4*half, 4), "0" if half == 0 else None)
    def pvmf(n, half, kb):
        t = n % 4
        mfma(p, a(aO + 16*t, 16), a(aKV + 16*kb + 8 + 4*half, 4), v(vPB + 8*(n % 2) + 4*half, 4))
    def expcvt(n, qd):
        S = vSB + 16*(n % 2) + 4*qd
        for j in range(4): p(f"v_exp_f32 {v(S+j)}, {v(S+j)}")
        for j in range(2): p(f"v_cvt_pk_bf16_f32 {v(vPB + 8*(n % 2) + 2*qd + j)}, {v(S+2*j)}, {v(S+2*j+1)}")
    smf(0, 0, 0); smf(0, 1, 0)
    stamp(p, 2)
    p.auto = False
    p(f"s_mov_b32 {s(sCNT)}, 3\ns_waitcnt lgkmcnt(0)")
    def body(last):
        for n in range(16):
            step = n // 4
            kb_next = ((n + 1) // 4) % NB
            kb_prev = ((n - 1) // 4) % NB
            if n % 4 == 3 and not (last and n == 15):
                if not last: p(f"s_waitcnt vmcnt(8)")
                else: p(f"s_waitcnt vmcnt({[8, 4, 0][step]})")
            if not (last and n == 15): smf(n + 1, 0, kb_next)
            expcvt(n, 0)
            if not (last and n == 15): smf(n + 1, 1, kb_next)
            expcvt(n, 1)
            pvmf(n - 1, 0, kb_prev)
            expcvt(n, 2)
            pvmf(n - 1, 1, kb_prev)
            if n % 4 == 0 and (not last or n == 0): loadkv((step + NB - 1) % NB)
            if not last and n % 4 == 3 and False: pass
            if not last and n in (3, 7, 11, 15, 2, 6, 10):
                p(f"s_mov_b32 m0, {s(sDL)}")
                p(f"s_add_u32 {s(sDL)}, {s(sDL)}, 4096")
                p(f"buffer_load_dwordx4 {v(vDW1)}, {srd(sW1)}, {s(sDS)} offen lds")
                p(f"s_add_u32 {s(sDS)}, {s(sDS)}, {32*3584}")
            expcvt(n, 3)
    p.raw(".p2align 6")
    p.label("L_att_loop")
    body(False)
    p(f"""
    s_cmp_eq_u32 {s(sCNT)}, 2
    s_cselect_b32 {s(sT0)}, {448*3584 - 1792}, 0
    s_sub_u32 {s(sDS)}, {s(sDS)}, {s(sT0)}
    s_sub_u32 {s(sCNT)}, {s(sCNT)}, 1
    s_cmp_lg_u32 {s(sCNT)}, 0
    s_cbranch_scc1 L_att_loop
    """)
    body(True)
    p.reset(); p.auto = True
    stamp(p, 3)
    pvmf(15, 0, 3); pvmf(15, 1, 3)
    for t in range(4):
        p(f"""
        s_sub_u32 {s(sT0)}, {s(sWAVE)}, {t + 1}
        s_and_b32 {s(sT0)}, {s(sT0)}, 3
        s_cmp_eq_u32 {s(sT0)}, 3
        s_cbranch_scc1 L_red_own{t}
        s_lshl_b32 {s(sT0)}, {s(sT0)}, 12
        s_add_u32 {s(sT0)}, {s(sT0)}, {LA + t*12288}
        v_add_u32 {v(vT1)}, {s(sT0)}, {v(vL16)}
        """)
        for q in range(4): p(f"ds_write_b128 {v(vT1)}, {a(aO + 16*t + 4*q, 4)} offset:{q*1024}")
        p(f"s_branch L_red_nx{t}")
        p.label(f"L_red_own{t}")
        for j in range(16): p(f"v_accvgpr_read_b32 {v(vSB + j)}, {a(aO + 16*t + j)}")
        p.label(f"L_red_nx{t}")
    p(f"""
    s_mul_i32 {s(sT2)}, {s(sWAVE)}, 12288
    s_add_u32 {s(sT2)}, {s(sT2)}, {LA}
    v_add_u32 {v(vT2)}, {s(sT2)}, {v(vL16)}
    s_waitcnt vmcnt(0) lgkmcnt(0)
    s_barrier
    """)
    stamp(p, 4)
    vO = vSB
    for w in range(3):
        for q in range(4): p(f"ds_read_b128 {v(vRD + 16*w + 4*q, 4)}, {v(vT2)} offset:{w*4096 + q*1024}")
    for w in range(3):
        for j in range(8): p(f"v_pk_add_f32 {v(vO+2*j, 2)}, {v(vO+2*j, 2)}, {v(vRD + 16*w + 2*j, 2)}")
    p(f"""
    v_mov_b32 {v(vT1)}, {v(vO+12)}
    v_mov_b32 {v(vT2)}, {v(vO+12)}
    v_permlane32_swap_b32 {v(vT1)}, {v(vT2)}
    v_rcp_f32 {v(vT2)}, {v(vT2)}
    v_cmp_lt_u32 vcc, 31, v1
    s_lshl_b32 {s(sT0)}, {s(sR)}, 2
    s_add_u32 {s(sT0)}, {s(sT0)}, {s(sWAVE)}
    s_lshl_b32 {s(sT0)}, {s(sT0)}, 4
    s_add_u32 {s(sT0)}, {s(sT0)}, {s(sH)}
    s_lshl_b32 {s(sT1)}, {s(sT0)}, 7
    s_add_u32 {s(sT1)}, {s(sT1)}, {FB}
    s_lshl_b32 {s(sT0)}, {s(sT0)}, 11
    s_add_u32 {s(sT0)}, {s(sT0)}, {WS_O}
    """)
    for j in range(8): p(f"v_pk_mul_f32 {v(vO+2*j, 2)}, {v(vO+2*j, 2)}, {v(vT2, 2)} op_sel_hi:[1,0]")
    for j in range(8): p(f"v_cvt_pk_bf16_f32 {v(vO+j)}, {v(vO+2*j)}, {v(vO+2*j+1)}")
    for j in (6, 7): p(f"v_cndmask_b32 {v(vO+j)}, {v(vO+j)}, 0, vcc")
    p(f"""
    buffer_store_dwordx4 {v(vO, 4)}, {v(vL16)}, {srd(sWS)}, {s(sT0)} offen sc1
    buffer_store_dwordx4 {v(vO+4, 4)}, {v(vL16)}, {srd(sWS)}, {s(sT0)} offen offset:1024 sc1
    s_waitcnt vmcnt(0)
    """)
    setflag(p, vOne, vZ, sT1)
    stamp(p, 5)
    p(f"s_cmp_ge_u32 {s(sM)}, 14\ns_cbranch_scc1 L_end_{name}")
    p(f"""
    s_mul_i32 {s(sT0)}, {s(sWAVE)}, {96*896}
    s_lshl_b32 {s(sT1)}, {s(sC7)}, 7
    s_add_u32 {s(sT0)}, {s(sT0)}, {s(sT1)}
    s_add_u32 {s(sT0)}, {s(sT0)}, {72*896}
    """)
    for i in range(12):
        p(f"s_add_u32 m0, {s(sT2)}, {i*1024}")
        p(f"buffer_load_dwordx4 {v(vD9)}, {srd(sWO)}, {s(sT0)} offen lds")
        p(f"s_add_u32 {s(sT0)}, {s(sT0)}, {8*896}")
    vA0, vA1, vPA, vP = 12, 13, 14, 15
    vWF, vACC = 16, 44
    tr_addr(p, vA0, 128, swap=True, perm_rows=True, t1=vT1, t2=vT2, xor128=True)
    p(f"""
    s_mul_i32 {s(sT0)}, {s(sKH)}, {8*28*128}
    s_add_u32 {s(sT0)}, {s(sT0)}, {LWO}
    v_add_u32 {v(vA0)}, {s(sT0)}, {v(vA0)}
    s_lshl_b32 {s(sT0)}, {s(sKH)}, 6
    v_xor_b32 {v(vA0)}, {s(sT0)}, {v(vA0)}
    v_xor_b32 {v(vA1)}, 64, {v(vA0)}
    v_and_b32 {v(vPA)}, 7, v1
    v_lshlrev_b32 {v(vPA)}, 7, {v(vPA)}
    s_lshl_b32 {s(sT0)}, {s(sRT3)}, 11
    s_lshl_b32 {s(sT1)}, {s(sKH)}, 10
    s_add_u32 {s(sT0)}, {s(sT0)}, {s(sT1)}
    s_add_u32 {s(sT0)}, {s(sT0)}, {FB}
    """)
    for j in range(8):
        p(f"v_lshlrev_b32 {v(vACC+2*j)}, 16, {v(vXV+j)}")
        p(f"v_and_b32 {v(vACC+2*j+1)}, 0xffff0000, {v(vXV+j)}")
    p("s_waitcnt vmcnt(0)\ns_barrier")
    def reads3(f):
        hd, sx = f // 2, f % 2
        base = (28*hd + 16*sx) * 128
        b = f % 3
        for ct, va in ((0, vA0), (1, vA1)):
            p(f"ds_read_b64_tr_b16 {v(vWF + 8*b + 4*ct, 2)}, {v(va)} offset:{base}")
            p(f"ds_read_b64_tr_b16 {v(vWF + 8*b + 4*ct + 2, 2)}, {v(va)} offset:{base + 8*128}")
    reads3(0); reads3(1)
    poll(p, vP, vPA, sT0, sCNT, "pollB")
    stamp(p, 6)
    p(f"""
    s_lshl_b32 {s(sT0)}, {s(sRT3)}, 15
    s_lshl_b32 {s(sT1)}, {s(sKH)}, 14
    s_add_u32 {s(sT0)}, {s(sT0)}, {s(sT1)}
    s_add_u32 {s(sT0)}, {s(sT0)}, {WS_O}
    """)
    aOF = 0
    for f in range(16):
        if f % 4 == 0 and f: p(f"s_add_u32 {s(sT0)}, {s(sT0)}, 4096")
        p(f"buffer_load_dwordx4 {a(aOF + 4*f, 4)}, {v(vL16)}, {srd(sWS)}, {s(sT0)} offen offset:{(f % 4)*1024} sc1")
    p(f"""
    s_xor_b32 {s(sT0)}, {s(sWAVE)}, 1
    s_lshl_b32 {s(sT0)}, {s(sT0)}, 12
    s_add_u32 {s(sT0)}, {s(sT0)}, {LEX}
    v_add_u32 {v(vT1)}, {s(sT0)}, {v(vL16)}
    s_lshl_b32 {s(sT0)}, {s(sWAVE)}, 12
    s_add_u32 {s(sT0)}, {s(sT0)}, {LEX}
    v_add_u32 {v(vT2)}, {s(sT0)}, {v(vL16)}
    """)
    for f in range(16):
        if f + 2 < 16: reads3(f + 2)
        mfma(p, v(vACC + 16, 16), v(vWF + 8*(f % 3) + 4, 4), a(aOF + 4*f, 4), "0" if f == 0 else None)
        mfma(p, v(vACC, 16), v(vWF + 8*(f % 3), 4), a(aOF + 4*f, 4))
    stamp(p, 7)
    for q in range(4): p(f"ds_write_b128 {v(vT1)}, {v(vACC + 16 + 4*q, 4)} offset:{q*1024}")
    p("s_waitcnt lgkmcnt(0)\ns_barrier")
    for q in range(4): p(f"ds_read_b128 {v(vRD + 4*q, 4)}, {v(vT2)} offset:{q*1024}")
    p(f"""
    s_mul_i32 {s(sT0)}, {s(sRT3)}, {56*512}
    s_lshl_b32 {s(sT1)}, {s(sCT)}, 11
    s_add_u32 {s(sT0)}, {s(sT0)}, {s(sT1)}
    s_add_u32 {s(sT0)}, {s(sT0)}, {WS_H}
    s_mul_i32 {s(sT2)}, {s(sRT3)}, {14*256}
    s_lshl_b32 {s(sT1)}, {s(sCT)}, 8
    s_add_u32 {s(sT2)}, {s(sT2)}, {s(sT1)}
    s_add_u32 {s(sT2)}, {s(sT2)}, {WS_ST}
    s_lshl_b32 {s(sT3)}, {s(sRT3)}, 4
    s_add_u32 {s(sT3)}, {s(sT3)}, {s(sCT)}
    s_lshl_b32 {s(sT3)}, {s(sT3)}, 7
    s_add_u32 {s(sT3)}, {s(sT3)}, {FC}
    v_mov_b32 {v(vWF)}, 0
    v_mov_b32 {v(vWF+1)}, 0
    v_lshlrev_b32 {v(vT3)}, 3, v1
    """)
    for j in range(8): p(f"v_pk_add_f32 {v(vACC+2*j, 2)}, {v(vACC+2*j, 2)}, {v(vRD+2*j, 2)}")
    for j in range(8): p(f"v_cvt_pk_bf16_f32 {v(vHV+j)}, {v(vACC+2*j)}, {v(vACC+2*j+1)}")
    p(f"""
    buffer_store_dwordx4 {v(vHV, 4)}, {v(vL16)}, {srd(sWS)}, {s(sT0)} offen sc1
    buffer_store_dwordx4 {v(vHV+4, 4)}, {v(vL16)}, {srd(sWS)}, {s(sT0)} offen offset:1024 sc1
    """)
    for j in range(8):
        p(f"v_dot2c_f32_bf16 {v(vWF)}, {s(sONES)}, {v(vHV+j)}")
        p(f"v_dot2c_f32_bf16 {v(vWF+1)}, {v(vHV+j)}, {v(vHV+j)}")
    half_sum(p, vWF, vT1); half_sum(p, vWF + 1, vT1)
    p(f"""
    s_mov_b32 exec_hi, 0
    buffer_store_dwordx2 {v(vWF, 2)}, {v(vT3)}, {srd(sWS)}, {s(sT2)} offen sc1
    s_mov_b64 exec, -1
    s_waitcnt vmcnt(0)
    """)
    setflag(p, vOne, vZ, sT3)
    stamp(p, 8)
    p("s_barrier")
    for i in range(7):
        p(f"s_mov_b32 m0, {s(sDL)}")
        p(f"s_add_u32 {s(sDL)}, {s(sDL)}, 4096")
        p(f"buffer_load_dwordx4 {v(vDW1)}, {srd(sW1)}, {s(sDS)} offen lds", tag="w1d")
        p(f"s_add_u32 {s(sDS)}, {s(sDS)}, {32*3584}")
    sW2B, sLBa, sRT4 = sKB, sVB, sDS
    def w2slot(ks):
        if ks >= 20: ks -= 20
        if ks < 6: return LA, 12288, ks * 2048
        if ks < 13: return LH0, 14336, (ks - 6) * 2048
        return LH1, 14336, (ks - 13) * 2048
    sLA_, sLB_ = sVB, sEX
    p(f"""
    s_mul_i32 {s(sW2B)}, {s(sWAVE)}, {224*896}
    s_lshl_b32 {s(sT1)}, {s(sC7)}, 7
    s_add_u32 {s(sW2B)}, {s(sW2B)}, {s(sT1)}
    s_mul_i32 {s(sLA_)}, {s(sWAVE)}, 12288
    s_mul_i32 {s(sLB_)}, {s(sWAVE)}, 14336
    """)
    def w2dma(ks):
        base, wstride, off = w2slot(ks)
        sb = sLA_ if wstride == 12288 else sLB_
        row = 16*ks if ks < 14 else 896 + 16*(ks - 14)
        out = []
        for q in range(2):
            out.append(f"s_add_u32 m0, {s(sb)}, {base + off + q*1024}")
            out.append(f"s_add_u32 {s(sT3)}, {s(sW2B)}, {(row + 8*q)*896}")
            out.append((f"buffer_load_dwordx4 {v(vD9)}, {srd(sW2)}, {s(sT3)} offen lds", f"w2_{ks}"))
        return out
    def emit(lst):
        for o in lst:
            if isinstance(o, tuple): p(o[0], tag=o[1])
            else: p(o)
    for ks in range(6): emit(w2dma(ks))
    vA = 12
    vA, vPA, vP = 184, 188, 189
    vK1, vK2, vSD, vTK = 190, 192, 194, 196
    vSTt, vG = 200, 216
    vWF, vACC = 12, 48
    tr_addr(p, vA, 128, swap=True, perm_rows=False, t1=vT1, t2=vT2, xor128=True)
    p(f"""
    v_xor_b32 {v(vA+1)}, 64, {v(vA)}
    v_add_u32 {v(vA+2)}, {LH1}, {v(vA)}
    v_add_u32 {v(vA+3)}, {LH1}, {v(vA+1)}
    v_min_u32 {v(vPA)}, 13, v1
    v_lshlrev_b32 {v(vPA)}, 7, {v(vPA)}
    s_lshl_b32 {s(sRT4)}, {s(sG)}, 2
    s_add_u32 {s(sRT4)}, {s(sRT4)}, {s(sWAVE)}
    s_lshl_b32 {s(sT0)}, {s(sRT4)}, 11
    s_add_u32 {s(sT0)}, {s(sT0)}, {FC}
    """)
    p.wait_vm("w1d")
    p("s_barrier")
    def reads4(sx, cts):
        for k, ct in enumerate(cts):
            p(f"ds_read_b64_tr_b16 {v(vWF + 12*(sx % 3) + 4*k, 2)}, {v(vA+ct)} offset:{sx*2048}")
            p(f"ds_read_b64_tr_b16 {v(vWF + 12*(sx % 3) + 4*k + 2, 2)}, {v(vA+ct)} offset:{sx*2048 + 512}")
    reads4(0, (0, 1, 2)); reads4(1, (0, 1, 2))
    poll(p, vP, vPA, sT0, sCNT, "pollC")
    stamp(p, 9)
    aHF = 0
    p(f"s_mul_i32 {s(sT0)}, {s(sRT4)}, {56*512}\ns_add_u32 {s(sT0)}, {s(sT0)}, {WS_H}")
    for f in range(28):
        if f % 4 == 0 and f: p(f"s_add_u32 {s(sT0)}, {s(sT0)}, 4096")
        p(f"buffer_load_dwordx4 {a(aHF + 4*f, 4)}, {v(vL16)}, {srd(sWS)}, {s(sT0)} offen offset:{(f % 4)*1024} sc1")
        if f == 7:
            p(f"s_mul_i32 {s(sT1)}, {s(sRT4)}, {14*256}\ns_add_u32 {s(sT1)}, {s(sT1)}, {WS_ST}")
            for j in range(7): p(f"buffer_load_dwordx2 {v(vSTt + 2*j, 2)}, {v(vT3)}, {srd(sWS)}, {s(sT1)} offen offset:{j*512} sc1")
    q = Prog(); q.auto = False
    for j in range(1, 7):
        q(f"v_add_f32 {v(vSTt)}, {v(vSTt)}, {v(vSTt+2*j)}\nv_add_f32 {v(vSTt+1)}, {v(vSTt+1)}, {v(vSTt+2*j+1)}")
    half_sum(q, vSTt, vT1); half_sum(q, vSTt + 1, vT1)
    vM, vV = vSTt + 2, vSTt + 3
    k1 = -2.0 * math.sqrt(2.0 / math.pi) * LOG2E
    k2 = k1 * 0.044715
    q(f"""
    v_mul_f32 {v(vM)}, {fl(-1.0/448)}, {v(vSTt)}
    v_mul_f32 {v(vV)}, {fl(1.0/448)}, {v(vSTt+1)}
    v_fma_f32 {v(vV)}, -{v(vM)}, {v(vM)}, {v(vV)}
    v_max_f32 {v(vV)}, 0, {v(vV)}
    v_add_f32 {v(vT1)}, {fl(EPS)}, {v(vV)}
    v_fmamk_f32 {v(vT1)}, {v(vT1)}, {fl(EPS)}, {v(vV)}
    v_rsq_f32 {v(vT2)}, {v(vT1)}
    v_sqrt_f32 {v(vSD)}, {v(vT1)}
    v_mul_f32 {v(vK1)}, {fl(k1)}, {v(vT2)}
    v_mul_f32 {v(vK2)}, {v(vT2)}, {v(vT2)}
    v_mul_f32 {v(vK2)}, {v(vK2)}, {v(vT2)}
    v_mul_f32 {v(vK2)}, {fl(k2)}, {v(vK2)}
    v_cmp_lt_u32 vcc, 31, v1
    """)
    hi_or_lo(q, vTK, vM, vT2); hi_or_lo(q, vTK + 1, vSD, vT2)
    q(f"v_mov_b32 {v(vTK+2)}, 0\nv_mov_b32 {v(vTK+3)}, 0")
    q(f"""
    s_mul_i32 {s(sT0)}, {s(sRT4)}, {224*512}
    s_lshl_b32 {s(sT1)}, {s(sM)}, 12
    s_add_u32 {s(sT0)}, {s(sT0)}, {s(sT1)}
    s_add_u32 {s(sT0)}, {s(sT0)}, {WS_H1}
    s_add_u32 {s(sT1)}, {s(sT0)}, {112*512}
    s_lshl_b32 {s(sT2)}, {s(sRT4)}, 4
    s_add_u32 {s(sT2)}, {s(sT2)}, {s(sM)}
    s_lshl_b32 {s(sT2)}, {s(sT2)}, 7
    s_add_u32 {s(sT2)}, {s(sT2)}, {FD0}
    """)
    fin = [i.text for i in q.items]
    def gelu_ops(ct, pk):
        ops = []
        acc = vACC + 16*ct
        for j0 in range(0, 16, 8 if pk else 4):
            if pk:
                bc = "op_sel_hi:[1,0,0]"
                for j in range(0, 8, 2): ops.append(f"v_pk_mul_f32 {v(vG+j,2)}, {v(acc+j0+j,2)}, {v(acc+j0+j,2)}")
                for j in range(0, 8, 2): ops.append(f"v_pk_fma_f32 {v(vG+j,2)}, {v(vG+j,2)}, {v(vK2,2)}, {v(vK1,2)} {bc}")
                for j in range(0, 8, 2): ops.append(f"v_pk_mul_f32 {v(vG+j,2)}, {v(vG+j,2)}, {v(acc+j0+j,2)}")
                for j in range(8): ops.append(f"v_exp_f32 {v(vG+j)}, {v(vG+j)}")
                for j in range(0, 8, 2): ops.append(f"v_pk_fma_f32 {v(vG+j,2)}, {v(vG+j,2)}, {v(vSD,2)}, {v(vSD,2)} {bc}")
                for j in range(8): ops.append(f"v_rcp_f32 {v(vG+j)}, {v(vG+j)}")
                for j in range(0, 8, 2): ops.append(f"v_pk_mul_f32 {v(vG+j,2)}, {v(vG+j,2)}, {v(acc+j0+j,2)}")
                for j in range(4): ops.append(f"v_cvt_pk_bf16_f32 {v(acc + j0//2 + j)}, {v(vG+2*j)}, {v(vG+2*j+1)}")
            else:
                for j in range(4): ops.append(f"v_mul_f32 {v(vG+j)}, {v(acc+j0+j)}, {v(acc+j0+j)}")
                for j in range(4): ops.append(f"v_fma_f32 {v(vG+j)}, {v(vG+j)}, {v(vK2)}, {v(vK1)}")
                for j in range(4): ops.append(f"v_mul_f32 {v(vG+j)}, {v(vG+j)}, {v(acc+j0+j)}")
                for j in range(4): ops.append(f"v_exp_f32 {v(vG+j)}, {v(vG+j)}")
                for j in range(4): ops.append(f"v_fma_f32 {v(vG+j)}, {v(vG+j)}, {v(vSD)}, {v(vSD)}")
                for j in range(4): ops.append(f"v_rcp_f32 {v(vG+j)}, {v(vG+j)}")
                for j in range(4): ops.append(f"v_mul_f32 {v(vG+j)}, {v(vG+j)}, {v(acc+j0+j)}")
                for j in range(2): ops.append(f"v_cvt_pk_bf16_f32 {v(acc + j0//2 + j)}, {v(vG+2*j)}, {v(vG+2*j+1)}")
        so = sT0 if ct < 2 else sT1
        for m in range(2):
            ops.append((f"buffer_store_dwordx4 {v(acc+4*m, 4)}, {v(vL16)}, {srd(sWS)}, {s(so)} offen offset:{(ct % 2)*2048 + m*1024} sc1", f"h1_{ct}"))
        return ops
    for sx in range(28):
        if sx + 2 < 28: reads4(sx + 2, (0, 1, 2))
        else:
            pass
        for k in range(3):
            mfma(p, v(vACC + 16*k, 16), v(vWF + 12*(sx % 3) + 4*k, 4), a(aHF + 4*sx, 4), "0" if sx == 0 else None)
            if sx >= 10:
                for _ in range(2):
                    if fin: p(fin.pop(0))
    for o in fin: p(o)
    def reads4b(sx):
        r = vWF + 4*(sx % 6)
        p(f"ds_read_b64_tr_b16 {v(r, 2)}, {v(vA+3)} offset:{sx*2048}")
        p(f"ds_read_b64_tr_b16 {v(r + 2, 2)}, {v(vA+3)} offset:{sx*2048 + 512}")
    for k in range(3): mfma(p, v(vACC + 16*k, 16), v(vAU + 4*k, 4), v(vTK, 4))
    for sx in range(4): reads4b(sx)
    stamp(p, 10)
    p("s_barrier")
    fill = gelu_ops(0, False)
    dm = []
    for ks in range(6, 13): dm += w2dma(ks)
    mfma(p, v(vACC + 48, 16), v(vAU + 12, 4), v(vTK, 4), "0")
    for sx in range(28):
        if sx + 4 < 28: reads4b(sx + 4)
        mfma(p, v(vACC + 48, 16), v(vWF + 4*(sx % 6), 4), a(aHF + 4*sx, 4))
        n = (len(fill) + (27 - sx)) // (28 - sx)
        emit(fill[:n]); fill = fill[n:]
        if sx % 2 == 1: emit(dm[:3]); dm = dm[3:]
    p("s_barrier")
    stamp(p, 11)
    dm = []
    for ks in range(13, 20): dm += w2dma(ks)
    for ct in (1, 2, 3):
        g = gelu_ops(ct, True)
        for i, o in enumerate(g):
            emit([o])
            if i % 12 == 11 and dm: emit(dm[:3]); dm = dm[3:]
        if ct == 2:
            pass
    emit(dm)
    p.wait_vm("h1_1")
    setflag(p, vOne, vZ, sT2)
    p(f"s_add_u32 {s(sT2)}, {s(sT2)}, {FD1 - FD0}")
    vA5 = 184
    vPA, vP = 190, 191
    p(f"""
    v_add_u32 {v(vA5+4)}, {s(sLB_)}, {v(vA+2)}
    v_add_u32 {v(vA5+5)}, {s(sLB_)}, {v(vA+3)}
    v_add_u32 {v(vA5+2)}, {s(sLB_)}, {v(vA)}
    v_add_u32 {v(vA5+3)}, {s(sLB_)}, {v(vA+1)}
    s_add_u32 {s(sT0)}, {s(sLA_)}, {LA}
    v_add_u32 {v(vA5)}, {s(sT0)}, {v(vA)}
    v_add_u32 {v(vA5+1)}, {s(sT0)}, {v(vA+1)}
    v_and_b32 {v(vPA)}, 3, v1
    v_bfe_u32 {v(vT1)}, v1, 2, 1
    v_lshl_add_u32 {v(vPA)}, {v(vT1)}, 4, {v(vPA)}
    v_lshlrev_b32 {v(vPA)}, 7, {v(vPA)}
    s_mul_i32 {s(sT0)}, {s(sWAVE)}, 7
    s_lshr_b32 {s(sT0)}, {s(sT0)}, 1
    s_lshl_b32 {s(sT1)}, {s(sRT0)}, 4
    s_add_u32 {s(sT0)}, {s(sT0)}, {s(sT1)}
    s_lshl_b32 {s(sT0)}, {s(sT0)}, 7
    s_add_u32 {s(sT0)}, {s(sT0)}, {FD0}
    """)
    sHB = sDL
    p(f"""
    s_mul_i32 {s(sHB)}, {s(sRT0)}, {224*512}
    s_mul_i32 {s(sT1)}, {s(sWAVE)}, {28*512}
    s_add_u32 {s(sHB)}, {s(sHB)}, {s(sT1)}
    s_add_u32 {s(sHB)}, {s(sHB)}, {WS_H1}
    """)
    p.wait_vm("h1_3")
    setflag(p, vOne, vZ, sT2)
    stamp(p, 12)
    vWF, vACC = 12, 48
    def reads5(ks):
        p.wait_vm(f"w2_{ks}")
        base, wstride, off = w2slot(ks)
        reg = {LA: 0, LH0: 1, LH1: 2}[base]
        for ct in range(2):
            p(f"ds_read_b64_tr_b16 {v(vWF + 8*(ks % 3) + 4*ct, 2)}, {v(vA5 + 2*reg + ct)} offset:{off}")
            p(f"ds_read_b64_tr_b16 {v(vWF + 8*(ks % 3) + 4*ct + 2, 2)}, {v(vA5 + 2*reg + ct)} offset:{off + 512}")
    def h1loads(half):
        for k in range(14):
            for r in range(2):
                ks = 14*half + k
                if k % 4 == 0: p(f"s_add_u32 {s(sT1 if r == 0 else sT2)}, {s(sHB)}, {r*224*512 + half*112*512 + k*1024}")
                p(f"buffer_load_dwordx4 {a(8*ks + 4*r, 4)}, {v(vL16)}, {srd(sWS)}, {s(sT1 if r == 0 else sT2)} offen offset:{(k % 4)*1024} sc1")
    poll(p, vP, vPA, sT0, sCNT, "pollD0")
    h1loads(0)
    p(f"s_add_u32 {s(sT0)}, {s(sT0)}, {FD1 - FD0}")
    reads5(0); reads5(1)
    for ks in range(28):
        if ks == 4:
            poll(p, vP, vPA, sT0, sCNT, "pollD1")
            h1loads(1)
        if ks + 2 < 28: reads5(ks + 2)
        for r in range(2):
            for ct in range(2):
                mfma(p, v(vACC + 16*(2*r + ct), 16), v(vWF + 8*(ks % 3) + 4*ct, 4), a(8*ks + 4*r, 4), "0" if ks == 0 else None)
        if 4 <= ks < 12: emit(w2dma(ks + 16))
    p("s_barrier")
    vO = 16
    for t in range(4):
        p(f"""
        s_sub_u32 {s(sT0)}, {s(sWAVE)}, {t + 1}
        s_and_b32 {s(sT0)}, {s(sT0)}, 3
        s_cmp_eq_u32 {s(sT0)}, 3
        s_cbranch_scc1 L_r5_own{t}
        s_lshl_b32 {s(sT0)}, {s(sT0)}, 12
        s_add_u32 {s(sT0)}, {s(sT0)}, {t*12288}
        v_add_u32 {v(vT1)}, {s(sT0)}, {v(vL16)}
        """)
        for q_ in range(4): p(f"ds_write_b128 {v(vT1)}, {v(vACC + 16*t + 4*q_, 4)} offset:{q_*1024}")
        p(f"s_branch L_r5_nx{t}")
        p.label(f"L_r5_own{t}")
        for j in range(8): p(f"v_mov_b64 {v(vO + 2*j, 2)}, {v(vACC + 16*t + 2*j, 2)}")
        p.label(f"L_r5_nx{t}")
    p(f"v_add_u32 {v(vT2)}, {s(sLA_)}, {v(vL16)}")
    vE = 112
    for j in range(8):
        p(f"v_lshlrev_b32 {v(vE+2*j)}, 16, {v(vHV+j)}\nv_lshlrev_b32 {v(vT3+1)}, 16, {v(vBV+j)}")
        p(f"v_and_b32 {v(vE+2*j+1)}, 0xffff0000, {v(vHV+j)}\nv_and_b32 {v(vT3+2)}, 0xffff0000, {v(vBV+j)}")
        p(f"v_pk_add_f32 {v(vE+2*j, 2)}, {v(vE+2*j, 2)}, {v(vT3+1, 2)}")
    p("s_waitcnt lgkmcnt(0)\ns_barrier")
    vRD5 = 48
    for w in range(3):
        for q_ in range(4): p(f"ds_read_b128 {v(vRD5 + 16*w + 4*q_, 4)}, {v(vT2)} offset:{w*4096 + q_*1024}")
    for j in range(8): p(f"v_pk_add_f32 {v(vO+2*j, 2)}, {v(vO+2*j, 2)}, {v(vE+2*j, 2)}")
    for w in range(3):
        for j in range(8): p(f"v_pk_add_f32 {v(vO+2*j, 2)}, {v(vO+2*j, 2)}, {v(vRD5 + 16*w + 2*j, 2)}")
    for j in range(8): p(f"v_cvt_pk_bf16_f32 {v(vO+j)}, {v(vO+2*j)}, {v(vO+2*j+1)}")
    p(f"""
    buffer_store_dwordx4 {v(vO, 4)}, {v(vXA)}, {srd(sOUT)}, 0 offen
    buffer_store_dwordx4 {v(vO+4, 4)}, {v(vXA)}, {srd(sOUT)}, 0 offen offset:32
    """)
    epilogue(p, name, 1)
    return name, 224, 224, 163840

def main(outpath):
    p = Prog()
    ks = [f(p) for f in (K1, K2)]
    body = p.finalize()
    hdr = open(f"cdna_kernels/{NAME}.s.ref").read().split("; Override launch")[0]
    for name, nv, na, lds in ks:
        hdr += f"; @launch kernel={name} grid=(256,1,1) block=(256,1,1) lds={lds}\n"
    txt = hdr + '.amdgcn_target "amdgcn-amd-amdhsa--gfx950"\n.text\n' + body + '.section .rodata,"a"\n'
    for name, nv, na, lds in ks:
        ao = (nv + 3) // 4 * 4
        txt += f""".p2align 6
.amdhsa_kernel {name}
  .amdhsa_next_free_vgpr {ao + na}
  .amdhsa_next_free_sgpr 102
  .amdhsa_accum_offset {ao}
  .amdhsa_group_segment_fixed_size 0
  .amdhsa_kernarg_size 88
  .amdhsa_user_sgpr_count 2
  .amdhsa_user_sgpr_kernarg_segment_ptr 1
  .amdhsa_system_sgpr_workgroup_id_x 1
.end_amdhsa_kernel
"""
    open(outpath, "w").write(txt)
    print("nops inserted:", p.nops, "bytes:", len(txt))

if __name__ == "__main__":
    if len(sys.argv) > 2 and sys.argv[2] == "stamps": STAMPS = True
    main(sys.argv[1] if len(sys.argv) > 1 else f"cdna_kernels/{NAME}.s")
```

```python
import sys, math, struct
from asmlib import *
import gen2
from gen2 import *

def cost(t):
    if isinstance(t, list): return sum(cost(x) for x in t)
    if isinstance(t, tuple): t = t[0]
    op = t.split()[0]
    if op.startswith("ds_read_b128"): return 16
    if op.startswith("ds_write_b128"): return 52
    if op.startswith("ds_"): return 8
    if op.startswith("buffer_") or op.startswith("global_"): return 16
    if op in TRANS: return 8
    return 4

def emit(p, it):
    if isinstance(it, list):
        for x in it: emit(p, x)
    elif isinstance(it, tuple): p(it[0], tag=it[1])
    elif callable(it): it()
    else: p(it)

def weave(p, mfs, fill):
    tot = sum(cost(f) for f in fill if not callable(f)); n = len(mfs); acc = 0; k = 0
    for i, m in enumerate(mfs):
        p(m)
        while k < len(fill) and (i == n - 1 or callable(fill[k]) or acc + cost(fill[k]) / 2 <= tot * (i + 1) / n):
            emit(p, fill[k])
            if not callable(fill[k]): acc += cost(fill[k])
            k += 1

def MF(d, A, B, C=None): return f"v_mfma_f32_32x32x16_bf16 {d}, {A}, {B}, {C if C is not None else d}"
def take(lst, n):
    r = lst[:n]; del lst[:n]; return r
def collect(fn):
    q = Prog(); q.auto = False; fn(q); return [i.text for i in q.items]

CODE_BYTES = 65536

def K1(p):
    name = "k1_kernel"
    prologue(p, name, [sX, sWQ, sWO, sW1, sB1, sW2, sWS])
    sR, sCB, sT0, sT1, sXB, sWB, sM0, sRT, sKC, sT2, sT3, sPC, sGW, sWL = 46, 47, 48, 49, 50, 51, 52, 53, 54, 55, 56, 58, 60, 61
    vT1, vT2, vTC, vL128 = 14, 15, 200, 206
    p(f"""
    s_getpc_b64 {s(sPC,2)}
    s_lshr_b32 {s(sT0)}, s2, 3
    s_lshl_b32 {s(sT0)}, {s(sT0)}, 2
    s_add_u32 {s(sT0)}, {s(sT0)}, {s(sWAVE)}
    s_lshl_b32 {s(sT0)}, {s(sT0)}, 9
    v_lshlrev_b32 {v(vL128)}, 7, v1
    v_add_u32 {v(vT1)}, {s(sT0)}, {v(vL128)}
    v_min_u32 {v(vT1)}, CODE_LEN, {v(vT1)}
    s_mov_b64 exec, 0xf
    global_load_dword {v(vTC)}, {v(vT1)}, {s(sPC,2)}
    s_mov_b64 exec, -1
    s_lshl_b32 {s(sGW)}, s2, 2
    s_add_u32 {s(sGW)}, {s(sGW)}, {s(sWAVE)}
    s_and_b32 {s(sT0)}, s2, 3
    s_lshl_b32 {s(sT0)}, {s(sT0)}, 2
    s_bfe_u32 {s(sT1)}, s2, 0x20003
    s_add_u32 {s(sR)}, {s(sT0)}, {s(sT1)}
    s_bfe_u32 {s(sT0)}, s2, 0x10002
    s_lshl_b32 {s(sT0)}, {s(sT0)}, 3
    s_lshr_b32 {s(sT2)}, s2, 5
    s_add_u32 {s(sCB)}, {s(sT0)}, {s(sT2)}
    """)
    rm = OPT.get("rot", 1)
    if rm == 0:
        p(f"s_lshl_b32 {s(sT1)}, {s(sT1)}, 1\ns_add_u32 {s(sKC)}, {s(sT2)}, {s(sT1)}")
    elif rm == 3:
        p(f"s_mov_b32 {s(sKC)}, 0")
    else:
        p(f"""
        s_and_b32 {s(sKC)}, s2, 3
        s_lshl_b32 {s(sKC)}, {s(sKC)}, 1
        s_and_b32 {s(sT0)}, s2, 4
        s_add_u32 {s(sKC)}, {s(sKC)}, {s(sT0)}
        """)
        if rm == 2: p(f"s_xor_b32 {s(sT0)}, {s(sT1)}, {s(sT2)}\ns_and_b32 {s(sT0)}, {s(sT0)}, 1\ns_add_u32 {s(sKC)}, {s(sKC)}, {s(sT0)}")
        if rm == 4: p(f"s_add_u32 {s(sT0)}, {s(sT1)}, {s(sT2)}\ns_and_b32 {s(sT0)}, {s(sT0)}, 3\ns_add_u32 {s(sKC)}, {s(sKC)}, {s(sT0)}")
    p(f"""
    s_sub_u32 {s(sT0)}, {s(sKC)}, 7
    s_cmp_ge_u32 {s(sKC)}, 7
    s_cselect_b32 {s(sKC)}, {s(sT0)}, {s(sKC)}
    s_mul_i32 {s(sT0)}, {s(sGW)}, {14*128}
    s_mul_i32 {s(sT1)}, {s(sGW)}, {10*128}
    s_waitcnt lgkmcnt(0)
    """)
    stamp(p, 7)
    if OPT.get("touch", 0):
        p(f"""
        s_mov_b64 exec, 0x3fff
        buffer_load_dword {v(vTC+1)}, {v(vL128)}, {srd(sX)}, {s(sT0)} offen
        s_mov_b64 exec, 0x3ff
        buffer_load_dword {v(vTC+2)}, {v(vL128)}, {srd(sWQ)}, {s(sT1)} offen
        s_mov_b64 exec, -1
        """)
    p(f"s_cmp_ge_u32 {s(sCB)}, 15\ns_cbranch_scc1 L_k1_aux")
    st_aux = p.save()
    vXE, vXO, vW, vXR, vWR, vWC = 3, 4, 5, 8, 12, 13
    vWR2, vWC2 = 16, 207
    vS, vQ, vCS = 17, 18, 19
    vM, vR = 22, 23
    vXF, vWF, vCF, vACC, vXS = 24, 56, 92, 104, 152
    LW, LX, LSC = 0, 86016, 151552
    p(f"""
    v_lshrrev_b32 {v(vT1)}, 3, v1
    v_mul_u32_u24 {v(vT1)}, 896, {v(vT1)}
    v_lshrrev_b32 {v(vT2)}, 4, v1
    v_xor_b32 {v(vT2)}, {v(vT2)}, v1
    v_and_b32 {v(vT2)}, 7, {v(vT2)}
    v_lshl_add_u32 {v(vXE)}, {v(vT2)}, 4, {v(vT1)}
    v_xor_b32 {v(vT2)}, 4, {v(vT2)}
    v_lshl_add_u32 {v(vXO)}, {v(vT2)}, 4, {v(vT1)}
    v_add_u32 {v(vXO)}, {8*896 - 1024}, {v(vXO)}
    s_lshl_b32 {s(sRT)}, {s(sR)}, 2
    s_add_u32 {s(sRT)}, {s(sRT)}, {s(sWAVE)}
    s_mul_i32 {s(sXB)}, {s(sRT)}, {32*896}
    s_lshl_b32 {s(sM0)}, {s(sWAVE)}, 14
    s_add_u32 {s(sM0)}, {s(sM0)}, {LX}
    """)
    def ld_x(c):
        return [[f"s_lshl_b32 {s(sT0)}, {s(sKC)}, 7", f"s_add_u32 {s(sT0)}, {s(sT0)}, {s(sXB)}", f"s_add_u32 m0, {s(sM0)}, {(c % 4)*4096}",
                 f"s_add_u32 {s(sT2)}, {s(sT0)}, {16*896 - 2048}",
                 (f"buffer_load_dwordx4 {v(vXE)}, {srd(sX)}, {s(sT0)} offen lds", f"c{c}")],
                (f"buffer_load_dwordx4 {v(vXO)}, {srd(sX)}, {s(sT0)} offen offset:1024 lds", f"c{c}"),
                (f"buffer_load_dwordx4 {v(vXE)}, {srd(sX)}, {s(sT2)} offen offset:2048 lds", f"c{c}"),
                (f"buffer_load_dwordx4 {v(vXO)}, {srd(sX)}, {s(sT2)} offen offset:3072 lds", f"c{c}")]
    def ld_w(c):
        return [[f"s_mul_i32 {s(sT3)}, {s(sKC)}, {64*2688}", f"s_add_u32 m0, {s(sWL)}, {LW + c*12288}", f"s_add_u32 {s(sT3)}, {s(sT3)}, {s(sWB)}",
                 (f"buffer_load_dwordx4 {v(vW)}, {srd(sWQ)}, {s(sT3)} offen lds", f"c{c}")],
                (f"buffer_load_dwordx4 {v(vW+1)}, {srd(sWQ)}, {s(sT3)} offen offset:1024 lds", f"c{c}"),
                [(f"buffer_load_dwordx4 {v(vW+2)}, {srd(sWQ)}, {s(sT3)} offen offset:2048 lds", f"c{c}"),
                 f"s_add_u32 {s(sKC)}, {s(sKC)}, 1", f"s_cmp_eq_u32 {s(sKC)}, 7", f"s_cselect_b32 {s(sKC)}, 0, {s(sKC)}"]]
    emit(p, ld_x(0))
    for pt in range(3):
        p(f"""
        v_add_u32 {v(vT1)}, {64*pt}, v1
        v_mul_u32_u24 {v(vT2)}, 5462, {v(vT1)}
        v_lshrrev_b32 {v(vT2)}, 16, {v(vT2)}
        v_mul_u32_u24 {v(vW+pt)}, {2688 - 192}, {v(vT2)}
        v_lshl_add_u32 {v(vW+pt)}, v1, 4, {v(vW+pt)}
        """)
    p(f"""
    s_mul_i32 {s(sWB)}, {s(sCB)}, 192
    s_cmp_ge_u32 {s(sCB)}, 10
    s_cselect_b32 {s(sT0)}, 128, 0
    s_sub_u32 {s(sWB)}, {s(sWB)}, {s(sT0)}
    s_mul_i32 {s(sT0)}, {s(sWAVE)}, {16*2688}
    s_add_u32 {s(sWB)}, {s(sWB)}, {s(sT0)}
    s_mul_i32 {s(sWL)}, {s(sWAVE)}, 3072
    """)
    emit(p, ld_w(0))
    stamp(p, 8)
    p(f"""
    v_and_b32 {v(vT1)}, 31, v1
    v_lshlrev_b32 {v(vXR+3)}, 7, {v(vT1)}
    v_add_u32 {v(vXR+3)}, {s(sM0)}, {v(vXR+3)}
    v_bfe_u32 {v(vT1)}, v1, 1, 3
    v_lshrrev_b32 {v(vT2)}, 5, v1
    v_xor_b32 {v(vT1)}, {v(vT1)}, {v(vT2)}
    """)
    for sp in range(4):
        p(f"v_xor_b32 {v(vT2)}, {2*sp}, {v(vT1)}")
        p(f"v_lshl_add_u32 {v(vXR+sp)}, {v(vT2)}, 4, {v(vXR+3)}")
    for r in (vS, vQ, vCS, vCS+1, vCS+2): p(f"v_mov_b32 {v(r)}, 0")
    AHEAD = OPT.get("ahead", 2)
    for c in range(1, AHEAD): emit(p, ld_x(c)); emit(p, ld_w(c))
    stamp(p, 1)
    p(f"s_cmp_ge_u32 {s(sCB)}, 10")
    p(f"s_cbranch_scc1 L_k1_v")
    st = p.save()
    for isV in (0, 1):
        if isV:
            p.label("L_k1_v"); p.restore(st)
        tr_addr(p, vWR, 192, swap=not isV, perm_rows=False, t1=vT1, t2=vT2)
        p(f"v_add_u32 {v(vWC)}, {s(sWL)}, {v(vWR)}")
        p(f"v_add_u32 {v(vWR2)}, 49152, {v(vWR)}\nv_add_u32 {v(vWC2)}, 49152, {v(vWC)}")
        def gate(c):
            def g():
                p.wait_vm(f"c{c}"); p("s_barrier")
                if c in (3, 6): stamp(p, 3 if c == 3 else 4)
            return g
        def xreads(c):
            return [f"ds_read_b128 {v(vXF + 16*(c % 2) + 4*sp, 4)}, {v(vXR+sp)} offset:{(c % 4)*4096}" for sp in range(4)]
        def creads(c):
            base = (c % 4) * 12288; va = vWC if c < 4 else vWC2
            return [f"ds_read_b64_tr_b16 {v(vCF + 4*t + 2*h, 2)}, {v(va)} offset:{base + 64*t + 768*h}" for t in range(3) for h in range(2)]
        def wreads(sx):
            base = (sx % 16) * 3072; va = vWR if sx < 16 else vWR2
            return [f"ds_read_b64_tr_b16 {v(vWF + 12*(sx % 3) + 4*t + 2*h, 2)}, {v(va)} offset:{base + 64*t + 768*h}" for t in range(3) for h in range(2)]
        def burst(c):
            for j in range(16):
                r = vXF + 16*(c % 2) + j
                p(f"v_dot2c_f32_bf16 {v(vS)}, {s(sONES)}, {v(r)}")
                p(f"v_dot2c_f32_bf16 {v(vQ)}, {v(r)}, {v(r)}")
            for j in range(12): p(f"v_dot2c_f32_bf16 {v(vCS + j // 4)}, {s(sONES)}, {v(vCF + j)}")
        def mm(sx):
            c, sp = sx // 4, sx % 4
            xf = v(vXF + 16*(c % 2) + 4*sp, 4)
            out = []
            for t in range(3):
                wf = v(vWF + 12*(sx % 3) + 4*t, 4)
                A, B = (xf, wf) if isV else (wf, xf)
                out.append(MF(v(vACC + 16*t, 16), A, B, "0" if sx == 0 else None))
            return out
        vB2, vAU, vRR = vXF + 16, vXS + 16, vXS
        def finf(q):
            for t in range(3): half_sum(q, vCS + t, vT1)
            q(f"""
            v_and_b32 {v(vT1)}, 31, v1
            v_lshlrev_b32 {v(vT1)}, 4, {v(vT1)}
            v_add_u32 {v(vT1)}, {LSC}, {v(vT1)}
            s_lshl_b32 {s(sT0)}, {s(sWAVE)}, 2
            v_add_u32 {v(vT2)}, {s(sT0)}, {v(vT1)}
            """)
            for t in range(3): q(f"ds_write_b32 {v(vT2)}, {v(vCS+t)} offset:{t*512}")
            half_sum(q, vS, vT2); half_sum(q, vQ, vT2)
            q(f"""
            v_mul_f32 {v(vM)}, {fl(-1.0/448)}, {v(vS)}
            v_mul_f32 {v(vQ)}, {fl(1.0/448)}, {v(vQ)}
            v_fma_f32 {v(vQ)}, -{v(vM)}, {v(vM)}, {v(vQ)}
            v_max_f32 {v(vQ)}, 0, {v(vQ)}
            v_add_f32 {v(vQ)}, {fl(EPS)}, {v(vQ)}
            v_rsq_f32 {v(vR)}, {v(vQ)}
            v_cmp_lt_u32 vcc, 31, v1
            """)
            hi_or_lo(q, vB2, vM, vT2)
            if isV:
                q(f"""
                s_lshl_b32 {s(sT0)}, {s(sWAVE)}, 7
                s_add_u32 {s(sT0)}, {s(sT0)}, {LSC + 1536}
                v_and_b32 {v(vT2)}, 31, v1
                v_lshl_add_u32 {v(vT2)}, {v(vT2)}, 2, {s(sT0)}
                ds_write_b32 {v(vT2)}, {v(vR)}
                v_lshrrev_b32 {v(vT2)}, 5, v1
                v_lshl_add_u32 {v(vT2)}, {v(vT2)}, 4, {s(sT0)}
                """)
                for k in range(4): q(f"ds_read_b128 {v(vRR + 4*k, 4)}, {v(vT2)} offset:{k*32}")
            for j in range(1, 4): q(f"v_mov_b32 {v(vB2+j)}, 0")
        fin = collect(finf)
        for t in range(3):
            for j in range(1, 4): p(f"v_mov_b32 {v(vAU + 4*t + j)}, 0")
        touch2 = [[f"s_lshl_b32 {s(sT2)}, {s(sGW)}, 11", f"s_mov_b64 exec, 0xffff", f"buffer_load_dword {v(vTC+3)}, {v(vL128)}, {srd(sW2)}, {s(sT2)} offen",
                   f"s_lshl_b32 {s(sT2)}, {s(sGW)}, 9", f"s_mov_b64 exec, 0xf", f"buffer_load_dword {v(vTC+4)}, {v(vL128)}, {srd(sWO)}, {s(sT2)} offen", "s_mov_b64 exec, -1"]]
        gate(0)(); stamp(p, 2)
        emit(p, xreads(0) + creads(0) + wreads(0) + wreads(1))
        for c in range(7):
            burst(c)
            lds_ = (ld_x(c + AHEAD) + ld_w(c + AHEAD)) if c + AHEAD < 7 else (touch2 if c + AHEAD == 7 else [])
            for sp in range(4):
                sx = 4*c + sp
                fill = []
                if sp == 2 and c < 6: gate(c + 1)()
                if sx + 2 < 28: fill += wreads(sx + 2)
                if sp < 2: fill += take(lds_, 4)
                if sp == 2 and c < 6: fill += xreads(c + 1)[:2]
                if sp == 3 and c < 6: fill = xreads(c + 1)[2:] + creads(c + 1) + fill
                if c == 6:
                    if sp < 2: fill += take(fin, 14)
                    elif sp == 2: fill += take(fin, len(fin))
                    else:
                        fill += ["s_waitcnt lgkmcnt(0)", "s_barrier"] + [f"ds_read_b128 {v(vCF + 4*t, 4)}, {v(vT1)} offset:{t*512}" for t in range(3)]
                weave(p, mm(sx), fill)
        stamp(p, 5)
        for t in range(3):
            c0 = vCF + 4*t
            p(f"v_add_f32 {v(c0)}, {v(c0)}, {v(c0+1)}\nv_add_f32 {v(c0+2)}, {v(c0+2)}, {v(c0+3)}\nv_add_f32 {v(c0)}, {v(c0)}, {v(c0+2)}")
            split_hi_lo_pack(p, vAU + 4*t, c0, vT2)
            A, B = (v(vB2, 4), v(vAU + 4*t, 4)) if isV else (v(vAU + 4*t, 4), v(vB2, 4))
            mfma(p, v(vACC + 16*t, 16), A, B)
        stamp(p, 6)
        vSA = vT1
        if not isV:
            p(f"""
            v_lshlrev_b32 {v(vSA)}, 4, v1
            s_mul_i32 {s(sT0)}, {s(sRT)}, {112*512}
            s_mul_i32 {s(sT1)}, {s(sCB)}, {3*4*512}
            s_add_u32 {s(sT0)}, {s(sT0)}, {s(sT1)}
            s_mul_i32 {s(sXB)}, {s(sCB)}, 3
            """)
            for t in range(3):
                if t > 0:
                    p(f"s_cmp_ge_u32 {s(sXB)}, {28 - t}")
                    p(f"s_cbranch_scc1 L_end_{name}")
                p(f"s_cmp_lt_u32 {s(sXB)}, {14 - t}")
                p(f"s_cselect_b32 {s(sT1)}, {fl(28**-0.5 * LOG2E)}, 1.0")
                p(f"v_mul_f32 {v(vM)}, {s(sT1)}, {v(vR)}")
                acc = vACC + 16*t
                for j in range(8): p(f"v_pk_mul_f32 {v(acc+2*j, 2)}, {v(acc+2*j, 2)}, {v(vM, 2)} op_sel_hi:[1,0]")
                for j in range(8): p(f"v_cvt_pk_bf16_f32 {v(acc+j)}, {v(acc+2*j)}, {v(acc+2*j+1)}")
                for m in range(2):
                    p(f"buffer_store_dwordx4 {v(acc+4*m, 4)}, {v(vSA)}, {srd(sWS)}, {s(sT0)} offen offset:{m*1024} {K1ST}")
                p(f"s_add_u32 {s(sT0)}, {s(sT0)}, 2048")
            p(f"s_branch L_end_{name}")
        else:
            p(f"""
            v_lshrrev_b32 {v(vSA)}, 5, v1
            v_mul_u32_u24 {v(vSA)}, {448*16 - 512}, {v(vSA)}
            v_lshl_add_u32 {v(vSA)}, v1, 4, {v(vSA)}
            s_mul_i32 {s(sT0)}, {s(sRT)}, {4*448*16}
            s_mul_i32 {s(sT1)}, {s(sCB)}, {3*512}
            s_add_u32 {s(sT0)}, {s(sT0)}, {s(sT1)}
            s_add_u32 {s(sT0)}, {s(sT0)}, {WS_V - 10*3*512}
            s_add_u32 {s(sT1)}, {s(sT0)}, {2*448*16}
            """)
            for t in range(3):
                if t == 2:
                    p(f"s_cmp_ge_u32 {s(sCB)}, 14")
                    p(f"s_cbranch_scc1 L_end_{name}")
                acc = vACC + 16*t
                for j in range(8): p(f"v_pk_mul_f32 {v(acc+2*j, 2)}, {v(acc+2*j, 2)}, {v(vRR+2*j, 2)}")
                for j in range(8): p(f"v_cvt_pk_bf16_f32 {v(acc+j)}, {v(acc+2*j)}, {v(acc+2*j+1)}")
                p(f"buffer_store_dwordx4 {v(acc, 4)}, {v(vSA)}, {srd(sWS)}, {s(sT0)} offen offset:{t*512} {K1ST}")
                p(f"buffer_store_dwordx4 {v(acc+4, 4)}, {v(vSA)}, {srd(sWS)}, {s(sT1)} offen offset:{t*512} {K1ST}")
            p(f"s_branch L_end_{name}")
    p.label("L_k1_aux"); p.restore(st_aux)
    vA, vD, vSM, vB = 3, 16, 4, 128
    vT1, vT2, vT3 = 12, 13, 14
    p(f"""
    s_lshl_b32 {s(sT0)}, {s(sR)}, 2
    s_add_u32 {s(sT0)}, {s(sT0)}, {s(sWAVE)}
    s_lshl_b32 {s(sT0)}, {s(sT0)}, 13
    s_add_u32 {s(sT0)}, {s(sT0)}, {WS_FL}
    v_mov_b32 {v(vT2)}, 0
    buffer_store_dword {v(vT2)}, {v(vL128)}, {srd(sWS)}, {s(sT0)} offen
    s_lshl_b32 {s(sT0)}, {s(sR)}, 11
    s_add_u32 {s(sT0)}, {s(sT0)}, {FX}
    s_mov_b64 exec, 0xffff
    buffer_store_dword {v(vT2)}, {v(vL128)}, {srd(sWS)}, {s(sT0)} offen
    s_mov_b64 exec, -1
    s_cmp_ge_u32 {s(sR)}, 14
    s_cbranch_scc1 L_end_{name}
    v_lshrrev_b32 {v(vT1)}, 3, v1
    v_mul_u32_u24 {v(vA)}, 3584, {v(vT1)}
    v_and_b32 {v(vT1)}, 7, v1
    v_lshl_add_u32 {v(vA)}, {v(vT1)}, 4, {v(vA)}
    s_lshr_b32 {s(sT1)}, {s(sWAVE)}, 1
    s_lshl_b32 {s(sT0)}, {s(sR)}, 1
    s_add_u32 {s(sXB)}, {s(sT0)}, {s(sT1)}
    s_lshl_b32 {s(sT0)}, {s(sXB)}, 7
    s_and_b32 {s(sT1)}, {s(sWAVE)}, 1
    s_mul_i32 {s(sT1)}, {s(sT1)}, {224*3584}
    s_add_u32 {s(sT0)}, {s(sT0)}, {s(sT1)}
    v_and_b32 {v(vT1)}, 19, v1
    v_bfe_u32 {v(vT2)}, v1, 2, 1
    v_lshl_add_u32 {v(vT1)}, {v(vT2)}, 3, {v(vT1)}
    v_bfe_u32 {v(vT2)}, v1, 3, 1
    v_lshl_add_u32 {v(vT3)}, {v(vT2)}, 2, {v(vT1)}
    v_lshlrev_b32 {v(vT1)}, 1, {v(vT3)}
    s_lshl_b32 {s(sT2)}, {s(sR)}, 2
    s_add_u32 {s(sT2)}, {s(sT2)}, {s(sWAVE)}
    s_lshl_b32 {s(sT3)}, {s(sT2)}, 6
    buffer_load_ushort {v(vB+1)}, {v(vT1)}, {srd(sB1)}, {s(sT3)} offen
    """)
    for j in range(8): p(f"v_mov_b32 {v(vSM+j)}, 0")
    def auxld(i):
        p(f"buffer_load_dwordx4 {v(vD + 4*i, 4)}, {v(vA)}, {srd(sW1)}, {s(sT0)} offen")
        p(f"s_add_u32 {s(sT0)}, {s(sT0)}, {8*3584}")
    for i in range(10): auxld(i)
    for i in range(28):
        if i + 10 < 28: auxld(i + 10)
        for j in range(4):
            r = vD + 4*i + j
            p(f"v_lshlrev_b32 {v(vT1)}, 16, {v(r)}\nv_and_b32 {v(vT2)}, 0xffff0000, {v(r)}")
            p(f"v_pk_add_f32 {v(vSM+2*j, 2)}, {v(vSM+2*j, 2)}, {v(vT1, 2)}")
    p(f"""
    s_lshl_b32 {s(sT0)}, {s(sWAVE)}, 11
    v_lshl_add_u32 {v(vT1)}, v1, 5, {s(sT0)}
    ds_write_b128 {v(vT1)}, {v(vSM, 4)}
    ds_write_b128 {v(vT1)}, {v(vSM+4, 4)} offset:16
    s_waitcnt lgkmcnt(0)
    s_barrier
    s_lshr_b32 {s(sT0)}, {s(sWAVE)}, 1
    s_lshl_b32 {s(sT0)}, {s(sT0)}, 12
    s_and_b32 {s(sT1)}, {s(sWAVE)}, 1
    s_lshl_b32 {s(sT1)}, {s(sT1)}, 7
    s_add_u32 {s(sT0)}, {s(sT0)}, {s(sT1)}
    v_lshl_add_u32 {v(vT1)}, {v(vT3)}, 2, {s(sT0)}
    v_lshrrev_b32 {v(vT2)}, 5, v1
    v_lshl_add_u32 {v(vT1)}, {v(vT2)}, 11, {v(vT1)}
    """)
    for k in range(8): p(f"ds_read_b32 {v(vD+k)}, {v(vT1)} offset:{k*256}")
    for k in range(1, 8): p(f"v_add_f32 {v(vD)}, {v(vD)}, {v(vD+k)}")
    half_sum(p, vD, vT1)
    split_hi_lo_pack(p, vB, vD, vT1)
    p(f"""
    v_mov_b32 {v(vB+2)}, 0
    v_mov_b32 {v(vB+3)}, 0
    v_lshlrev_b32 {v(vT1)}, 4, v1
    s_lshl_b32 {s(sT0)}, {s(sT2)}, 10
    s_add_u32 {s(sT0)}, {s(sT0)}, {WS_AU}
    buffer_store_dwordx4 {v(vB, 4)}, {v(vT1)}, {srd(sWS)}, {s(sT0)} offen
    """)
    stamp(p, 12)
    epilogue(p, name, 0)
    return name, 208, 0, 163840

sLOC = 96
def setflag2(p, vOne, vZ, sOff):
    L = p.newlabel("sf")
    p(f"s_mov_b64 exec, 1")
    p(f"s_cmp_eq_u32 {s(sLOC)}, 1")
    p(f"s_cbranch_scc1 {L}_f")
    st = p.save()
    p(f"buffer_store_dword {v(vOne)}, {v(vZ)}, {srd(sWS)}, {s(sOff)} offen sc1")
    p(f"s_branch {L}_d")
    p.label(f"{L}_f"); p.restore(st)
    p(f"buffer_store_dword {v(vOne)}, {v(vZ)}, {srd(sWS)}, {s(sOff)} offen")
    p.label(f"{L}_d")
    p(f"s_mov_b64 exec, -1")
def acquire(p): pass
def poll_issue(vP, vPA, sOff): return f"buffer_load_dword {v(vP)}, {v(vPA)}, {srd(sWS)}, {s(sOff)} offen sc1"
def poll_check(p, vP, vPA, sOff, sCnt, base):
    L = p.newlabel(base + "ok")
    p(f"v_cmp_ne_u32 vcc, 1, {v(vP)}")
    p(f"s_cbranch_vccz {L}")
    st = p.save()
    poll(p, vP, vPA, sOff, sCnt, base)
    p.label(L); p.restore(st)
    acquire(p)

def K2(p):
    name = "k2_kernel"
    prologue(p, name, [sWS, sX, sWO, sW1, sW2, sB2, sOUT])
    sH, sR, sT0, sT1, sT2, sT3 = 46, 47, 48, 49, 50, 51
    sG, sM = sH, sR
    ATL = OPT.get("attloc", 0)
    if ATL: sH, sR = sM, sG
    sKB, sVB, sCNT, sEX, sDS, sDL = 52, 53, 54, 56, 58, 59
    sC7, sRT0, sRT3, sCT, sKH = 60, 61, 62, 63, 55
    LH0, LH1, LA = 0, 57344, 114688
    LWO, LEX = 105472, 89088
    vL16, vT1, vT2, vT3, vT4 = 2, 3, 4, 5, 6
    vVA, vVA2, vD9, vZ = 7, 8, 10, 11
    vQF, vSB, vPB, vRD = 12, 44, 76, 92
    vXV, vHV, vBV, vAU = 140, 148, 156, 164
    vOne, vXA = 180, 181
    vDW = 224
    aO, aKV = 0, 64
    NB = 4
    p(f"""
    s_and_b32 {s(sT0)}, s2, 7
    s_lshl_b32 {s(sT0)}, {s(sT0)}, 1
    s_bfe_u32 {s(sT1)}, s2, 0x10003
    s_add_u32 {s(sG)}, {s(sT0)}, {s(sT1)}
    s_lshr_b32 {s(sM)}, s2, 4
    v_lshlrev_b32 {v(vL16)}, 4, v1
    v_lshrrev_b32 {v(vT1)}, 5, v1
    v_mul_u32_u24 {v(vVA)}, {448*16 - 512}, {v(vT1)}
    v_add_u32 {v(vVA)}, {v(vVA)}, {v(vL16)}
    v_add_u32 {v(vVA2)}, {2*448*16}, {v(vVA)}
    s_mul_i32 {s(sT0)}, {s(sH)}, 7
    s_lshr_b32 {s(sT0)}, {s(sT0)}, 1
    s_lshl_b32 {s(sT0)}, {s(sT0)}, 9
    s_mul_i32 {s(sT1)}, {s(sR)}, {4*112*512}
    s_add_u32 {s(sT1)}, {s(sT1)}, {s(sT0)}
    s_mul_i32 {s(sKB)}, {s(sWAVE)}, {16*112*512}
    s_add_u32 {s(sKB)}, {s(sKB)}, {s(sT0)}
    s_add_u32 {s(sKB)}, {s(sKB)}, {WS_QK + 56*512}
    s_mul_i32 {s(sVB)}, {s(sWAVE)}, {16*4*448*16}
    s_mul_i32 {s(sT0)}, {s(sH)}, 448
    s_add_u32 {s(sVB)}, {s(sVB)}, {s(sT0)}
    s_add_u32 {s(sVB)}, {s(sVB)}, {WS_V}
    s_mov_b32 {s(sEX)}, 0x0fffffff
    s_mov_b32 {s(sEX+1)}, 0x0fffffff
    v_mov_b32 {v(vT1)}, {s(sONES)}
    """)
    for j in range(8): p(f"v_accvgpr_write_b32 {a(aKV + 8 + j)}, {v(vT1)}")
    p("s_waitcnt lgkmcnt(0)")
    def ldk(b):
        return [f"buffer_load_dwordx4 {a(aKV + 16*b, 4)}, {v(vL16)}, {srd(sWS)}, {s(sKB)} offen",
                f"buffer_load_dwordx4 {a(aKV + 16*b + 4, 4)}, {v(vL16)}, {srd(sWS)}, {s(sKB)} offen offset:1024",
                f"s_add_u32 {s(sKB)}, {s(sKB)}, {112*512}"]
    def ldv(b):
        return [f"s_mov_b64 exec, {s(sEX,2)}",
                f"buffer_load_dwordx4 {a(aKV + 16*b + 8, 4)}, {v(vVA)}, {srd(sWS)}, {s(sVB)} offen",
                f"buffer_load_dwordx4 {a(aKV + 16*b + 12, 4)}, {v(vVA2)}, {srd(sWS)}, {s(sVB)} offen",
                f"s_mov_b64 exec, -1", f"s_add_u32 {s(sVB)}, {s(sVB)}, {4*448*16}"]
    def ldq(t):
        return [f"buffer_load_dwordx4 {v(vQF + 8*t + 4*sx, 4)}, {v(vL16)}, {srd(sWS)}, {s(sT1)} offen offset:{sx*1024}" for sx in range(2)] + [f"s_add_u32 {s(sT1)}, {s(sT1)}, {112*512}"]
    emit(p, ldq(0) + ldk(0) + ldq(1) + ldv(0) + ldq(2) + ldq(3))
    for b in range(1, NB):
        for j in range(8): p(f"v_accvgpr_write_b32 {a(aKV + 16*b + 8 + j)}, {v(vT1)}")
    p(f"""
    s_and_b32 {s(sT0)}, {s(sH)}, 1
    s_cmp_eq_u32 {s(sT0)}, 1
    s_cselect_b32 {s(sT0)}, 0, -1
    s_cselect_b32 {s(sT1)}, -1, 0
    v_cmp_lt_u32 vcc, 31, v1
    v_mov_b32 {v(vT1)}, {s(sT0)}
    v_mov_b32 {v(vT2)}, {s(sT1)}
    v_cndmask_b32 {v(vT3)}, {v(vT1)}, -1, vcc
    v_cndmask_b32 {v(vT4)}, -1, {v(vT2)}, vcc
    s_cmp_ge_u32 {s(sM)}, 7
    s_cselect_b32 {s(sT1)}, 2, 0
    s_cselect_b32 {s(sT0)}, 7, 0
    s_sub_u32 {s(sC7)}, {s(sM)}, {s(sT0)}
    s_lshl_b32 {s(sRT0)}, {s(sG)}, 2
    s_add_u32 {s(sRT0)}, {s(sRT0)}, {s(sT1)}
    s_lshr_b32 {s(sT0)}, {s(sWAVE)}, 1
    s_add_u32 {s(sRT3)}, {s(sRT0)}, {s(sT0)}
    s_and_b32 {s(sKH)}, {s(sWAVE)}, 1
    s_lshl_b32 {s(sCT)}, {s(sC7)}, 1
    s_add_u32 {s(sCT)}, {s(sCT)}, {s(sKH)}
    v_and_b32 {v(vT1)}, 31, v1
    v_mul_u32_u24 {v(vXA)}, 896, {v(vT1)}
    v_lshrrev_b32 {v(vT1)}, 5, v1
    v_lshlrev_b32 {v(vRD)}, 4, {v(vT1)}
    v_add_u32 {v(vXA)}, {v(vRD)}, {v(vXA)}
    s_mul_i32 {s(sT0)}, {s(sRT3)}, {32*896}
    s_lshl_b32 {s(sT1)}, {s(sCT)}, 6
    s_add_u32 {s(sT0)}, {s(sT0)}, {s(sT1)}
    v_add_u32 {v(vXA)}, {s(sT0)}, {v(vXA)}
    v_add_u32 {v(vRD)}, {s(sT1)}, {v(vRD)}
    v_mov_b32 {v(vZ)}, 0
    v_mov_b32 {v(vOne)}, 1
    """)
    p(f"""
    s_getreg_b32 {s(sLOC)}, hwreg(HW_REG_XCC_ID)
    s_and_b32 {s(sLOC)}, {s(sLOC)}, 15
    s_add_u32 {s(sLOC)}, {s(sLOC)}, 1
    s_lshl_b32 {s(sLOC+1)}, {s(sG)}, 11
    s_add_u32 {s(sLOC+1)}, {s(sLOC+1)}, {FX}
    s_lshl_b32 {s(sT0)}, {s(sM)}, 7
    s_add_u32 {s(sT0)}, {s(sT0)}, {s(sLOC+1)}
    v_mov_b32 {v(vT1)}, {s(sLOC)}
    s_mov_b64 exec, 1
    buffer_store_dword {v(vT1)}, {v(vZ)}, {srd(sWS)}, {s(sT0)} offen sc1
    s_mov_b64 exec, -1
    v_min_u32 v231, 15, v1
    v_lshlrev_b32 v231, 7, v231
    """)
    dma128_addr(p, vDW, 3584, vT1, vT2)
    dma128_addr(p, vD9, 896, vT1, vT2)
    for k in range(1, 4): p(f"v_add_u32 {v(vDW+k)}, {k*(8*3584 - 1024)}, {v(vDW)}")
    emit(p, ldk(1) + ldv(1))
    p(f"s_lshl_b32 {s(sDS)}, {s(sM)}, 7")
    def w1grp(i):
        head = [f"s_add_u32 {s(sT2)}, {s(sWAVE)}, {4*i}", f"s_lshl_b32 m0, {s(sT2)}, 12", f"s_mul_i32 {s(sT3)}, {s(sT2)}, {32*3584}", f"s_add_u32 {s(sT3)}, {s(sT3)}, {s(sDS)}"]
        if i >= 3:
            head += [f"s_cmp_ge_u32 {s(sT2)}, 14", f"s_cselect_b32 {s(sT2)}, {448*3584 - 1792}, 0", f"s_sub_u32 {s(sT3)}, {s(sT3)}, {s(sT2)}"]
        ld = [(f"buffer_load_dwordx4 {v(vDW+k)}, {srd(sW1)}, {s(sT3)} offen offset:{k*1024} lds", f"w1_{i}") for k in range(4)]
        return [head + [ld[0]]] + ld[1:]
    stamp(p, 1)
    def qmask(t):
        q = vQF + 8*t
        return [f"v_and_b32 {v(q+j)}, {v(vT3)}, {v(q+j)}" for j in (0, 1)] + [f"v_and_b32 {v(q+j)}, {v(vT4)}, {v(q+j)}" for j in (6, 7)]
    def smf(n, half):
        return MF(v(vSB + 16*(n % 2), 16), a(aKV + 16*((n // 4) % NB) + 4*half, 4), v(vQF + 8*(n % 4) + 4*half, 4), "0" if half == 0 else None)
    def pvmf(n, half):
        return MF(a(aO + 16*(n % 4), 16), a(aKV + 16*((n // 4) % NB) + 8 + 4*half, 4), v(vPB + 8*(n % 2) + 4*half, 4), "0" if (n < 4 and half == 0) else None)
    def expcvt(n, qd):
        S = vSB + 16*(n % 2) + 4*qd
        for j in range(4): p(f"v_exp_f32 {v(S+j)}, {v(S+j)}")
        for j in range(2): p(f"v_cvt_pk_bf16_f32 {v(vPB + 8*(n % 2) + 2*qd + j)}, {v(S+2*j)}, {v(S+2*j+1)}")
    emit(p, qmask(0)); p(smf(0, 0)); p(smf(0, 1)); emit(p, qmask(1))
    stamp(p, 2)
    side = {n: [] for n in range(64)}
    side[0] += qmask(2) + ldk(2) + ldv(2); side[1] += qmask(3)
    side[2] += ldk(3) + ldv(3)
    for st in range(1, 13): side[4*st] += ldk((st + 3) % NB) + ldv((st + 3) % NB)
    jobs = []
    for i in range(5): jobs += w1grp(i)
    misc = [[f"buffer_load_dwordx4 {v(vXV, 4)}, {v(vXA)}, {srd(sX)}, 0 offen", f"buffer_load_dwordx4 {v(vXV+4, 4)}, {v(vXA)}, {srd(sX)}, 0 offen offset:32"],
            [f"buffer_load_dwordx4 {v(vBV, 4)}, {v(vRD)}, {srd(sB2)}, 0 offen", f"buffer_load_dwordx4 {v(vBV+4, 4)}, {v(vRD)}, {srd(sB2)}, 0 offen offset:32"],
            [f"s_lshl_b32 {s(sT0)}, {s(sM)}, 11", f"s_add_u32 {s(sT0)}, {s(sT0)}, {WS_AU}",
             f"buffer_load_dwordx4 {v(vAU, 4)}, {v(vL16)}, {srd(sWS)}, {s(sT0)} offen", f"buffer_load_dwordx4 {v(vAU+4, 4)}, {v(vL16)}, {srd(sWS)}, {s(sT0)} offen offset:1024"],
            [f"s_add_u32 {s(sT0)}, {s(sT0)}, {28*1024}",
             f"buffer_load_dwordx4 {v(vAU+8, 4)}, {v(vL16)}, {srd(sWS)}, {s(sT0)} offen", f"buffer_load_dwordx4 {v(vAU+12, 4)}, {v(vL16)}, {srd(sWS)}, {s(sT0)} offen offset:1024"],
            [f"s_min_u32 {s(sT2)}, {s(sWAVE)}, 2", f"s_mul_i32 {s(sT0)}, {s(sT2)}, {24*896}", f"s_lshl_b32 {s(sT1)}, {s(sC7)}, 7", f"s_add_u32 {s(sT0)}, {s(sT0)}, {s(sT1)}",
             f"s_mul_i32 {s(sT2)}, {s(sT2)}, 3072"]]
    for i in range(3):
        misc.append([f"s_add_u32 m0, {s(sT2)}, {LWO + i*1024}", f"s_add_u32 {s(sT1)}, {s(sT0)}, {i*8*896}", f"buffer_load_dwordx4 {v(vD9)}, {srd(sWO)}, {s(sT1)} offen lds"])
    misc.append(f"buffer_load_dword v9, v231, {srd(sWS)}, {s(sLOC+1)} offen sc1")
    slots = [n for n in range(5, 52) if n % 4 in (1, 3)]
    for k, j in enumerate(jobs): side[slots[k]].append(j)
    for k, j in enumerate(misc): side[50 + k].append(j)
    for n in range(64):
        if n + 1 < 64: p(smf(n + 1, 0))
        expcvt(n, 0)
        if n + 1 < 64: p(smf(n + 1, 1))
        expcvt(n, 1)
        if n >= 1: p(pvmf(n - 1, 0))
        expcvt(n, 2)
        if n >= 1: p(pvmf(n - 1, 1))
        emit(p, side[n])
        expcvt(n, 3)
    stamp(p, 3)
    p(pvmf(63, 0)); p(pvmf(63, 1))
    for t in range(4):
        p(f"""
        s_sub_u32 {s(sT0)}, {s(sWAVE)}, {t + 1}
        s_and_b32 {s(sT0)}, {s(sT0)}, 3
        s_cmp_eq_u32 {s(sT0)}, 3
        s_cbranch_scc1 L_red_own{t}
        s_lshl_b32 {s(sT0)}, {s(sT0)}, 12
        s_add_u32 {s(sT0)}, {s(sT0)}, {LA + t*12288}
        v_add_u32 {v(vT1)}, {s(sT0)}, {v(vL16)}
        """)
        for q in range(4): p(f"ds_write_b128 {v(vT1)}, {a(aO + 16*t + 4*q, 4)} offset:{q*1024}")
        p(f"s_branch L_red_nx{t}")
        p.label(f"L_red_own{t}")
        for j in range(16): p(f"v_accvgpr_read_b32 {v(vSB + j)}, {a(aO + 16*t + j)}")
        p.label(f"L_red_nx{t}")
    p(f"""
    s_mul_i32 {s(sT2)}, {s(sWAVE)}, 12288
    s_add_u32 {s(sT2)}, {s(sT2)}, {LA}
    v_add_u32 {v(vT2)}, {s(sT2)}, {v(vL16)}
    v_cmp_lt_u32 vcc, 31, v1
    s_lshl_b32 {s(sT0)}, {s(sR)}, 2
    s_add_u32 {s(sT0)}, {s(sT0)}, {s(sWAVE)}
    s_lshl_b32 {s(sT0)}, {s(sT0)}, 4
    s_add_u32 {s(sT0)}, {s(sT0)}, {s(sH)}
    s_lshl_b32 {s(sT1)}, {s(sT0)}, 7
    s_add_u32 {s(sT1)}, {s(sT1)}, {FB}
    s_lshl_b32 {s(sT0)}, {s(sT0)}, 11
    s_add_u32 {s(sT0)}, {s(sT0)}, {WS_O}
    s_waitcnt vmcnt(0) lgkmcnt(0)
    s_barrier
    """)
    stamp(p, 4)
    vO = vSB
    for w in range(3):
        for q in range(4): p(f"ds_read_b128 {v(vRD + 16*w + 4*q, 4)}, {v(vT2)} offset:{w*4096 + q*1024}")
    for w in range(3):
        for j in range(8): p(f"v_pk_add_f32 {v(vO+2*j, 2)}, {v(vO+2*j, 2)}, {v(vRD + 16*w + 2*j, 2)}")
    p(f"""
    v_mov_b32 {v(vT1)}, {v(vO+12)}
    v_mov_b32 {v(vT2)}, {v(vO+12)}
    v_permlane32_swap_b32 {v(vT1)}, {v(vT2)}
    v_rcp_f32 {v(vT2)}, {v(vT2)}
    """)
    for j in range(8): p(f"v_pk_mul_f32 {v(vO+2*j, 2)}, {v(vO+2*j, 2)}, {v(vT2, 2)} op_sel_hi:[1,0]")
    for j in range(8): p(f"v_cvt_pk_bf16_f32 {v(vO+j)}, {v(vO+2*j)}, {v(vO+2*j+1)}")
    for j in (6, 7): p(f"v_cndmask_b32 {v(vO+j)}, {v(vO+j)}, 0, vcc")
    p(f"buffer_store_dwordx4 {v(vO, 4)}, {v(vL16)}, {srd(sWS)}, {s(sT0)} offen sc1", tag="ost")
    p(f"buffer_store_dwordx4 {v(vO+4, 4)}, {v(vL16)}, {srd(sWS)}, {s(sT0)} offen offset:1024 sc1", tag="ost")
    p(f"""
    v_cmp_ne_u32 vcc, {s(sLOC)}, v9
    s_cmp_eq_u64 vcc, 0
    s_cselect_b32 {s(sLOC)}, {OPT.get("loc", 1)}, 0
    """)
    vA0, vA1, vPA, vP = 12, 13, 14, 15
    vWF, vACC = 16, 96
    tr_addr(p, vA0, 128, swap=True, perm_rows=True, t1=vT1, t2=vT2, xor128=True)
    p(f"""
    s_mul_i32 {s(sT0)}, {s(sKH)}, {8*28*128}
    s_add_u32 {s(sT0)}, {s(sT0)}, {LWO}
    v_add_u32 {v(vA0)}, {s(sT0)}, {v(vA0)}
    s_lshl_b32 {s(sT0)}, {s(sKH)}, 6
    v_xor_b32 {v(vA0)}, {s(sT0)}, {v(vA0)}
    v_xor_b32 {v(vA1)}, 64, {v(vA0)}
    v_and_b32 {v(vPA)}, 7, v1
    v_lshlrev_b32 {v(vPA)}, 7, {v(vPA)}
    """)
    for j in range(8):
        p(f"v_lshlrev_b32 {v(vACC+2*j)}, 16, {v(vXV+j)}")
        p(f"v_and_b32 {v(vACC+2*j+1)}, 0xffff0000, {v(vXV+j)}")
    p(f"""
    s_mul_i32 {s(sT0)}, {s(sWAVE)}, {96*896}
    s_lshl_b32 {s(sT3)}, {s(sC7)}, 7
    s_add_u32 {s(sT0)}, {s(sT0)}, {s(sT3)}
    s_add_u32 {s(sT0)}, {s(sT0)}, {72*896}
    """)
    def wod(i):
        p(f"s_add_u32 m0, {s(sT2)}, {i*1024}")
        p(f"s_add_u32 {s(sT3)}, {s(sT0)}, {i*8*896}")
        p(f"buffer_load_dwordx4 {v(vD9)}, {srd(sWO)}, {s(sT3)} offen lds")
    for i in range(6): wod(i)
    p.wait_vm("ost")
    (setflag2 if ATL else setflag)(p, vOne, vZ, sT1)
    stamp(p, 5)
    p(f"s_cmp_ge_u32 {s(sM)}, 14\ns_cbranch_scc1 L_end_{name}")
    for i in range(6, 12): wod(i)
    p(f"""
    s_lshl_b32 {s(sT0)}, {s(sRT3)}, 11
    s_lshl_b32 {s(sT1)}, {s(sKH)}, 10
    s_add_u32 {s(sT0)}, {s(sT0)}, {s(sT1)}
    s_add_u32 {s(sT0)}, {s(sT0)}, {FB}
    s_xor_b32 {s(sT1)}, {s(sWAVE)}, 1
    s_lshl_b32 {s(sT1)}, {s(sT1)}, 12
    s_add_u32 {s(sT1)}, {s(sT1)}, {LEX}
    v_add_u32 {v(vT1)}, {s(sT1)}, {v(vL16)}
    s_lshl_b32 {s(sT1)}, {s(sWAVE)}, 12
    s_add_u32 {s(sT1)}, {s(sT1)}, {LEX}
    v_add_u32 {v(vT2)}, {s(sT1)}, {v(vL16)}
    s_lshl_b32 {s(sT2)}, {s(sRT3)}, 15
    s_lshl_b32 {s(sT1)}, {s(sKH)}, 14
    s_add_u32 {s(sT2)}, {s(sT2)}, {s(sT1)}
    s_add_u32 {s(sT2)}, {s(sT2)}, {WS_O}
    s_waitcnt vmcnt(0)
    s_barrier
    """)
    def reads3(f):
        base = (28*(f // 2) + 16*(f % 2)) * 128
        return [f"ds_read_b64_tr_b16 {v(vWF + 8*(f % 3) + 4*ct + 2*h, 2)}, {v(va)} offset:{base + h*1024}" for ct, va in ((1, vA1), (0, vA0)) for h in range(2)]
    emit(p, reads3(0) + reads3(1))
    poll(p, vP, vPA, sT0, sCNT, "pollB")
    stamp(p, 6)
    aOF = 0
    def old(f):
        r = [f"buffer_load_dwordx4 {a(aOF + 4*f, 4)}, {v(vL16)}, {srd(sWS)}, {s(sT2)} offen offset:{(f % 4)*1024} sc1"]
        if f % 4 == 3: r.append(f"s_add_u32 {s(sT2)}, {s(sT2)}, 4096")
        return r
    PF = OPT.get("pf", 8)
    for f in range(PF): emit(p, old(f))
    ep3 = collect(lambda q: q(f"""
    s_mul_i32 {s(sT0)}, {s(sRT3)}, {56*512}
    s_lshl_b32 {s(sT1)}, {s(sCT)}, 11
    s_add_u32 {s(sT0)}, {s(sT0)}, {s(sT1)}
    s_add_u32 {s(sT0)}, {s(sT0)}, {WS_H}
    s_mul_i32 {s(sT2)}, {s(sRT3)}, {14*256}
    s_lshl_b32 {s(sT1)}, {s(sCT)}, 8
    s_add_u32 {s(sT2)}, {s(sT2)}, {s(sT1)}
    s_add_u32 {s(sT2)}, {s(sT2)}, {WS_ST}
    s_lshl_b32 {s(sT3)}, {s(sRT3)}, 4
    s_add_u32 {s(sT3)}, {s(sT3)}, {s(sCT)}
    s_lshl_b32 {s(sT3)}, {s(sT3)}, 7
    s_add_u32 {s(sT3)}, {s(sT3)}, {FC}
    v_mov_b32 v40, 0
    v_mov_b32 v41, 0
    v_lshlrev_b32 {v(vT3)}, 3, v1
    """))
    for f in range(16):
        fill = []
        if f + PF < 16: fill.append(old(f + PF))
        if f + 2 < 16: fill += reads3(f + 2)
        if f >= 10: fill += take(ep3, 3)
        weave(p, [MF(v(vACC + 16, 16), v(vWF + 8*(f % 3) + 4, 4), a(aOF + 4*f, 4), "0" if f == 0 else None),
                  MF(v(vACC, 16), v(vWF + 8*(f % 3), 4), a(aOF + 4*f, 4))], fill)
    stamp(p, 7)
    for q in range(4): p(f"ds_write_b128 {v(vT1)}, {v(vACC + 16 + 4*q, 4)} offset:{q*1024}")
    p("s_waitcnt lgkmcnt(0)\ns_barrier")
    vR3 = 44
    for q in range(4): p(f"ds_read_b128 {v(vR3 + 4*q, 4)}, {v(vT2)} offset:{q*1024}")
    for j in range(8): p(f"v_pk_add_f32 {v(vACC+2*j, 2)}, {v(vACC+2*j, 2)}, {v(vR3+2*j, 2)}")
    for j in range(8): p(f"v_cvt_pk_bf16_f32 {v(vHV+j)}, {v(vACC+2*j)}, {v(vACC+2*j+1)}")
    p(f"""
    buffer_store_dwordx4 {v(vHV, 4)}, {v(vL16)}, {srd(sWS)}, {s(sT0)} offen sc1
    buffer_store_dwordx4 {v(vHV+4, 4)}, {v(vL16)}, {srd(sWS)}, {s(sT0)} offen offset:1024 sc1
    """)
    for j in range(8):
        p(f"v_dot2c_f32_bf16 v40, {s(sONES)}, {v(vHV+j)}")
        p(f"v_dot2c_f32_bf16 v41, {v(vHV+j)}, {v(vHV+j)}")
    half_sum(p, 40, vT1); half_sum(p, 41, vT1)
    p(f"s_mov_b32 exec_hi, 0")
    p(f"buffer_store_dwordx2 v[40:41], {v(vT3)}, {srd(sWS)}, {s(sT2)} offen sc1", tag="hst")
    p(f"s_mov_b64 exec, -1")
    sFC = sKB
    p(f"s_mov_b32 {s(sFC)}, {s(sT3)}")
    p("s_barrier")
    emit(p, w1grp(5))
    emit(p, w1grp(6))
    p.wait_vm("hst")
    setflag2(p, vOne, vZ, sFC)
    stamp(p, 8)
    sW2B, sRT4 = sKB, sDS
    def w2slot(ks):
        if ks >= 20: ks -= 20
        if ks < 6: return LA, 12288, ks * 2048
        if ks < 13: return LH0, 14336, (ks - 6) * 2048
        return LH1, 14336, (ks - 13) * 2048
    sLA_, sLB_ = sVB, sEX
    vD9b = 9
    p(f"""
    s_mul_i32 {s(sW2B)}, {s(sWAVE)}, {224*896}
    s_lshl_b32 {s(sT1)}, {s(sC7)}, 7
    s_add_u32 {s(sW2B)}, {s(sW2B)}, {s(sT1)}
    s_mul_i32 {s(sLA_)}, {s(sWAVE)}, 12288
    s_mul_i32 {s(sLB_)}, {s(sWAVE)}, 14336
    v_add_u32 {v(vD9b)}, {8*896 - 1024}, {v(vD9)}
    """)
    def w2dma(ks):
        base, wstride, off = w2slot(ks)
        sb = sLA_ if wstride == 12288 else sLB_
        row = 16*ks if ks < 14 else 896 + 16*(ks - 14)
        return [[f"s_add_u32 m0, {s(sb)}, {base + off}", f"s_add_u32 {s(sT3)}, {s(sW2B)}, {row*896}",
                 (f"buffer_load_dwordx4 {v(vD9)}, {srd(sW2)}, {s(sT3)} offen lds", f"w2_{ks}"),
                 (f"buffer_load_dwordx4 {v(vD9b)}, {srd(sW2)}, {s(sT3)} offen offset:1024 lds", f"w2_{ks}")]]
    vA, vPA, vP = 184, 188, 189
    vK1, vK2, vSD, vTK = 190, 192, 194, 196
    vSTt, vG = 200, 216
    vWF, vACC = 12, 48
    tr_addr(p, vA, 128, swap=True, perm_rows=False, t1=vT1, t2=vT2, xor128=True)
    p(f"""
    v_xor_b32 {v(vA+1)}, 64, {v(vA)}
    v_add_u32 {v(vA+2)}, {LH1}, {v(vA)}
    v_add_u32 {v(vA+3)}, {LH1}, {v(vA+1)}
    v_min_u32 {v(vPA)}, 13, v1
    v_lshlrev_b32 {v(vPA)}, 7, {v(vPA)}
    s_lshl_b32 {s(sRT4)}, {s(sG)}, 2
    s_add_u32 {s(sRT4)}, {s(sRT4)}, {s(sWAVE)}
    s_lshl_b32 {s(sT0)}, {s(sRT4)}, 11
    s_add_u32 {s(sT0)}, {s(sT0)}, {FC}
    s_mul_i32 {s(sT2)}, {s(sRT4)}, {56*512}
    s_add_u32 {s(sT2)}, {s(sT2)}, {WS_H}
    s_mul_i32 {s(sT1)}, {s(sRT4)}, {14*256}
    s_add_u32 {s(sT1)}, {s(sT1)}, {WS_ST}
    """)
    WD = 4
    def reads4(sx, hb):
        return [f"ds_read_b64_tr_b16 {v(vWF + 8*(sx % WD) + 4*k + 2*h, 2)}, {v(vA + 2*hb + k)} offset:{sx*2048 + 512*h}" for k in range(2) for h in range(2)]
    for sx in range(3): emit(p, reads4(sx, 0))
    poll(p, vP, vPA, sT0, sCNT, "pollC")
    acquire(p)
    stamp(p, 9)
    aHF = 0
    def hld(f):
        r = [f"buffer_load_dwordx4 {a(aHF + 4*f, 4)}, {v(vL16)}, {srd(sWS)}, {s(sT2)} offen offset:{(f % 4)*1024} sc1"]
        if f % 4 == 3: r.append(f"s_add_u32 {s(sT2)}, {s(sT2)}, 4096")
        return r
    for f in range(PF): emit(p, hld(f))
    stl = [f"buffer_load_dwordx2 {v(vSTt + 2*j, 2)}, {v(vT3)}, {srd(sWS)}, {s(sT1)} offen offset:{j*512} sc1" for j in range(7)]
    k1 = -2.0 * math.sqrt(2.0 / math.pi) * LOG2E
    k2 = k1 * 0.044715
    vM, vV = vSTt + 2, vSTt + 3
    def statf(q):
        for j in range(1, 7):
            q(f"v_add_f32 {v(vSTt)}, {v(vSTt)}, {v(vSTt+2*j)}\nv_add_f32 {v(vSTt+1)}, {v(vSTt+1)}, {v(vSTt+2*j+1)}")
        half_sum(q, vSTt, vT1); half_sum(q, vSTt + 1, vT1)
        q(f"""
        v_mul_f32 {v(vM)}, {fl(-1.0/448)}, {v(vSTt)}
        v_mul_f32 {v(vV)}, {fl(1.0/448)}, {v(vSTt+1)}
        v_fma_f32 {v(vV)}, -{v(vM)}, {v(vM)}, {v(vV)}
        v_max_f32 {v(vV)}, 0, {v(vV)}
        v_add_f32 {v(vT1)}, {fl(EPS)}, {v(vV)}
        v_fmamk_f32 {v(vT1)}, {v(vT1)}, {fl(EPS)}, {v(vV)}
        v_rsq_f32 {v(vT2)}, {v(vT1)}
        v_sqrt_f32 {v(vSD)}, {v(vT1)}
        v_mul_f32 {v(vK1)}, {fl(k1)}, {v(vT2)}
        v_mul_f32 {v(vK2)}, {v(vT2)}, {v(vT2)}
        v_mul_f32 {v(vK2)}, {v(vK2)}, {v(vT2)}
        v_mul_f32 {v(vK2)}, {fl(k2)}, {v(vK2)}
        v_cmp_lt_u32 vcc, 31, v1
        """)
        hi_or_lo(q, vTK, vM, vT2); hi_or_lo(q, vTK + 1, vSD, vT2)
        q(f"v_mov_b32 {v(vTK+2)}, 0\nv_mov_b32 {v(vTK+3)}, 0")
        q(f"""
        s_mul_i32 {s(sT0)}, {s(sRT4)}, {224*512}
        s_lshl_b32 {s(sT1)}, {s(sM)}, 12
        s_add_u32 {s(sT0)}, {s(sT0)}, {s(sT1)}
        s_add_u32 {s(sT0)}, {s(sT0)}, {WS_H1}
        s_add_u32 {s(sT1)}, {s(sT0)}, {112*512}
        s_lshl_b32 {s(sT2)}, {s(sRT4)}, 4
        s_add_u32 {s(sT2)}, {s(sT2)}, {s(sM)}
        s_lshl_b32 {s(sT2)}, {s(sT2)}, 7
        s_add_u32 {s(sT2)}, {s(sT2)}, {FD0}
        """)
    fin = collect(statf)
    def gelu_ops(ct):
        ops = []
        acc = vACC + 16*ct
        bc = "op_sel_hi:[1,0,0]"
        for j0 in range(0, 16, 8):
            for j in range(0, 8, 2): ops.append(f"v_pk_mul_f32 {v(vG+j,2)}, {v(acc+j0+j,2)}, {v(acc+j0+j,2)}")
            for j in range(0, 8, 2): ops.append(f"v_pk_fma_f32 {v(vG+j,2)}, {v(vG+j,2)}, {v(vK2,2)}, {v(vK1,2)} {bc}")
            for j in range(0, 8, 2): ops.append(f"v_pk_mul_f32 {v(vG+j,2)}, {v(vG+j,2)}, {v(acc+j0+j,2)}")
            for j in range(8): ops.append(f"v_exp_f32 {v(vG+j)}, {v(vG+j)}")
            for j in range(0, 8, 2): ops.append(f"v_pk_fma_f32 {v(vG+j,2)}, {v(vG+j,2)}, {v(vSD,2)}, {v(vSD,2)} {bc}")
            for j in range(8): ops.append(f"v_rcp_f32 {v(vG+j)}, {v(vG+j)}")
            for j in range(0, 8, 2): ops.append(f"v_pk_mul_f32 {v(vG+j,2)}, {v(vG+j,2)}, {v(acc+j0+j,2)}")
            for j in range(4): ops.append(f"v_cvt_pk_bf16_f32 {v(acc + j0 + j)}, {v(vG+2*j)}, {v(vG+2*j+1)}")
            so = sT0 if ct < 2 else sT1
            ops.append((f"buffer_store_dwordx4 {v(acc+j0, 4)}, {v(vL16)}, {srd(sWS)}, {s(so)} offen offset:{(ct % 2)*2048 + (j0//8)*1024} sc1", f"h1_{ct}"))
        return ops
    for sx in range(28):
        fill = []
        if sx + PF < 28: fill.append(hld(sx + PF))
        if sx < 7: fill.append(stl[sx])
        if sx + 3 < 28: fill += reads4(sx + 3, 0)
        if sx >= 20: fill += take(fin, 8)
        if 20 <= sx < 26: fill += w2dma(sx - 20)
        weave(p, [MF(v(vACC + 16*k, 16), v(vWF + 8*(sx % WD) + 4*k, 4), a(aHF + 4*sx, 4), "0" if sx == 0 else None) for k in range(2)], fill)
    emit(p, fin)
    for k in range(2): mfma(p, v(vACC + 16*k, 16), v(vAU + 4*k, 4), v(vTK, 4))
    p("s_barrier")
    for sx in range(3): emit(p, reads4(sx, 1))
    stamp(p, 10)
    emit(p, gelu_ops(0) + gelu_ops(1))
    dm = []
    for ks in range(6, 13): dm += w2dma(ks)
    weave(p, [MF(v(vACC + 32 + 16*k, 16), v(vAU + 8 + 4*k, 4), v(vTK, 4), "0") for k in range(2)], [])
    for sx in range(28):
        fill = []
        if sx + 3 < 28: fill += reads4(sx + 3, 1)
        if sx % 3 == 1 and dm: fill += take(dm, 1)
        if sx == 12:
            def fl0():
                p.wait_vm("h1_1"); setflag2(p, vOne, vZ, sT2); p(f"s_add_u32 {s(sT2)}, {s(sT2)}, {FD1 - FD0}")
            fill.append(fl0)
        weave(p, [MF(v(vACC + 32 + 16*k, 16), v(vWF + 8*(sx % WD) + 4*k, 4), a(aHF + 4*sx, 4)) for k in range(2)], fill)
    p("s_barrier")
    stamp(p, 11)
    vA5 = 184
    vPA, vP = 228, 229
    sHB, sFD = sDL, sDS
    p(f"""
    v_add_u32 {v(vA5+4)}, {s(sLB_)}, {v(vA+2)}
    v_add_u32 {v(vA5+5)}, {s(sLB_)}, {v(vA+3)}
    v_add_u32 {v(vA5+2)}, {s(sLB_)}, {v(vA)}
    v_add_u32 {v(vA5+3)}, {s(sLB_)}, {v(vA+1)}
    s_add_u32 {s(sT0)}, {s(sLA_)}, {LA}
    v_add_u32 {v(vA5)}, {s(sT0)}, {v(vA)}
    v_add_u32 {v(vA5+1)}, {s(sT0)}, {v(vA+1)}
    v_and_b32 {v(vPA)}, 3, v1
    v_bfe_u32 {v(vT1)}, v1, 2, 1
    v_lshl_add_u32 {v(vPA)}, {v(vT1)}, 4, {v(vPA)}
    v_lshlrev_b32 {v(vPA)}, 7, {v(vPA)}
    s_mul_i32 {s(sFD)}, {s(sWAVE)}, 7
    s_lshr_b32 {s(sFD)}, {s(sFD)}, 1
    s_lshl_b32 {s(sT0)}, {s(sRT0)}, 4
    s_add_u32 {s(sFD)}, {s(sFD)}, {s(sT0)}
    s_lshl_b32 {s(sFD)}, {s(sFD)}, 7
    s_add_u32 {s(sFD)}, {s(sFD)}, {FD0}
    s_mul_i32 {s(sHB)}, {s(sRT0)}, {224*512}
    s_mul_i32 {s(sT0)}, {s(sWAVE)}, {28*512}
    s_add_u32 {s(sHB)}, {s(sHB)}, {s(sT0)}
    s_add_u32 {s(sHB)}, {s(sHB)}, {WS_H1}
    """)
    vL16b = 230
    p(f"v_add_u32 {v(vL16b)}, {224*512}, {v(vL16)}")
    def h1ld(ks):
        half, k = ks // 14, ks % 14
        r = []
        if k % 4 == 0: r.append(f"s_add_u32 {s(sT0)}, {s(sHB)}, {half*112*512 + k*1024}")
        r.append(f"buffer_load_dwordx4 {a(8*ks, 4)}, {v(vL16)}, {srd(sWS)}, {s(sT0)} offen offset:{(k % 4)*1024} sc1")
        return [r, f"buffer_load_dwordx4 {a(8*ks + 4, 4)}, {v(vL16b)}, {srd(sWS)}, {s(sT0)} offen offset:{(k % 4)*1024} sc1"]
    p(poll_issue(vP, vPA, sFD))
    emit(p, gelu_ops(2))
    poll_check(p, vP, vPA, sFD, sCNT, "pollD0")
    p(f"s_add_u32 {s(sFD)}, {s(sFD)}, {FD1 - FD0}")
    P5F = OPT.get("p5f", 5)
    early = []
    for ks in range(P5F): early += h1ld(ks)
    g3 = gelu_ops(3)
    for i, o in enumerate(g3):
        emit(p, o)
        if i % 6 == 5 and early: emit(p, take(early, 1))
    emit(p, early)
    vWF5, vACC5 = 12, 112
    vACC5 = None
    stamp(p, 12)
    vWF = 12
    def reads5(ks):
        base, wstride, off = w2slot(ks)
        reg = {LA: 0, LH0: 1, LH1: 2}[base]
        return [lambda: p.wait_vm(f"w2_{ks}")] + [f"ds_read_b64_tr_b16 {v(vWF + 8*(ks % 3) + 4*ct + 2*h, 2)}, {v(vA5 + 2*reg + ct)} offset:{off + 512*h}" for ct in range(2) for h in range(2)]
    emit(p, reads5(0) + reads5(1))
    p.wait_vm("h1_3")
    setflag2(p, vOne, vZ, sT2)
    pend = list(range(13, 28))
    CHK = OPT.get("chk", 9)
    for ks in range(28):
        fill = []
        if OPT.get("p5st") and ks in (0, 8, 14, 27): stamp(p, {0: 1, 8: 2, 14: 3, 27: 4}[ks])
        if ks == CHK - 3: fill.append(poll_issue(vP, vPA, sFD))
        if ks == CHK:
            poll_check(p, vP, vPA, sFD, sCNT, "pollD1")
            for k2 in range(14, ks + P5F): fill += h1ld(k2)
        if ks + P5F < 28 and (ks + P5F < 14 or ks >= CHK): fill += h1ld(ks + P5F)
        if ks + 2 < 28: fill += reads5(ks + 2)
        if pend and (pend[0] < 20 or pend[0] - 20 < ks) and (ks % 4 != 3): fill += w2dma(pend.pop(0))
        weave(p, [MF(v(vACC + 16*(2*r + ct), 16), v(vWF + 8*(ks % 3) + 4*ct, 4), a(8*ks + 4*r, 4), "0" if ks == 0 else None) for r in range(2) for ct in range(2)], fill)
    assert not pend, pend
    p("s_barrier")
    vO = 16
    for t in range(4):
        p(f"""
        s_sub_u32 {s(sT0)}, {s(sWAVE)}, {t + 1}
        s_and_b32 {s(sT0)}, {s(sT0)}, 3
        s_cmp_eq_u32 {s(sT0)}, 3
        s_cbranch_scc1 L_r5_own{t}
        s_lshl_b32 {s(sT0)}, {s(sT0)}, 12
        s_add_u32 {s(sT0)}, {s(sT0)}, {t*12288}
        v_add_u32 {v(vT1)}, {s(sT0)}, {v(vL16)}
        """)
        for q_ in range(4): p(f"ds_write_b128 {v(vT1)}, {v(vACC + 16*t + 4*q_, 4)} offset:{q_*1024}")
        p(f"s_branch L_r5_nx{t}")
        p.label(f"L_r5_own{t}")
        for j in range(8): p(f"v_mov_b64 {v(vO + 2*j, 2)}, {v(vACC + 16*t + 2*j, 2)}")
        p.label(f"L_r5_nx{t}")
    p(f"v_add_u32 {v(vT2)}, {s(sLA_)}, {v(vL16)}")
    vE = 112
    for j in range(8):
        p(f"v_lshlrev_b32 {v(vE+2*j)}, 16, {v(vHV+j)}\nv_lshlrev_b32 {v(vT3+1)}, 16, {v(vBV+j)}")
        p(f"v_and_b32 {v(vE+2*j+1)}, 0xffff0000, {v(vHV+j)}\nv_and_b32 {v(vT3+2)}, 0xffff0000, {v(vBV+j)}")
        p(f"v_pk_add_f32 {v(vE+2*j, 2)}, {v(vE+2*j, 2)}, {v(vT3+1, 2)}")
    for j in range(8): p(f"v_pk_add_f32 {v(vO+2*j, 2)}, {v(vO+2*j, 2)}, {v(vE+2*j, 2)}")
    p("s_waitcnt lgkmcnt(0)\ns_barrier")
    vRD5 = 48
    for w in range(3):
        for q_ in range(4): p(f"ds_read_b128 {v(vRD5 + 16*w + 4*q_, 4)}, {v(vT2)} offset:{w*4096 + q_*1024}")
    for w in range(3):
        for j in range(8): p(f"v_pk_add_f32 {v(vO+2*j, 2)}, {v(vO+2*j, 2)}, {v(vRD5 + 16*w + 2*j, 2)}")
    for j in range(8): p(f"v_cvt_pk_bf16_f32 {v(vO+j)}, {v(vO+2*j)}, {v(vO+2*j+1)}")
    p(f"""
    buffer_store_dwordx4 {v(vO, 4)}, {v(vXA)}, {srd(sOUT)}, 0 offen
    buffer_store_dwordx4 {v(vO+4, 4)}, {v(vXA)}, {srd(sOUT)}, 0 offen offset:32
    """)
    epilogue(p, name, 1)
    return name, 232, 224, 163840

OPT = {}
K1ST = "sc1"
def main(outpath):
    p = Prog()
    ks = [f(p) for f in (K1, K2)]
    p.label("L_code_end")
    body = p.finalize()
    hdr = open(f"cdna_kernels/{NAME}.s.ref").read().split("; Override launch")[0]
    for name, nv, na, lds in ks:
        hdr += f"; @launch kernel={name} grid=(256,1,1) block=(256,1,1) lds={lds}\n"
    txt = hdr + '.amdgcn_target "amdgcn-amd-amdhsa--gfx950"\n.text\n.set CODE_LEN, 0x12345\n' + body + '.section .rodata,"a"\n'
    for name, nv, na, lds in ks:
        ao = (nv + 3) // 4 * 4
        txt += f""".p2align 6
.amdhsa_kernel {name}
  .amdhsa_next_free_vgpr {ao + na}
  .amdhsa_next_free_sgpr 102
  .amdhsa_accum_offset {ao}
  .amdhsa_group_segment_fixed_size 0
  .amdhsa_kernarg_size 88
  .amdhsa_user_sgpr_count 2
  .amdhsa_user_sgpr_kernarg_segment_ptr 1
  .amdhsa_system_sgpr_workgroup_id_x 1
.end_amdhsa_kernel
"""
    import subprocess, re as _re
    open("_sz.s", "w").write(txt)
    subprocess.run(["clang", "-x", "assembler", "-target", "amdgcn-amd-amdhsa", "-mcpu=gfx950", "-c", "_sz.s", "-o", "_sz.o"], check=True)
    o = subprocess.run(["llvm-objdump", "-h", "_sz.o"], capture_output=True, text=True).stdout
    sz = int(_re.search(r"\.text\s+([0-9a-f]+)", o).group(1), 16)
    txt = txt.replace(".set CODE_LEN, 0x12345", f".set CODE_LEN, {sz - 512}")
    open(outpath, "w").write(txt)
    print("nops inserted:", p.nops, "bytes:", len(txt), "code bytes:", sz)

if __name__ == "__main__":
    for a_ in sys.argv[2:]:
        if a_ == "stamps": gen2.STAMPS = True
        elif a_.startswith("k1st="): K1ST = a_[5:]
        else:
            k_, v_ = a_.split("="); OPT[k_] = int(v_)
    main(sys.argv[1] if len(sys.argv) > 1 else f"cdna_kernels/{NAME}.s")
```

```python
import sys, math, struct
from asmlib import *

NAME = "sequential_preLN__softmax_full_mha__mixer_channel_mlp__prompt"
def f2u(x): return struct.unpack("<I", struct.pack("<f", x))[0]
def hx(x): return f"0x{x & 0xffffffff:08x}"
def fl(x): return hx(f2u(x))

WS_QK = 0
WS_V  = 0x400000
WS_O  = 0x600000
WS_H  = 0x800000
WS_ST = 0x9E0000
WS_AU = 0xA20000
WS_H1 = 0xA40000
WS_FL = 0x1180000
FB, FC, FD0, FD1 = WS_FL, WS_FL + 0x20000, WS_FL + 0x40000, WS_FL + 0x60000
FX = WS_FL + 0xC0000
WS_SIZE = 0x1250000

sX, sWQ, sWO, sW1, sB1, sW2, sB2, sOUT, sWS = 8, 12, 16, 20, 24, 28, 32, 36, 40
SRD = {sX: (0, 2048*448*2), sWQ: (8, 448*1344*2), sWO: (16, 448*448*2), sW1: (32, 448*1792*2), sB1: (40, 1792*2),
       sW2: (48, 1792*448*2), sB2: (56, 448*2), sOUT: (64, 2048*448*2), sWS: (80, WS_SIZE)}
sWAVE, sONES = 44, 45
LOG2E = 1.4426950408889634
EPS = 1e-5
STAMPS = False
NST = 14
def srd(n): return s(n, 4)

def stamp(p, k):
    if STAMPS: p(f"s_memtime {s(64 + 2*k, 2)}")

def prologue(p, name, srds, early=None):
    p.raw(f".globl {name}\n.p2align 8\n.type {name},@function")
    p.label(name)
    p.reset()
    p(f"s_cmp_ge_u32 s2, 256")
    p(f"s_cbranch_scc1 L_exit_{name}")
    if STAMPS:
        for k in range(1, NST): p(f"s_mov_b64 {s(64+2*k,2)}, 0")
        p(f"s_memrealtime s[92:93]")
    stamp(p, 0)
    for r in srds: p(f"s_load_dwordx2 {s(r,2)}, s[0:1], {SRD[r][0]}")
    if early: early()
    for r in srds:
        p(f"s_mov_b32 {s(r+2)}, {hx(SRD[r][1])}")
        p(f"s_mov_b32 {s(r+3)}, 0x00020000")
    p(f"v_lshrrev_b32 v2, 6, v0")
    p(f"v_and_b32 v1, 63, v0")
    p(f"v_readfirstlane_b32 {s(sWAVE)}, v2")
    p(f"s_mov_b32 {s(sONES)}, 0x3f803f80")

def epilogue(p, name, kidx):
    p.label(f"L_end_{name}")
    if STAMPS:
        p.reset()
        p("s_mov_b64 exec, -1")
        p("s_waitcnt vmcnt(0)")
        stamp(p, NST - 1)
        p(f"s_memrealtime s[94:95]")
        p("s_waitcnt lgkmcnt(0)")
        for k in range(16): p(f"v_mov_b32 v{4+k}, {s(64 + 2*k)}")
        p(f"""
        s_lshl_b32 s3, s2, 8
        s_lshl_b32 s4, {s(sWAVE)}, 6
        s_add_u32 s3, s3, s4
        s_add_u32 s3, s3, {(31 << 20) + kidx * 65536}
        v_mov_b32 v2, s3
        s_mov_b32 {s(sWS+2)}, 0x2000000
        s_mov_b64 exec, 1
        """)
        for k in range(4): p(f"buffer_store_dwordx4 {v(4+4*k, 4)}, v2, {srd(sWS)}, 0 offen offset:{16*k}")
    p("s_waitcnt vmcnt(0)")
    p.label(f"L_exit_{name}")
    p("s_endpgm")

def mfma(p, d, A, B, C=None):
    p(f"v_mfma_f32_32x32x16_bf16 {d}, {A}, {B}, {C if C is not None else d}")

def split_hi_lo_pack(p, dst, src, tmp):
    p(f"v_cvt_pk_bf16_f32 {v(tmp)}, {v(src)}, {v(src)}")
    p(f"v_and_b32 {v(tmp)}, 0xffff0000, {v(tmp)}")
    p(f"v_sub_f32 {v(tmp)}, {v(src)}, {v(tmp)}")
    p(f"v_cvt_pk_bf16_f32 {v(dst)}, {v(src)}, {v(tmp)}")

def hi_or_lo(p, dst, src, tmp):
    p(f"v_cvt_pk_bf16_f32 {v(dst)}, {v(src)}, {v(src)}")
    p(f"v_and_b32 {v(tmp)}, 0xffff0000, {v(dst)}")
    p(f"v_sub_f32 {v(tmp)}, {v(src)}, {v(tmp)}")
    p(f"v_cvt_pk_bf16_f32 {v(tmp)}, {v(tmp)}, {v(tmp)}")
    p(f"v_cndmask_b32 {v(dst)}, {v(dst)}, {v(tmp)}, vcc")

def half_sum(p, x, tmp):
    p(f"v_mov_b32 {v(tmp)}, {v(x)}")
    p(f"v_permlane32_swap_b32 {v(tmp)}, {v(x)}")
    p(f"v_add_f32 {v(x)}, {v(x)}, {v(tmp)}")

def tr_addr(p, dst, pitch, swap, perm_rows, t1, t2, xor128=False):
    p(f"v_bfe_u32 {v(t1)}, v1, 2, 2")
    p(f"v_lshrrev_b32 {v(t2)}, 5, v1")
    p(f"v_lshl_add_u32 {v(t2)}, {v(t2)}, {2 if perm_rows else 3}, {v(t1)}")
    p(f"v_mul_u32_u24 {v(dst)}, {pitch}, {v(t2)}")
    if xor128:
        p(f"v_lshrrev_b32 {v(t1)}, 1, {v(t1)}")
        p(f"v_lshl_add_u32 {v(dst)}, {v(t1)}, 6, {v(dst)}")
    p(f"v_bfe_u32 {v(t1)}, v1, 4, 1")
    p(f"v_lshl_add_u32 {v(dst)}, {v(t1)}, 5, {v(dst)}")
    if swap:
        p(f"v_and_b32 {v(t1)}, 1, v1")
        p(f"v_lshl_add_u32 {v(dst)}, {v(t1)}, 4, {v(dst)}")
        p(f"v_bfe_u32 {v(t1)}, v1, 1, 1")
        p(f"v_lshl_add_u32 {v(dst)}, {v(t1)}, 3, {v(dst)}")
    else:
        p(f"v_and_b32 {v(t1)}, 3, v1")
        p(f"v_lshl_add_u32 {v(dst)}, {v(t1)}, 3, {v(dst)}")

def dma128_addr(p, dst, rowstride, t1, t2):
    p(f"""
    v_lshrrev_b32 {v(t1)}, 3, v1
    v_mul_u32_u24 {v(dst)}, {rowstride}, {v(t1)}
    v_bfe_u32 {v(t1)}, v1, 4, 1
    v_lshlrev_b32 {v(t1)}, 2, {v(t1)}
    v_and_b32 {v(t2)}, 7, v1
    v_xor_b32 {v(t1)}, {v(t1)}, {v(t2)}
    v_lshl_add_u32 {v(dst)}, {v(t1)}, 4, {v(dst)}
    """)

def K1(p):
    name = "k1_kernel"
    prologue(p, name, [sX, sWQ, sWO, sW1, sB1, sW2, sWS])
    sR, sCB, sT0, sT1, sXB, sWB, sM0, sRT, sKC, sT2, sT3, sPC = 46, 47, 48, 49, 50, 51, 52, 53, 54, 55, 56, 58
    p(f"""
    s_and_b32 {s(sT0)}, s2, 3
    s_lshl_b32 {s(sT0)}, {s(sT0)}, 2
    s_bfe_u32 {s(sT1)}, s2, 0x20003
    s_add_u32 {s(sR)}, {s(sT0)}, {s(sT1)}
    s_bfe_u32 {s(sT0)}, s2, 0x10002
    s_lshl_b32 {s(sT0)}, {s(sT0)}, 3
    s_lshr_b32 {s(sT2)}, s2, 5
    s_add_u32 {s(sCB)}, {s(sT0)}, {s(sT2)}
    s_cmp_ge_u32 {s(sCB)}, 15
    s_cbranch_scc1 L_k1_aux
    s_lshl_b32 {s(sT1)}, {s(sT1)}, 1
    s_add_u32 {s(sKC)}, {s(sT2)}, {s(sT1)}
    s_sub_u32 {s(sT0)}, {s(sKC)}, 7
    s_cmp_ge_u32 {s(sKC)}, 7
    s_cselect_b32 {s(sKC)}, {s(sT0)}, {s(sKC)}
    """)
    st_aux = p.save()
    vXE, vXO, vW, vXR, vWR, vWC, vT1, vT2, vL16 = 3, 4, 5, 8, 12, 13, 14, 15, 16
    vS, vQ, vCS = 17, 18, 19
    vM, vR = 22, 23
    vXF, vWF, vCF, vACC, vXS = 24, 56, 92, 104, 152
    vTC = 200
    LW, LX, LSC = 0, 86016, 151552
    p(f"""
    v_lshrrev_b32 {v(vT1)}, 3, v1
    v_mul_u32_u24 {v(vT1)}, 896, {v(vT1)}
    v_lshrrev_b32 {v(vT2)}, 4, v1
    v_xor_b32 {v(vT2)}, {v(vT2)}, v1
    v_and_b32 {v(vT2)}, 7, {v(vT2)}
    v_lshl_add_u32 {v(vXE)}, {v(vT2)}, 4, {v(vT1)}
    v_xor_b32 {v(vT2)}, 4, {v(vT2)}
    v_lshl_add_u32 {v(vXO)}, {v(vT2)}, 4, {v(vT1)}
    v_add_u32 {v(vXO)}, {8*896}, {v(vXO)}
    v_lshlrev_b32 {v(vL16)}, 4, v1
    """)
    for pt in range(3):
        p(f"""
        v_add_u32 {v(vT1)}, {64*pt}, v1
        v_mul_u32_u24 {v(vT2)}, 5462, {v(vT1)}
        v_lshrrev_b32 {v(vT2)}, 16, {v(vT2)}
        v_mul_u32_u24 {v(vW+pt)}, {2688 - 192}, {v(vT2)}
        v_lshl_add_u32 {v(vW+pt)}, v1, 4, {v(vW+pt)}
        """)
    p(f"""
    s_lshl_b32 {s(sRT)}, {s(sR)}, 2
    s_add_u32 {s(sRT)}, {s(sRT)}, {s(sWAVE)}
    s_mul_i32 {s(sXB)}, {s(sRT)}, {32*896}
    s_mul_i32 {s(sWB)}, {s(sCB)}, 192
    s_cmp_ge_u32 {s(sCB)}, 10
    s_cselect_b32 {s(sT0)}, 128, 0
    s_sub_u32 {s(sWB)}, {s(sWB)}, {s(sT0)}
    s_mul_i32 {s(sT0)}, {s(sWAVE)}, {16*2688}
    s_add_u32 {s(sWB)}, {s(sWB)}, {s(sT0)}
    s_lshl_b32 {s(sM0)}, {s(sWAVE)}, 14
    s_add_u32 {s(sM0)}, {s(sM0)}, {LX}
    s_mul_i32 {s(sT1)}, {s(sWAVE)}, 3072
    s_waitcnt lgkmcnt(0)
    """)
    for c in range(7):
        p(f"""
        s_lshl_b32 {s(sT0)}, {s(sKC)}, 7
        s_add_u32 {s(sT0)}, {s(sT0)}, {s(sXB)}
        s_add_u32 {s(sT2)}, {s(sT0)}, {16*896}
        s_mul_i32 {s(sT3)}, {s(sKC)}, {64*2688}
        s_add_u32 {s(sT3)}, {s(sT3)}, {s(sWB)}
        """)
        for q in range(4):
            va = vXE if q % 2 == 0 else vXO
            so = sT0 if q < 2 else sT2
            if c < 4:
                p(f"s_add_u32 m0, {s(sM0)}, {c*4096 + q*1024}")
                p(f"buffer_load_dwordx4 {v(va)}, {srd(sX)}, {s(so)} offen lds", tag=f"c{c}")
            else:
                p(f"buffer_load_dwordx4 {v(vXS + (c-4)*16 + q*4, 4)}, {v(va)}, {srd(sX)}, {s(so)} offen", tag=f"c{c}")
        p(f"s_add_u32 m0, {s(sT1)}, {LW + c*12288}")
        p(f"s_add_u32 {s(sKC)}, {s(sKC)}, 1")
        for pt in range(3):
            p(f"buffer_load_dwordx4 {v(vW+pt)}, {srd(sWQ)}, {s(sT3)} offen offset:{pt*1024} lds", tag=f"c{c}")
        p(f"s_cmp_eq_u32 {s(sKC)}, 7\ns_cselect_b32 {s(sKC)}, 0, {s(sKC)}")
        if c == 0:
            p(f"""
            v_and_b32 {v(vT1)}, 31, v1
            v_lshlrev_b32 {v(vXR+3)}, 7, {v(vT1)}
            v_add_u32 {v(vXR+3)}, {s(sM0)}, {v(vXR+3)}
            v_bfe_u32 {v(vT1)}, v1, 1, 3
            v_lshrrev_b32 {v(vT2)}, 5, v1
            v_xor_b32 {v(vT1)}, {v(vT1)}, {v(vT2)}
            """)
            for sp in range(4):
                p(f"v_xor_b32 {v(vT2)}, {2*sp}, {v(vT1)}")
                p(f"v_lshl_add_u32 {v(vXR+sp)}, {v(vT2)}, 4, {v(vXR+3)}")
            p(f"v_add_u32 {v(vL16)}, {s(sM0)}, {v(vL16)}")
            for r in (vS, vQ, vCS, vCS+1, vCS+2): p(f"v_mov_b32 {v(r)}, 0")
    p(f"""
    s_lshl_b32 {s(sT0)}, s2, 2
    s_add_u32 {s(sT0)}, {s(sT0)}, {s(sWAVE)}
    s_lshl_b32 {s(sT2)}, {s(sT0)}, 11
    s_lshl_b32 {s(sT3)}, {s(sT0)}, 9
    v_lshlrev_b32 {v(vT1)}, 7, v1
    s_mov_b64 exec, 0xffff
    buffer_load_dword {v(vTC)}, {v(vT1)}, {srd(sW2)}, {s(sT2)} offen
    s_mov_b64 exec, 0xf
    buffer_load_dword {v(vTC+1)}, {v(vT1)}, {srd(sWO)}, {s(sT3)} offen
    s_mov_b64 exec, -1
    """)
    stamp(p, 1)
    p(f"s_cmp_ge_u32 {s(sCB)}, 10")
    p(f"s_cbranch_scc1 L_k1_v")
    st = p.save()
    for isV in (0, 1):
        if isV:
            p.label("L_k1_v"); p.restore(st)
        tr_addr(p, vWR, 192, swap=not isV, perm_rows=False, t1=vT1, t2=vT2)
        p(f"v_add_u32 {v(vWC)}, {s(sT1)}, {v(vWR)}")
        vWR2, vWC2 = vXE, vXO
        p(f"v_add_u32 {v(vWR2)}, 49152, {v(vWR)}\nv_add_u32 {v(vWC2)}, 49152, {v(vWC)}")
        def gate(c):
            p.wait_vm(f"c{c}")
            if c >= 4:
                for q in range(4):
                    p(f"ds_write_b128 {v(vL16)}, {v(vXS + (c-4)*16 + q*4, 4)} offset:{(c-4)*4096 + q*1024}")
            p("s_barrier")
            for sp in range(4):
                p(f"ds_read_b128 {v(vXF + 16*(c % 2) + 4*sp, 4)}, {v(vXR+sp)} offset:{(c % 4)*4096}")
            base = (c % 4) * 12288
            for t in range(3):
                va = vWC if c < 4 else vWC2
                p(f"ds_read_b64_tr_b16 {v(vCF + 4*t, 2)}, {v(va)} offset:{base + 64*t}")
                p(f"ds_read_b64_tr_b16 {v(vCF + 4*t + 2, 2)}, {v(va)} offset:{base + 64*t + 768}")
        def wreads(sx):
            b = sx % 3
            base = (sx % 16) * 3072
            va = vWR if sx < 16 else vWR2
            for t in range(3):
                p(f"ds_read_b64_tr_b16 {v(vWF + 12*b + 4*t, 2)}, {v(va)} offset:{base + 64*t}")
                p(f"ds_read_b64_tr_b16 {v(vWF + 12*b + 4*t + 2, 2)}, {v(va)} offset:{base + 64*t + 768}")
        def burst(c):
            for j in range(16):
                r = vXF + 16*(c % 2) + j
                p(f"v_dot2c_f32_bf16 {v(vS)}, {s(sONES)}, {v(r)}")
                p(f"v_dot2c_f32_bf16 {v(vQ)}, {v(r)}, {v(r)}")
            for j in range(12): p(f"v_dot2c_f32_bf16 {v(vCS + j // 4)}, {s(sONES)}, {v(vCF + j)}")
        def mm(sx, fill=None):
            c, sp = sx // 4, sx % 4
            xf = v(vXF + 16*(c % 2) + 4*sp, 4)
            for t in range(3):
                wf = v(vWF + 12*(sx % 3) + 4*t, 4)
                A, B = (xf, wf) if isV else (wf, xf)
                mfma(p, v(vACC + 16*t, 16), A, B, "0" if sx == 0 else None)
                if fill:
                    for _ in range(5):
                        if fill: p(fill.pop(0))
        q = Prog(); q.auto = False
        vB2, vAU, vRR = vXF + 16, vXS + 16, vXS
        for t in range(3): half_sum(q, vCS + t, vT1)
        q(f"""
        v_and_b32 {v(vT1)}, 31, v1
        v_lshlrev_b32 {v(vT1)}, 4, {v(vT1)}
        v_add_u32 {v(vT1)}, {LSC}, {v(vT1)}
        s_lshl_b32 {s(sT0)}, {s(sWAVE)}, 2
        v_add_u32 {v(vT2)}, {s(sT0)}, {v(vT1)}
        """)
        for t in range(3): q(f"ds_write_b32 {v(vT2)}, {v(vCS+t)} offset:{t*512}")
        half_sum(q, vS, vT2); half_sum(q, vQ, vT2)
        q(f"""
        v_mul_f32 {v(vM)}, {fl(-1.0/448)}, {v(vS)}
        v_mul_f32 {v(vQ)}, {fl(1.0/448)}, {v(vQ)}
        v_fma_f32 {v(vQ)}, -{v(vM)}, {v(vM)}, {v(vQ)}
        v_max_f32 {v(vQ)}, 0, {v(vQ)}
        v_add_f32 {v(vQ)}, {fl(EPS)}, {v(vQ)}
        v_rsq_f32 {v(vR)}, {v(vQ)}
        v_cmp_lt_u32 vcc, 31, v1
        """)
        hi_or_lo(q, vB2, vM, vT2)
        for j in range(1, 4): q(f"v_mov_b32 {v(vB2+j)}, 0")
        if isV:
            q(f"""
            s_lshl_b32 {s(sT0)}, {s(sWAVE)}, 7
            s_add_u32 {s(sT0)}, {s(sT0)}, {LSC + 1536}
            v_and_b32 {v(vT2)}, 31, v1
            v_lshl_add_u32 {v(vT2)}, {v(vT2)}, 2, {s(sT0)}
            ds_write_b32 {v(vT2)}, {v(vR)}
            v_lshrrev_b32 {v(vT2)}, 5, v1
            v_lshl_add_u32 {v(vT2)}, {v(vT2)}, 4, {s(sT0)}
            """)
            for k in range(4): q(f"ds_read_b128 {v(vRR + 4*k, 4)}, {v(vT2)} offset:{k*32}")
        for t in range(3):
            for j in range(1, 4): q(f"v_mov_b32 {v(vAU + 4*t + j)}, 0")
        fin = [i.text for i in q.items]

        gate(0); stamp(p, 2); wreads(0); wreads(1)
        for c in range(7):
            burst(c)
            for sp in range(4):
                sx = 4*c + sp
                if sp == 2 and c < 6:
                    gate(c + 1)
                    if c + 1 in (3, 6): stamp(p, 3 if c + 1 == 3 else 4)
                if sx + 2 < 28: wreads(sx + 2)
                mm(sx, fin if c == 6 else None)
        for o in fin: p(o)
        stamp(p, 5)
        p("s_waitcnt lgkmcnt(0)\ns_barrier")
        for t in range(3): p(f"ds_read_b128 {v(vCF + 4*t, 4)}, {v(vT1)} offset:{t*512}")
        for t in range(3):
            c0 = vCF + 4*t
            p(f"v_add_f32 {v(c0)}, {v(c0)}, {v(c0+1)}\nv_add_f32 {v(c0+2)}, {v(c0+2)}, {v(c0+3)}\nv_add_f32 {v(c0)}, {v(c0)}, {v(c0+2)}")
            split_hi_lo_pack(p, vAU + 4*t, c0, vT2)
        for t in range(3):
            A, B = (v(vB2, 4), v(vAU + 4*t, 4)) if isV else (v(vAU + 4*t, 4), v(vB2, 4))
            mfma(p, v(vACC + 16*t, 16), A, B)
        stamp(p, 6)
        vSA = vT1
        if not isV:
            p(f"""
            v_lshlrev_b32 {v(vSA)}, 4, v1
            s_mul_i32 {s(sT0)}, {s(sRT)}, {112*512}
            s_mul_i32 {s(sT1)}, {s(sCB)}, {3*4*512}
            s_add_u32 {s(sT0)}, {s(sT0)}, {s(sT1)}
            s_mul_i32 {s(sXB)}, {s(sCB)}, 3
            """)
            for t in range(3):
                if t > 0:
                    p(f"s_cmp_ge_u32 {s(sXB)}, {28 - t}")
                    p(f"s_cbranch_scc1 L_end_{name}")
                p(f"s_cmp_lt_u32 {s(sXB)}, {14 - t}")
                p(f"s_cselect_b32 {s(sT1)}, {fl(28**-0.5 * LOG2E)}, 1.0")
                p(f"v_mul_f32 {v(vM)}, {s(sT1)}, {v(vR)}")
                acc = vACC + 16*t
                for j in range(8): p(f"v_pk_mul_f32 {v(acc+2*j, 2)}, {v(acc+2*j, 2)}, {v(vM, 2)} op_sel_hi:[1,0]")
                for j in range(8): p(f"v_cvt_pk_bf16_f32 {v(acc+j)}, {v(acc+2*j)}, {v(acc+2*j+1)}")
                for m in range(2):
                    p(f"buffer_store_dwordx4 {v(acc+4*m, 4)}, {v(vSA)}, {srd(sWS)}, {s(sT0)} offen offset:{m*1024}")
                p(f"s_add_u32 {s(sT0)}, {s(sT0)}, 2048")
            p(f"s_branch L_end_{name}")
        else:
            p(f"""
            v_lshrrev_b32 {v(vSA)}, 5, v1
            v_mul_u32_u24 {v(vSA)}, {448*16 - 512}, {v(vSA)}
            v_lshl_add_u32 {v(vSA)}, v1, 4, {v(vSA)}
            s_mul_i32 {s(sT0)}, {s(sRT)}, {4*448*16}
            s_mul_i32 {s(sT1)}, {s(sCB)}, {3*512}
            s_add_u32 {s(sT0)}, {s(sT0)}, {s(sT1)}
            s_add_u32 {s(sT0)}, {s(sT0)}, {WS_V - 10*3*512}
            s_add_u32 {s(sT1)}, {s(sT0)}, {2*448*16}
            """)
            for t in range(3):
                if t == 2:
                    p(f"s_cmp_ge_u32 {s(sCB)}, 14")
                    p(f"s_cbranch_scc1 L_end_{name}")
                acc = vACC + 16*t
                for j in range(8): p(f"v_pk_mul_f32 {v(acc+2*j, 2)}, {v(acc+2*j, 2)}, {v(vRR+2*j, 2)}")
                for j in range(8): p(f"v_cvt_pk_bf16_f32 {v(acc+j)}, {v(acc+2*j)}, {v(acc+2*j+1)}")
                p(f"buffer_store_dwordx4 {v(acc, 4)}, {v(vSA)}, {srd(sWS)}, {s(sT0)} offen offset:{t*512}")
                p(f"buffer_store_dwordx4 {v(acc+4, 4)}, {v(vSA)}, {srd(sWS)}, {s(sT1)} offen offset:{t*512}")
            p(f"s_branch L_end_{name}")
    p.label("L_k1_aux"); p.restore(st_aux)
    vA, vD, vSM, vB = 3, 16, 4, 128
    vT1, vT2, vT3 = 12, 13, 14
    p(f"""
    s_lshl_b32 {s(sT0)}, {s(sR)}, 2
    s_add_u32 {s(sT0)}, {s(sT0)}, {s(sWAVE)}
    s_lshl_b32 {s(sT0)}, {s(sT0)}, 13
    s_add_u32 {s(sT0)}, {s(sT0)}, {WS_FL}
    v_lshlrev_b32 {v(vT1)}, 7, v1
    v_mov_b32 {v(vT2)}, 0
    s_waitcnt lgkmcnt(0)
    buffer_store_dword {v(vT2)}, {v(vT1)}, {srd(sWS)}, {s(sT0)} offen
    s_cmp_ge_u32 {s(sR)}, 14
    s_cbranch_scc1 L_end_{name}
    """)
    p(f"""
    v_lshrrev_b32 {v(vT1)}, 3, v1
    v_mul_u32_u24 {v(vA)}, 3584, {v(vT1)}
    v_and_b32 {v(vT1)}, 7, v1
    v_lshl_add_u32 {v(vA)}, {v(vT1)}, 4, {v(vA)}
    s_lshr_b32 {s(sT1)}, {s(sWAVE)}, 1
    s_lshl_b32 {s(sT0)}, {s(sR)}, 1
    s_add_u32 {s(sXB)}, {s(sT0)}, {s(sT1)}
    s_lshl_b32 {s(sT0)}, {s(sXB)}, 7
    s_and_b32 {s(sT1)}, {s(sWAVE)}, 1
    s_mul_i32 {s(sT1)}, {s(sT1)}, {224*3584}
    s_add_u32 {s(sT0)}, {s(sT0)}, {s(sT1)}
    """)
    for i in range(28):
        p(f"buffer_load_dwordx4 {v(vD + 4*i, 4)}, {v(vA)}, {srd(sW1)}, {s(sT0)} offen")
        p(f"s_add_u32 {s(sT0)}, {s(sT0)}, {8*3584}")
    p(f"""
    v_and_b32 {v(vT1)}, 19, v1
    v_bfe_u32 {v(vT2)}, v1, 2, 1
    v_lshl_add_u32 {v(vT1)}, {v(vT2)}, 3, {v(vT1)}
    v_bfe_u32 {v(vT2)}, v1, 3, 1
    v_lshl_add_u32 {v(vT3)}, {v(vT2)}, 2, {v(vT1)}
    v_lshlrev_b32 {v(vT1)}, 1, {v(vT3)}
    s_lshl_b32 {s(sT2)}, {s(sR)}, 2
    s_add_u32 {s(sT2)}, {s(sT2)}, {s(sWAVE)}
    s_lshl_b32 {s(sT0)}, {s(sT2)}, 6
    buffer_load_ushort {v(vB+1)}, {v(vT1)}, {srd(sB1)}, {s(sT0)} offen
    """)
    for j in range(8): p(f"v_mov_b32 {v(vSM+j)}, 0")
    for i in range(28):
        for j in range(4):
            r = vD + 4*i + j
            p(f"v_lshlrev_b32 {v(vT1)}, 16, {v(r)}\nv_add_f32 {v(vSM+2*j)}, {v(vSM+2*j)}, {v(vT1)}")
            p(f"v_and_b32 {v(vT2)}, 0xffff0000, {v(r)}\nv_add_f32 {v(vSM+2*j+1)}, {v(vSM+2*j+1)}, {v(vT2)}")
    p(f"""
    s_lshl_b32 {s(sT0)}, {s(sWAVE)}, 11
    v_lshl_add_u32 {v(vT1)}, v1, 5, {s(sT0)}
    ds_write_b128 {v(vT1)}, {v(vSM, 4)}
    ds_write_b128 {v(vT1)}, {v(vSM+4, 4)} offset:16
    s_waitcnt lgkmcnt(0)
    s_barrier
    """)
    p(f"""
    s_lshr_b32 {s(sT0)}, {s(sWAVE)}, 1
    s_lshl_b32 {s(sT0)}, {s(sT0)}, 12
    s_and_b32 {s(sT1)}, {s(sWAVE)}, 1
    s_lshl_b32 {s(sT1)}, {s(sT1)}, 7
    s_add_u32 {s(sT0)}, {s(sT0)}, {s(sT1)}
    v_lshl_add_u32 {v(vT1)}, {v(vT3)}, 2, {s(sT0)}
    v_lshrrev_b32 {v(vT2)}, 5, v1
    v_lshl_add_u32 {v(vT1)}, {v(vT2)}, 11, {v(vT1)}
    """)
    for k in range(8): p(f"ds_read_b32 {v(vD+k)}, {v(vT1)} offset:{k*256}")
    for k in range(1, 8): p(f"v_add_f32 {v(vD)}, {v(vD)}, {v(vD+k)}")
    half_sum(p, vD, vT1)
    split_hi_lo_pack(p, vB, vD, vT1)
    p(f"""
    v_mov_b32 {v(vB+2)}, 0
    v_mov_b32 {v(vB+3)}, 0
    v_lshlrev_b32 {v(vT1)}, 4, v1
    s_lshl_b32 {s(sT0)}, {s(sT2)}, 10
    s_add_u32 {s(sT0)}, {s(sT0)}, {WS_AU}
    buffer_store_dwordx4 {v(vB, 4)}, {v(vT1)}, {srd(sWS)}, {s(sT0)} offen
    """)
    epilogue(p, name, 0)
    return name, 204, 0, 163840

def poll(p, vP, vPA, sOff, sCnt, base):
    L = p.newlabel(base); Lx = L + "_x"
    p(f"s_mov_b32 {s(sCnt)}, 0x40000")
    p.label(L)
    p(f"buffer_load_dword {v(vP)}, {v(vPA)}, {srd(sWS)}, {s(sOff)} offen sc1")
    p(f"s_sub_u32 {s(sCnt)}, {s(sCnt)}, 1")
    p(f"s_cbranch_scc1 {Lx}")
    p(f"s_waitcnt vmcnt(0)")
    p(f"v_cmp_ne_u32 vcc, 1, {v(vP)}")
    p(f"s_cbranch_vccnz {L}")
    p.label(Lx)
    p(f"s_waitcnt vmcnt(0)")

def setflag(p, vOne, vZ, sOff):
    p(f"""
    s_mov_b64 exec, 1
    buffer_store_dword {v(vOne)}, {v(vZ)}, {srd(sWS)}, {s(sOff)} offen sc1
    s_mov_b64 exec, -1
    """)

def K2(p):
    name = "k2_kernel"
    prologue(p, name, [sWS, sX, sWO, sW1, sW2, sB2, sOUT])
    sH, sR, sT0, sT1, sT2, sT3 = 46, 47, 48, 49, 50, 51
    sG, sM = sH, sR
    sKB, sVB, sCNT, sEX, sDS, sDL = 52, 53, 54, 56, 58, 59
    sC7, sRT0, sRT3, sCT, sKH = 60, 61, 62, 63, 55
    LH0, LH1, LA = 0, 57344, 114688
    LWO, LEX = 105472, 89088
    p(f"""
    s_and_b32 {s(sT0)}, s2, 7
    s_lshl_b32 {s(sT0)}, {s(sT0)}, 1
    s_bfe_u32 {s(sT1)}, s2, 0x10003
    s_add_u32 {s(sH)}, {s(sT0)}, {s(sT1)}
    s_lshr_b32 {s(sR)}, s2, 4
    """)
    vL16, vT1, vT2, vT3, vT4 = 2, 3, 4, 5, 6
    vVA, vVA2, vDW1, vD9 = 7, 8, 9, 10
    vZ = 11
    vQF, vSB, vPB, vRD = 12, 44, 76, 92
    vXV, vHV, vBV, vAU = 140, 148, 156, 164
    vOne, vXA = 180, 181
    aO, aKV = 0, 64
    NB = 4
    p(f"""
    v_lshlrev_b32 {v(vL16)}, 4, v1
    v_lshrrev_b32 {v(vT1)}, 5, v1
    v_mul_u32_u24 {v(vVA)}, {448*16 - 512}, {v(vT1)}
    v_add_u32 {v(vVA)}, {v(vVA)}, {v(vL16)}
    v_add_u32 {v(vVA2)}, {2*448*16}, {v(vVA)}
    s_mul_i32 {s(sT0)}, {s(sH)}, 7
    s_lshr_b32 {s(sT0)}, {s(sT0)}, 1
    s_lshl_b32 {s(sT0)}, {s(sT0)}, 9
    s_mul_i32 {s(sT1)}, {s(sR)}, {4*112*512}
    s_add_u32 {s(sT1)}, {s(sT1)}, {s(sT0)}
    s_mul_i32 {s(sKB)}, {s(sWAVE)}, {16*112*512}
    s_add_u32 {s(sKB)}, {s(sKB)}, {s(sT0)}
    s_add_u32 {s(sKB)}, {s(sKB)}, {WS_QK + 56*512}
    s_mul_i32 {s(sVB)}, {s(sWAVE)}, {16*4*448*16}
    s_mul_i32 {s(sT0)}, {s(sH)}, 448
    s_add_u32 {s(sVB)}, {s(sVB)}, {s(sT0)}
    s_add_u32 {s(sVB)}, {s(sVB)}, {WS_V}
    s_mov_b32 {s(sEX)}, 0x0fffffff
    s_mov_b32 {s(sEX+1)}, 0x0fffffff
    v_mov_b32 {v(vT1)}, {s(sONES)}
    """)
    for j in range(8): p(f"v_accvgpr_write_b32 {a(aKV + 8 + j)}, {v(vT1)}")
    p("s_waitcnt lgkmcnt(0)")
    def loadkv(b):
        p(f"buffer_load_dwordx4 {a(aKV + 16*b, 4)}, {v(vL16)}, {srd(sWS)}, {s(sKB)} offen")
        p(f"buffer_load_dwordx4 {a(aKV + 16*b + 4, 4)}, {v(vL16)}, {srd(sWS)}, {s(sKB)} offen offset:1024")
        p(f"s_mov_b64 exec, {s(sEX,2)}")
        p(f"buffer_load_dwordx4 {a(aKV + 16*b + 8, 4)}, {v(vVA)}, {srd(sWS)}, {s(sVB)} offen")
        p(f"buffer_load_dwordx4 {a(aKV + 16*b + 12, 4)}, {v(vVA2)}, {srd(sWS)}, {s(sVB)} offen")
        p(f"s_mov_b64 exec, -1")
        p(f"s_add_u32 {s(sKB)}, {s(sKB)}, {112*512}")
        p(f"s_add_u32 {s(sVB)}, {s(sVB)}, {4*448*16}")
    for t in range(4):
        for sx in range(2):
            p(f"buffer_load_dwordx4 {v(vQF + 8*t + 4*sx, 4)}, {v(vL16)}, {srd(sWS)}, {s(sT1)} offen offset:{sx*1024}")
        p(f"s_add_u32 {s(sT1)}, {s(sT1)}, {112*512}")
        if t == 0: loadkv(0)
    for b in range(1, NB):
        for j in range(8): p(f"v_accvgpr_write_b32 {a(aKV + 16*b + 8 + j)}, {v(vT1)}")
    p(f"""
    s_cmp_ge_u32 {s(sM)}, 7
    s_cselect_b32 {s(sT1)}, 2, 0
    s_cselect_b32 {s(sT0)}, 7, 0
    s_sub_u32 {s(sC7)}, {s(sM)}, {s(sT0)}
    s_lshl_b32 {s(sRT0)}, {s(sG)}, 2
    s_add_u32 {s(sRT0)}, {s(sRT0)}, {s(sT1)}
    s_lshr_b32 {s(sT0)}, {s(sWAVE)}, 1
    s_add_u32 {s(sRT3)}, {s(sRT0)}, {s(sT0)}
    s_and_b32 {s(sKH)}, {s(sWAVE)}, 1
    s_lshl_b32 {s(sCT)}, {s(sC7)}, 1
    s_add_u32 {s(sCT)}, {s(sCT)}, {s(sKH)}
    v_and_b32 {v(vT1)}, 31, v1
    v_mul_u32_u24 {v(vXA)}, 896, {v(vT1)}
    v_lshrrev_b32 {v(vT1)}, 5, v1
    v_lshlrev_b32 {v(vT1)}, 4, {v(vT1)}
    v_add_u32 {v(vXA)}, {v(vT1)}, {v(vXA)}
    s_mul_i32 {s(sT0)}, {s(sRT3)}, {32*896}
    s_lshl_b32 {s(sT1)}, {s(sCT)}, 6
    s_add_u32 {s(sT0)}, {s(sT0)}, {s(sT1)}
    v_add_u32 {v(vXA)}, {s(sT0)}, {v(vXA)}
    buffer_load_dwordx4 {v(vXV, 4)}, {v(vXA)}, {srd(sX)}, 0 offen
    buffer_load_dwordx4 {v(vXV+4, 4)}, {v(vXA)}, {srd(sX)}, 0 offen offset:32
    buffer_load_dwordx4 {v(vBV, 4)}, {v(vT1)}, {srd(sB2)}, {s(sT1)} offen
    buffer_load_dwordx4 {v(vBV+4, 4)}, {v(vT1)}, {srd(sB2)}, {s(sT1)} offen offset:32
    s_lshl_b32 {s(sT0)}, {s(sM)}, 11
    s_add_u32 {s(sT0)}, {s(sT0)}, {WS_AU}
    s_add_u32 {s(sT1)}, {s(sT0)}, {28*1024}
    buffer_load_dwordx4 {v(vAU, 4)}, {v(vL16)}, {srd(sWS)}, {s(sT0)} offen
    buffer_load_dwordx4 {v(vAU+4, 4)}, {v(vL16)}, {srd(sWS)}, {s(sT0)} offen offset:1024
    buffer_load_dwordx4 {v(vAU+8, 4)}, {v(vL16)}, {srd(sWS)}, {s(sT1)} offen
    buffer_load_dwordx4 {v(vAU+12, 4)}, {v(vL16)}, {srd(sWS)}, {s(sT1)} offen offset:1024
    """)
    dma128_addr(p, vDW1, 3584, vT1, vT2)
    dma128_addr(p, vD9, 896, vT1, vT2)
    p(f"""
    s_min_u32 {s(sT2)}, {s(sWAVE)}, 2
    s_mul_i32 {s(sT0)}, {s(sT2)}, {24*896}
    s_lshl_b32 {s(sT1)}, {s(sC7)}, 7
    s_add_u32 {s(sT0)}, {s(sT0)}, {s(sT1)}
    s_mul_i32 {s(sT2)}, {s(sT2)}, 3072
    """)
    for i in range(3):
        p(f"s_add_u32 m0, {s(sT2)}, {LWO + i*1024}")
        p(f"buffer_load_dwordx4 {v(vD9)}, {srd(sWO)}, {s(sT0)} offen lds")
        p(f"s_add_u32 {s(sT0)}, {s(sT0)}, {8*896}")
    for b in range(1, NB - 1): loadkv(b)
    for j in range(64): p(f"v_accvgpr_write_b32 {a(aO + j)}, 0")
    for j in range(8): p(f"v_mov_b32 {v(vPB + 8 + j)}, 0")
    p(f"""
    v_mov_b32 {v(vZ)}, 0
    v_mov_b32 {v(vOne)}, 1
    s_mul_i32 {s(sDS)}, {s(sWAVE)}, {8*3584}
    s_lshl_b32 {s(sT0)}, {s(sM)}, 7
    s_add_u32 {s(sDS)}, {s(sDS)}, {s(sT0)}
    s_lshl_b32 {s(sDL)}, {s(sWAVE)}, 10
    s_and_b32 {s(sT0)}, {s(sH)}, 1
    s_cmp_eq_u32 {s(sT0)}, 1
    s_cselect_b32 {s(sT0)}, 0, -1
    s_cselect_b32 {s(sT1)}, -1, 0
    v_cmp_lt_u32 vcc, 31, v1
    v_mov_b32 {v(vT1)}, {s(sT0)}
    v_mov_b32 {v(vT2)}, {s(sT1)}
    v_cndmask_b32 {v(vT3)}, {v(vT1)}, -1, vcc
    v_cndmask_b32 {v(vT4)}, -1, {v(vT2)}, vcc
    """)
    stamp(p, 1)
    for t in range(4):
        q = vQF + 8*t
        for j in (0, 1): p(f"v_and_b32 {v(q+j)}, {v(vT3)}, {v(q+j)}")
        for j in (6, 7): p(f"v_and_b32 {v(q+j)}, {v(vT4)}, {v(q+j)}")
    def smf(n, half, kb):
        t = n % 4
        mfma(p, v(vSB + 16*(n % 2), 16), a(aKV + 16*kb + 4*half, 4), v(vQF + 8*t + 4*half, 4), "0" if half == 0 else None)
    def pvmf(n, half, kb):
        t = n % 4
        mfma(p, a(aO + 16*t, 16), a(aKV + 16*kb + 8 + 4*half, 4), v(vPB + 8*(n % 2) + 4*half, 4))
    def expcvt(n, qd):
        S = vSB + 16*(n % 2) + 4*qd
        for j in range(4): p(f"v_exp_f32 {v(S+j)}, {v(S+j)}")
        for j in range(2): p(f"v_cvt_pk_bf16_f32 {v(vPB + 8*(n % 2) + 2*qd + j)}, {v(S+2*j)}, {v(S+2*j+1)}")
    smf(0, 0, 0); smf(0, 1, 0)
    stamp(p, 2)
    p.auto = False
    p(f"s_mov_b32 {s(sCNT)}, 3\ns_waitcnt lgkmcnt(0)")
    def body(last):
        for n in range(16):
            step = n // 4
            kb_next = ((n + 1) // 4) % NB
            kb_prev = ((n - 1) // 4) % NB
            if n % 4 == 3 and not (last and n == 15):
                if not last: p(f"s_waitcnt vmcnt(8)")
                else: p(f"s_waitcnt vmcnt({[8, 4, 0][step]})")
            if not (last and n == 15): smf(n + 1, 0, kb_next)
            expcvt(n, 0)
            if not (last and n == 15): smf(n + 1, 1, kb_next)
            expcvt(n, 1)
            pvmf(n - 1, 0, kb_prev)
            expcvt(n, 2)
            pvmf(n - 1, 1, kb_prev)
            if n % 4 == 0 and (not last or n == 0): loadkv((step + NB - 1) % NB)
            if not last and n % 4 == 3 and False: pass
            if not last and n in (3, 7, 11, 15, 2, 6, 10):
                p(f"s_mov_b32 m0, {s(sDL)}")
                p(f"s_add_u32 {s(sDL)}, {s(sDL)}, 4096")
                p(f"buffer_load_dwordx4 {v(vDW1)}, {srd(sW1)}, {s(sDS)} offen lds")
                p(f"s_add_u32 {s(sDS)}, {s(sDS)}, {32*3584}")
            expcvt(n, 3)
    p.raw(".p2align 6")
    p.label("L_att_loop")
    body(False)
    p(f"""
    s_cmp_eq_u32 {s(sCNT)}, 2
    s_cselect_b32 {s(sT0)}, {448*3584 - 1792}, 0
    s_sub_u32 {s(sDS)}, {s(sDS)}, {s(sT0)}
    s_sub_u32 {s(sCNT)}, {s(sCNT)}, 1
    s_cmp_lg_u32 {s(sCNT)}, 0
    s_cbranch_scc1 L_att_loop
    """)
    body(True)
    p.reset(); p.auto = True
    stamp(p, 3)
    pvmf(15, 0, 3); pvmf(15, 1, 3)
    for t in range(4):
        p(f"""
        s_sub_u32 {s(sT0)}, {s(sWAVE)}, {t + 1}
        s_and_b32 {s(sT0)}, {s(sT0)}, 3
        s_cmp_eq_u32 {s(sT0)}, 3
        s_cbranch_scc1 L_red_own{t}
        s_lshl_b32 {s(sT0)}, {s(sT0)}, 12
        s_add_u32 {s(sT0)}, {s(sT0)}, {LA + t*12288}
        v_add_u32 {v(vT1)}, {s(sT0)}, {v(vL16)}
        """)
        for q in range(4): p(f"ds_write_b128 {v(vT1)}, {a(aO + 16*t + 4*q, 4)} offset:{q*1024}")
        p(f"s_branch L_red_nx{t}")
        p.label(f"L_red_own{t}")
        for j in range(16): p(f"v_accvgpr_read_b32 {v(vSB + j)}, {a(aO + 16*t + j)}")
        p.label(f"L_red_nx{t}")
    p(f"""
    s_mul_i32 {s(sT2)}, {s(sWAVE)}, 12288
    s_add_u32 {s(sT2)}, {s(sT2)}, {LA}
    v_add_u32 {v(vT2)}, {s(sT2)}, {v(vL16)}
    s_waitcnt vmcnt(0) lgkmcnt(0)
    s_barrier
    """)
    stamp(p, 4)
    vO = vSB
    for w in range(3):
        for q in range(4): p(f"ds_read_b128 {v(vRD + 16*w + 4*q, 4)}, {v(vT2)} offset:{w*4096 + q*1024}")
    for w in range(3):
        for j in range(8): p(f"v_pk_add_f32 {v(vO+2*j, 2)}, {v(vO+2*j, 2)}, {v(vRD + 16*w + 2*j, 2)}")
    p(f"""
    v_mov_b32 {v(vT1)}, {v(vO+12)}
    v_mov_b32 {v(vT2)}, {v(vO+12)}
    v_permlane32_swap_b32 {v(vT1)}, {v(vT2)}
    v_rcp_f32 {v(vT2)}, {v(vT2)}
    v_cmp_lt_u32 vcc, 31, v1
    s_lshl_b32 {s(sT0)}, {s(sR)}, 2
    s_add_u32 {s(sT0)}, {s(sT0)}, {s(sWAVE)}
    s_lshl_b32 {s(sT0)}, {s(sT0)}, 4
    s_add_u32 {s(sT0)}, {s(sT0)}, {s(sH)}
    s_lshl_b32 {s(sT1)}, {s(sT0)}, 7
    s_add_u32 {s(sT1)}, {s(sT1)}, {FB}
    s_lshl_b32 {s(sT0)}, {s(sT0)}, 11
    s_add_u32 {s(sT0)}, {s(sT0)}, {WS_O}
    """)
    for j in range(8): p(f"v_pk_mul_f32 {v(vO+2*j, 2)}, {v(vO+2*j, 2)}, {v(vT2, 2)} op_sel_hi:[1,0]")
    for j in range(8): p(f"v_cvt_pk_bf16_f32 {v(vO+j)}, {v(vO+2*j)}, {v(vO+2*j+1)}")
    for j in (6, 7): p(f"v_cndmask_b32 {v(vO+j)}, {v(vO+j)}, 0, vcc")
    p(f"""
    buffer_store_dwordx4 {v(vO, 4)}, {v(vL16)}, {srd(sWS)}, {s(sT0)} offen sc1
    buffer_store_dwordx4 {v(vO+4, 4)}, {v(vL16)}, {srd(sWS)}, {s(sT0)} offen offset:1024 sc1
    s_waitcnt vmcnt(0)
    """)
    setflag(p, vOne, vZ, sT1)
    stamp(p, 5)
    p(f"s_cmp_ge_u32 {s(sM)}, 14\ns_cbranch_scc1 L_end_{name}")
    p(f"""
    s_mul_i32 {s(sT0)}, {s(sWAVE)}, {96*896}
    s_lshl_b32 {s(sT1)}, {s(sC7)}, 7
    s_add_u32 {s(sT0)}, {s(sT0)}, {s(sT1)}
    s_add_u32 {s(sT0)}, {s(sT0)}, {72*896}
    """)
    for i in range(12):
        p(f"s_add_u32 m0, {s(sT2)}, {i*1024}")
        p(f"buffer_load_dwordx4 {v(vD9)}, {srd(sWO)}, {s(sT0)} offen lds")
        p(f"s_add_u32 {s(sT0)}, {s(sT0)}, {8*896}")
    vA0, vA1, vPA, vP = 12, 13, 14, 15
    vWF, vACC = 16, 44
    tr_addr(p, vA0, 128, swap=True, perm_rows=True, t1=vT1, t2=vT2, xor128=True)
    p(f"""
    s_mul_i32 {s(sT0)}, {s(sKH)}, {8*28*128}
    s_add_u32 {s(sT0)}, {s(sT0)}, {LWO}
    v_add_u32 {v(vA0)}, {s(sT0)}, {v(vA0)}
    s_lshl_b32 {s(sT0)}, {s(sKH)}, 6
    v_xor_b32 {v(vA0)}, {s(sT0)}, {v(vA0)}
    v_xor_b32 {v(vA1)}, 64, {v(vA0)}
    v_and_b32 {v(vPA)}, 7, v1
    v_lshlrev_b32 {v(vPA)}, 7, {v(vPA)}
    s_lshl_b32 {s(sT0)}, {s(sRT3)}, 11
    s_lshl_b32 {s(sT1)}, {s(sKH)}, 10
    s_add_u32 {s(sT0)}, {s(sT0)}, {s(sT1)}
    s_add_u32 {s(sT0)}, {s(sT0)}, {FB}
    """)
    for j in range(8):
        p(f"v_lshlrev_b32 {v(vACC+2*j)}, 16, {v(vXV+j)}")
        p(f"v_and_b32 {v(vACC+2*j+1)}, 0xffff0000, {v(vXV+j)}")
    p("s_waitcnt vmcnt(0)\ns_barrier")
    def reads3(f):
        hd, sx = f // 2, f % 2
        base = (28*hd + 16*sx) * 128
        b = f % 3
        for ct, va in ((0, vA0), (1, vA1)):
            p(f"ds_read_b64_tr_b16 {v(vWF + 8*b + 4*ct, 2)}, {v(va)} offset:{base}")
            p(f"ds_read_b64_tr_b16 {v(vWF + 8*b + 4*ct + 2, 2)}, {v(va)} offset:{base + 8*128}")
    reads3(0); reads3(1)
    poll(p, vP, vPA, sT0, sCNT, "pollB")
    stamp(p, 6)
    p(f"""
    s_lshl_b32 {s(sT0)}, {s(sRT3)}, 15
    s_lshl_b32 {s(sT1)}, {s(sKH)}, 14
    s_add_u32 {s(sT0)}, {s(sT0)}, {s(sT1)}
    s_add_u32 {s(sT0)}, {s(sT0)}, {WS_O}
    """)
    aOF = 0
    for f in range(16):
        if f % 4 == 0 and f: p(f"s_add_u32 {s(sT0)}, {s(sT0)}, 4096")
        p(f"buffer_load_dwordx4 {a(aOF + 4*f, 4)}, {v(vL16)}, {srd(sWS)}, {s(sT0)} offen offset:{(f % 4)*1024} sc1")
    p(f"""
    s_xor_b32 {s(sT0)}, {s(sWAVE)}, 1
    s_lshl_b32 {s(sT0)}, {s(sT0)}, 12
    s_add_u32 {s(sT0)}, {s(sT0)}, {LEX}
    v_add_u32 {v(vT1)}, {s(sT0)}, {v(vL16)}
    s_lshl_b32 {s(sT0)}, {s(sWAVE)}, 12
    s_add_u32 {s(sT0)}, {s(sT0)}, {LEX}
    v_add_u32 {v(vT2)}, {s(sT0)}, {v(vL16)}
    """)
    for f in range(16):
        if f + 2 < 16: reads3(f + 2)
        mfma(p, v(vACC + 16, 16), v(vWF + 8*(f % 3) + 4, 4), a(aOF + 4*f, 4), "0" if f == 0 else None)
        mfma(p, v(vACC, 16), v(vWF + 8*(f % 3), 4), a(aOF + 4*f, 4))
    stamp(p, 7)
    for q in range(4): p(f"ds_write_b128 {v(vT1)}, {v(vACC + 16 + 4*q, 4)} offset:{q*1024}")
    p("s_waitcnt lgkmcnt(0)\ns_barrier")
    for q in range(4): p(f"ds_read_b128 {v(vRD + 4*q, 4)}, {v(vT2)} offset:{q*1024}")
    p(f"""
    s_mul_i32 {s(sT0)}, {s(sRT3)}, {56*512}
    s_lshl_b32 {s(sT1)}, {s(sCT)}, 11
    s_add_u32 {s(sT0)}, {s(sT0)}, {s(sT1)}
    s_add_u32 {s(sT0)}, {s(sT0)}, {WS_H}
    s_mul_i32 {s(sT2)}, {s(sRT3)}, {14*256}
    s_lshl_b32 {s(sT1)}, {s(sCT)}, 8
    s_add_u32 {s(sT2)}, {s(sT2)}, {s(sT1)}
    s_add_u32 {s(sT2)}, {s(sT2)}, {WS_ST}
    s_lshl_b32 {s(sT3)}, {s(sRT3)}, 4
    s_add_u32 {s(sT3)}, {s(sT3)}, {s(sCT)}
    s_lshl_b32 {s(sT3)}, {s(sT3)}, 7
    s_add_u32 {s(sT3)}, {s(sT3)}, {FC}
    v_mov_b32 {v(vWF)}, 0
    v_mov_b32 {v(vWF+1)}, 0
    v_lshlrev_b32 {v(vT3)}, 3, v1
    """)
    for j in range(8): p(f"v_pk_add_f32 {v(vACC+2*j, 2)}, {v(vACC+2*j, 2)}, {v(vRD+2*j, 2)}")
    for j in range(8): p(f"v_cvt_pk_bf16_f32 {v(vHV+j)}, {v(vACC+2*j)}, {v(vACC+2*j+1)}")
    p(f"""
    buffer_store_dwordx4 {v(vHV, 4)}, {v(vL16)}, {srd(sWS)}, {s(sT0)} offen sc1
    buffer_store_dwordx4 {v(vHV+4, 4)}, {v(vL16)}, {srd(sWS)}, {s(sT0)} offen offset:1024 sc1
    """)
    for j in range(8):
        p(f"v_dot2c_f32_bf16 {v(vWF)}, {s(sONES)}, {v(vHV+j)}")
        p(f"v_dot2c_f32_bf16 {v(vWF+1)}, {v(vHV+j)}, {v(vHV+j)}")
    half_sum(p, vWF, vT1); half_sum(p, vWF + 1, vT1)
    p(f"""
    s_mov_b32 exec_hi, 0
    buffer_store_dwordx2 {v(vWF, 2)}, {v(vT3)}, {srd(sWS)}, {s(sT2)} offen sc1
    s_mov_b64 exec, -1
    s_waitcnt vmcnt(0)
    """)
    setflag(p, vOne, vZ, sT3)
    stamp(p, 8)
    p("s_barrier")
    for i in range(7):
        p(f"s_mov_b32 m0, {s(sDL)}")
        p(f"s_add_u32 {s(sDL)}, {s(sDL)}, 4096")
        p(f"buffer_load_dwordx4 {v(vDW1)}, {srd(sW1)}, {s(sDS)} offen lds", tag="w1d")
        p(f"s_add_u32 {s(sDS)}, {s(sDS)}, {32*3584}")
    sW2B, sLBa, sRT4 = sKB, sVB, sDS
    def w2slot(ks):
        if ks >= 20: ks -= 20
        if ks < 6: return LA, 12288, ks * 2048
        if ks < 13: return LH0, 14336, (ks - 6) * 2048
        return LH1, 14336, (ks - 13) * 2048
    sLA_, sLB_ = sVB, sEX
    p(f"""
    s_mul_i32 {s(sW2B)}, {s(sWAVE)}, {224*896}
    s_lshl_b32 {s(sT1)}, {s(sC7)}, 7
    s_add_u32 {s(sW2B)}, {s(sW2B)}, {s(sT1)}
    s_mul_i32 {s(sLA_)}, {s(sWAVE)}, 12288
    s_mul_i32 {s(sLB_)}, {s(sWAVE)}, 14336
    """)
    def w2dma(ks):
        base, wstride, off = w2slot(ks)
        sb = sLA_ if wstride == 12288 else sLB_
        row = 16*ks if ks < 14 else 896 + 16*(ks - 14)
        out = []
        for q in range(2):
            out.append(f"s_add_u32 m0, {s(sb)}, {base + off + q*1024}")
            out.append(f"s_add_u32 {s(sT3)}, {s(sW2B)}, {(row + 8*q)*896}")
            out.append((f"buffer_load_dwordx4 {v(vD9)}, {srd(sW2)}, {s(sT3)} offen lds", f"w2_{ks}"))
        return out
    def emit(lst):
        for o in lst:
            if isinstance(o, tuple): p(o[0], tag=o[1])
            else: p(o)
    for ks in range(6): emit(w2dma(ks))
    vA = 12
    vA, vPA, vP = 184, 188, 189
    vK1, vK2, vSD, vTK = 190, 192, 194, 196
    vSTt, vG = 200, 216
    vWF, vACC = 12, 48
    tr_addr(p, vA, 128, swap=True, perm_rows=False, t1=vT1, t2=vT2, xor128=True)
    p(f"""
    v_xor_b32 {v(vA+1)}, 64, {v(vA)}
    v_add_u32 {v(vA+2)}, {LH1}, {v(vA)}
    v_add_u32 {v(vA+3)}, {LH1}, {v(vA+1)}
    v_min_u32 {v(vPA)}, 13, v1
    v_lshlrev_b32 {v(vPA)}, 7, {v(vPA)}
    s_lshl_b32 {s(sRT4)}, {s(sG)}, 2
    s_add_u32 {s(sRT4)}, {s(sRT4)}, {s(sWAVE)}
    s_lshl_b32 {s(sT0)}, {s(sRT4)}, 11
    s_add_u32 {s(sT0)}, {s(sT0)}, {FC}
    """)
    p.wait_vm("w1d")
    p("s_barrier")
    def reads4(sx, cts):
        for k, ct in enumerate(cts):
            p(f"ds_read_b64_tr_b16 {v(vWF + 12*(sx % 3) + 4*k, 2)}, {v(vA+ct)} offset:{sx*2048}")
            p(f"ds_read_b64_tr_b16 {v(vWF + 12*(sx % 3) + 4*k + 2, 2)}, {v(vA+ct)} offset:{sx*2048 + 512}")
    reads4(0, (0, 1, 2)); reads4(1, (0, 1, 2))
    poll(p, vP, vPA, sT0, sCNT, "pollC")
    stamp(p, 9)
    aHF = 0
    p(f"s_mul_i32 {s(sT0)}, {s(sRT4)}, {56*512}\ns_add_u32 {s(sT0)}, {s(sT0)}, {WS_H}")
    for f in range(28):
        if f % 4 == 0 and f: p(f"s_add_u32 {s(sT0)}, {s(sT0)}, 4096")
        p(f"buffer_load_dwordx4 {a(aHF + 4*f, 4)}, {v(vL16)}, {srd(sWS)}, {s(sT0)} offen offset:{(f % 4)*1024} sc1")
        if f == 7:
            p(f"s_mul_i32 {s(sT1)}, {s(sRT4)}, {14*256}\ns_add_u32 {s(sT1)}, {s(sT1)}, {WS_ST}")
            for j in range(7): p(f"buffer_load_dwordx2 {v(vSTt + 2*j, 2)}, {v(vT3)}, {srd(sWS)}, {s(sT1)} offen offset:{j*512} sc1")
    q = Prog(); q.auto = False
    for j in range(1, 7):
        q(f"v_add_f32 {v(vSTt)}, {v(vSTt)}, {v(vSTt+2*j)}\nv_add_f32 {v(vSTt+1)}, {v(vSTt+1)}, {v(vSTt+2*j+1)}")
    half_sum(q, vSTt, vT1); half_sum(q, vSTt + 1, vT1)
    vM, vV = vSTt + 2, vSTt + 3
    k1 = -2.0 * math.sqrt(2.0 / math.pi) * LOG2E
    k2 = k1 * 0.044715
    q(f"""
    v_mul_f32 {v(vM)}, {fl(-1.0/448)}, {v(vSTt)}
    v_mul_f32 {v(vV)}, {fl(1.0/448)}, {v(vSTt+1)}
    v_fma_f32 {v(vV)}, -{v(vM)}, {v(vM)}, {v(vV)}
    v_max_f32 {v(vV)}, 0, {v(vV)}
    v_add_f32 {v(vT1)}, {fl(EPS)}, {v(vV)}
    v_fmamk_f32 {v(vT1)}, {v(vT1)}, {fl(EPS)}, {v(vV)}
    v_rsq_f32 {v(vT2)}, {v(vT1)}
    v_sqrt_f32 {v(vSD)}, {v(vT1)}
    v_mul_f32 {v(vK1)}, {fl(k1)}, {v(vT2)}
    v_mul_f32 {v(vK2)}, {v(vT2)}, {v(vT2)}
    v_mul_f32 {v(vK2)}, {v(vK2)}, {v(vT2)}
    v_mul_f32 {v(vK2)}, {fl(k2)}, {v(vK2)}
    v_cmp_lt_u32 vcc, 31, v1
    """)
    hi_or_lo(q, vTK, vM, vT2); hi_or_lo(q, vTK + 1, vSD, vT2)
    q(f"v_mov_b32 {v(vTK+2)}, 0\nv_mov_b32 {v(vTK+3)}, 0")
    q(f"""
    s_mul_i32 {s(sT0)}, {s(sRT4)}, {224*512}
    s_lshl_b32 {s(sT1)}, {s(sM)}, 12
    s_add_u32 {s(sT0)}, {s(sT0)}, {s(sT1)}
    s_add_u32 {s(sT0)}, {s(sT0)}, {WS_H1}
    s_add_u32 {s(sT1)}, {s(sT0)}, {112*512}
    s_lshl_b32 {s(sT2)}, {s(sRT4)}, 4
    s_add_u32 {s(sT2)}, {s(sT2)}, {s(sM)}
    s_lshl_b32 {s(sT2)}, {s(sT2)}, 7
    s_add_u32 {s(sT2)}, {s(sT2)}, {FD0}
    """)
    fin = [i.text for i in q.items]
    def gelu_ops(ct, pk):
        ops = []
        acc = vACC + 16*ct
        for j0 in range(0, 16, 8 if pk else 4):
            if pk:
                bc = "op_sel_hi:[1,0,0]"
                for j in range(0, 8, 2): ops.append(f"v_pk_mul_f32 {v(vG+j,2)}, {v(acc+j0+j,2)}, {v(acc+j0+j,2)}")
                for j in range(0, 8, 2): ops.append(f"v_pk_fma_f32 {v(vG+j,2)}, {v(vG+j,2)}, {v(vK2,2)}, {v(vK1,2)} {bc}")
                for j in range(0, 8, 2): ops.append(f"v_pk_mul_f32 {v(vG+j,2)}, {v(vG+j,2)}, {v(acc+j0+j,2)}")
                for j in range(8): ops.append(f"v_exp_f32 {v(vG+j)}, {v(vG+j)}")
                for j in range(0, 8, 2): ops.append(f"v_pk_fma_f32 {v(vG+j,2)}, {v(vG+j,2)}, {v(vSD,2)}, {v(vSD,2)} {bc}")
                for j in range(8): ops.append(f"v_rcp_f32 {v(vG+j)}, {v(vG+j)}")
                for j in range(0, 8, 2): ops.append(f"v_pk_mul_f32 {v(vG+j,2)}, {v(vG+j,2)}, {v(acc+j0+j,2)}")
                for j in range(4): ops.append(f"v_cvt_pk_bf16_f32 {v(acc + j0//2 + j)}, {v(vG+2*j)}, {v(vG+2*j+1)}")
            else:
                for j in range(4): ops.append(f"v_mul_f32 {v(vG+j)}, {v(acc+j0+j)}, {v(acc+j0+j)}")
                for j in range(4): ops.append(f"v_fma_f32 {v(vG+j)}, {v(vG+j)}, {v(vK2)}, {v(vK1)}")
                for j in range(4): ops.append(f"v_mul_f32 {v(vG+j)}, {v(vG+j)}, {v(acc+j0+j)}")
                for j in range(4): ops.append(f"v_exp_f32 {v(vG+j)}, {v(vG+j)}")
                for j in range(4): ops.append(f"v_fma_f32 {v(vG+j)}, {v(vG+j)}, {v(vSD)}, {v(vSD)}")
                for j in range(4): ops.append(f"v_rcp_f32 {v(vG+j)}, {v(vG+j)}")
                for j in range(4): ops.append(f"v_mul_f32 {v(vG+j)}, {v(vG+j)}, {v(acc+j0+j)}")
                for j in range(2): ops.append(f"v_cvt_pk_bf16_f32 {v(acc + j0//2 + j)}, {v(vG+2*j)}, {v(vG+2*j+1)}")
        so = sT0 if ct < 2 else sT1
        for m in range(2):
            ops.append((f"buffer_store_dwordx4 {v(acc+4*m, 4)}, {v(vL16)}, {srd(sWS)}, {s(so)} offen offset:{(ct % 2)*2048 + m*1024} sc1", f"h1_{ct}"))
        return ops
    for sx in range(28):
        if sx + 2 < 28: reads4(sx + 2, (0, 1, 2))
        else:
            pass
        for k in range(3):
            mfma(p, v(vACC + 16*k, 16), v(vWF + 12*(sx % 3) + 4*k, 4), a(aHF + 4*sx, 4), "0" if sx == 0 else None)
            if sx >= 10:
                for _ in range(2):
                    if fin: p(fin.pop(0))
    for o in fin: p(o)
    def reads4b(sx):
        r = vWF + 4*(sx % 6)
        p(f"ds_read_b64_tr_b16 {v(r, 2)}, {v(vA+3)} offset:{sx*2048}")
        p(f"ds_read_b64_tr_b16 {v(r + 2, 2)}, {v(vA+3)} offset:{sx*2048 + 512}")
    for k in range(3): mfma(p, v(vACC + 16*k, 16), v(vAU + 4*k, 4), v(vTK, 4))
    for sx in range(4): reads4b(sx)
    stamp(p, 10)
    p("s_barrier")
    fill = gelu_ops(0, False)
    dm = []
    for ks in range(6, 13): dm += w2dma(ks)
    mfma(p, v(vACC + 48, 16), v(vAU + 12, 4), v(vTK, 4), "0")
    for sx in range(28):
        if sx + 4 < 28: reads4b(sx + 4)
        mfma(p, v(vACC + 48, 16), v(vWF + 4*(sx % 6), 4), a(aHF + 4*sx, 4))
        n = (len(fill) + (27 - sx)) // (28 - sx)
        emit(fill[:n]); fill = fill[n:]
        if sx % 2 == 1: emit(dm[:3]); dm = dm[3:]
    p("s_barrier")
    stamp(p, 11)
    dm = []
    for ks in range(13, 20): dm += w2dma(ks)
    for ct in (1, 2, 3):
        g = gelu_ops(ct, True)
        for i, o in enumerate(g):
            emit([o])
            if i % 12 == 11 and dm: emit(dm[:3]); dm = dm[3:]
        if ct == 2:
            pass
    emit(dm)
    p.wait_vm("h1_1")
    setflag(p, vOne, vZ, sT2)
    p(f"s_add_u32 {s(sT2)}, {s(sT2)}, {FD1 - FD0}")
    vA5 = 184
    vPA, vP = 190, 191
    p(f"""
    v_add_u32 {v(vA5+4)}, {s(sLB_)}, {v(vA+2)}
    v_add_u32 {v(vA5+5)}, {s(sLB_)}, {v(vA+3)}
    v_add_u32 {v(vA5+2)}, {s(sLB_)}, {v(vA)}
    v_add_u32 {v(vA5+3)}, {s(sLB_)}, {v(vA+1)}
    s_add_u32 {s(sT0)}, {s(sLA_)}, {LA}
    v_add_u32 {v(vA5)}, {s(sT0)}, {v(vA)}
    v_add_u32 {v(vA5+1)}, {s(sT0)}, {v(vA+1)}
    v_and_b32 {v(vPA)}, 3, v1
    v_bfe_u32 {v(vT1)}, v1, 2, 1
    v_lshl_add_u32 {v(vPA)}, {v(vT1)}, 4, {v(vPA)}
    v_lshlrev_b32 {v(vPA)}, 7, {v(vPA)}
    s_mul_i32 {s(sT0)}, {s(sWAVE)}, 7
    s_lshr_b32 {s(sT0)}, {s(sT0)}, 1
    s_lshl_b32 {s(sT1)}, {s(sRT0)}, 4
    s_add_u32 {s(sT0)}, {s(sT0)}, {s(sT1)}
    s_lshl_b32 {s(sT0)}, {s(sT0)}, 7
    s_add_u32 {s(sT0)}, {s(sT0)}, {FD0}
    """)
    sHB = sDL
    p(f"""
    s_mul_i32 {s(sHB)}, {s(sRT0)}, {224*512}
    s_mul_i32 {s(sT1)}, {s(sWAVE)}, {28*512}
    s_add_u32 {s(sHB)}, {s(sHB)}, {s(sT1)}
    s_add_u32 {s(sHB)}, {s(sHB)}, {WS_H1}
    """)
    p.wait_vm("h1_3")
    setflag(p, vOne, vZ, sT2)
    stamp(p, 12)
    vWF, vACC = 12, 48
    def reads5(ks):
        p.wait_vm(f"w2_{ks}")
        base, wstride, off = w2slot(ks)
        reg = {LA: 0, LH0: 1, LH1: 2}[base]
        for ct in range(2):
            p(f"ds_read_b64_tr_b16 {v(vWF + 8*(ks % 3) + 4*ct, 2)}, {v(vA5 + 2*reg + ct)} offset:{off}")
            p(f"ds_read_b64_tr_b16 {v(vWF + 8*(ks % 3) + 4*ct + 2, 2)}, {v(vA5 + 2*reg + ct)} offset:{off + 512}")
    def h1loads(half):
        for k in range(14):
            for r in range(2):
                ks = 14*half + k
                if k % 4 == 0: p(f"s_add_u32 {s(sT1 if r == 0 else sT2)}, {s(sHB)}, {r*224*512 + half*112*512 + k*1024}")
                p(f"buffer_load_dwordx4 {a(8*ks + 4*r, 4)}, {v(vL16)}, {srd(sWS)}, {s(sT1 if r == 0 else sT2)} offen offset:{(k % 4)*1024} sc1")
    poll(p, vP, vPA, sT0, sCNT, "pollD0")
    h1loads(0)
    p(f"s_add_u32 {s(sT0)}, {s(sT0)}, {FD1 - FD0}")
    reads5(0); reads5(1)
    for ks in range(28):
        if ks == 4:
            poll(p, vP, vPA, sT0, sCNT, "pollD1")
            h1loads(1)
        if ks + 2 < 28: reads5(ks + 2)
        for r in range(2):
            for ct in range(2):
                mfma(p, v(vACC + 16*(2*r + ct), 16), v(vWF + 8*(ks % 3) + 4*ct, 4), a(8*ks + 4*r, 4), "0" if ks == 0 else None)
        if 4 <= ks < 12: emit(w2dma(ks + 16))
    p("s_barrier")
    vO = 16
    for t in range(4):
        p(f"""
        s_sub_u32 {s(sT0)}, {s(sWAVE)}, {t + 1}
        s_and_b32 {s(sT0)}, {s(sT0)}, 3
        s_cmp_eq_u32 {s(sT0)}, 3
        s_cbranch_scc1 L_r5_own{t}
        s_lshl_b32 {s(sT0)}, {s(sT0)}, 12
        s_add_u32 {s(sT0)}, {s(sT0)}, {t*12288}
        v_add_u32 {v(vT1)}, {s(sT0)}, {v(vL16)}
        """)
        for q_ in range(4): p(f"ds_write_b128 {v(vT1)}, {v(vACC + 16*t + 4*q_, 4)} offset:{q_*1024}")
        p(f"s_branch L_r5_nx{t}")
        p.label(f"L_r5_own{t}")
        for j in range(8): p(f"v_mov_b64 {v(vO + 2*j, 2)}, {v(vACC + 16*t + 2*j, 2)}")
        p.label(f"L_r5_nx{t}")
    p(f"v_add_u32 {v(vT2)}, {s(sLA_)}, {v(vL16)}")
    vE = 112
    for j in range(8):
        p(f"v_lshlrev_b32 {v(vE+2*j)}, 16, {v(vHV+j)}\nv_lshlrev_b32 {v(vT3+1)}, 16, {v(vBV+j)}")
        p(f"v_and_b32 {v(vE+2*j+1)}, 0xffff0000, {v(vHV+j)}\nv_and_b32 {v(vT3+2)}, 0xffff0000, {v(vBV+j)}")
        p(f"v_pk_add_f32 {v(vE+2*j, 2)}, {v(vE+2*j, 2)}, {v(vT3+1, 2)}")
    p("s_waitcnt lgkmcnt(0)\ns_barrier")
    vRD5 = 48
    for w in range(3):
        for q_ in range(4): p(f"ds_read_b128 {v(vRD5 + 16*w + 4*q_, 4)}, {v(vT2)} offset:{w*4096 + q_*1024}")
    for j in range(8): p(f"v_pk_add_f32 {v(vO+2*j, 2)}, {v(vO+2*j, 2)}, {v(vE+2*j, 2)}")
    for w in range(3):
        for j in range(8): p(f"v_pk_add_f32 {v(vO+2*j, 2)}, {v(vO+2*j, 2)}, {v(vRD5 + 16*w + 2*j, 2)}")
    for j in range(8): p(f"v_cvt_pk_bf16_f32 {v(vO+j)}, {v(vO+2*j)}, {v(vO+2*j+1)}")
    p(f"""
    buffer_store_dwordx4 {v(vO, 4)}, {v(vXA)}, {srd(sOUT)}, 0 offen
    buffer_store_dwordx4 {v(vO+4, 4)}, {v(vXA)}, {srd(sOUT)}, 0 offen offset:32
    """)
    epilogue(p, name, 1)
    return name, 224, 224, 163840

def main(outpath):
    p = Prog()
    ks = [f(p) for f in (K1, K2)]
    body = p.finalize()
    hdr = open(f"cdna_kernels/{NAME}.s.ref").read().split("; Override launch")[0]
    for name, nv, na, lds in ks:
        hdr += f"; @launch kernel={name} grid=(256,1,1) block=(256,1,1) lds={lds}\n"
    txt = hdr + '.amdgcn_target "amdgcn-amd-amdhsa--gfx950"\n.text\n' + body + '.section .rodata,"a"\n'
    for name, nv, na, lds in ks:
        ao = (nv + 3) // 4 * 4
        txt += f""".p2align 6
.amdhsa_kernel {name}
  .amdhsa_next_free_vgpr {ao + na}
  .amdhsa_next_free_sgpr 102
  .amdhsa_accum_offset {ao}
  .amdhsa_group_segment_fixed_size 0
  .amdhsa_kernarg_size 88
  .amdhsa_user_sgpr_count 2
  .amdhsa_user_sgpr_kernarg_segment_ptr 1
  .amdhsa_system_sgpr_workgroup_id_x 1
.end_amdhsa_kernel
"""
    open(outpath, "w").write(txt)
    print("nops inserted:", p.nops, "bytes:", len(txt))

if __name__ == "__main__":
    if len(sys.argv) > 2 and sys.argv[2] == "stamps": STAMPS = True
    main(sys.argv[1] if len(sys.argv) > 1 else f"cdna_kernels/{NAME}.s")
```

```python
import sys, math, struct
from asmlib import *
import gen2
from gen2 import *

def cost(t):
    if isinstance(t, list): return sum(cost(x) for x in t)
    if isinstance(t, tuple): t = t[0]
    op = t.split()[0]
    if op.startswith("ds_read_b128"): return 16
    if op.startswith("ds_write_b128"): return 52
    if op.startswith("ds_"): return 8
    if op.startswith("buffer_") or op.startswith("global_"): return 16
    if op in TRANS: return 8
    return 4

def emit(p, it):
    if isinstance(it, list):
        for x in it: emit(p, x)
    elif isinstance(it, tuple): p(it[0], tag=it[1])
    elif callable(it): it()
    else: p(it)

def weave(p, mfs, fill):
    tot = sum(cost(f) for f in fill if not callable(f)); n = len(mfs); acc = 0; k = 0
    for i, m in enumerate(mfs):
        p(m)
        while k < len(fill) and (i == n - 1 or callable(fill[k]) or acc + cost(fill[k]) / 2 <= tot * (i + 1) / n):
            emit(p, fill[k])
            if not callable(fill[k]): acc += cost(fill[k])
            k += 1

def MF(d, A, B, C=None): return f"v_mfma_f32_32x32x16_bf16 {d}, {A}, {B}, {C if C is not None else d}"
def take(lst, n):
    r = lst[:n]; del lst[:n]; return r
def collect(fn):
    q = Prog(); q.auto = False; fn(q); return [i.text for i in q.items]

CODE_BYTES = 65536

def K1(p):
    name = "k1_kernel"
    prologue(p, name, [sX, sWQ, sWO, sW1, sB1, sW2, sWS])
    sR, sCB, sT0, sT1, sXB, sWB, sM0, sRT, sKC, sT2, sT3, sPC, sGW, sWL = 46, 47, 48, 49, 50, 51, 52, 53, 54, 55, 56, 58, 60, 61
    vT1, vT2, vTC, vL128 = 14, 15, 200, 206
    p(f"""
    s_getpc_b64 {s(sPC,2)}
    s_lshr_b32 {s(sT0)}, s2, 3
    s_lshl_b32 {s(sT0)}, {s(sT0)}, 2
    s_add_u32 {s(sT0)}, {s(sT0)}, {s(sWAVE)}
    s_lshl_b32 {s(sT0)}, {s(sT0)}, 9
    v_lshlrev_b32 {v(vL128)}, 7, v1
    v_add_u32 {v(vT1)}, {s(sT0)}, {v(vL128)}
    v_min_u32 {v(vT1)}, CODE_LEN, {v(vT1)}
    s_mov_b64 exec, 0xf
    global_load_dword {v(vTC)}, {v(vT1)}, {s(sPC,2)}
    s_mov_b64 exec, -1
    s_lshl_b32 {s(sGW)}, s2, 2
    s_add_u32 {s(sGW)}, {s(sGW)}, {s(sWAVE)}
    s_and_b32 {s(sT0)}, s2, 3
    s_lshl_b32 {s(sT0)}, {s(sT0)}, 2
    s_bfe_u32 {s(sT1)}, s2, 0x20003
    s_add_u32 {s(sR)}, {s(sT0)}, {s(sT1)}
    s_bfe_u32 {s(sT0)}, s2, 0x10002
    s_lshl_b32 {s(sT0)}, {s(sT0)}, 3
    s_lshr_b32 {s(sT2)}, s2, 5
    s_add_u32 {s(sCB)}, {s(sT0)}, {s(sT2)}
    """)
    rm = OPT.get("rot", 0)
    if rm == 0:
        p(f"s_lshl_b32 {s(sT1)}, {s(sT1)}, 1\ns_add_u32 {s(sKC)}, {s(sT2)}, {s(sT1)}")
    elif rm == 3:
        p(f"s_mov_b32 {s(sKC)}, 0")
    else:
        p(f"""
        s_and_b32 {s(sKC)}, s2, 3
        s_lshl_b32 {s(sKC)}, {s(sKC)}, 1
        s_and_b32 {s(sT0)}, s2, 4
        s_add_u32 {s(sKC)}, {s(sKC)}, {s(sT0)}
        """)
        if rm == 2: p(f"s_xor_b32 {s(sT0)}, {s(sT1)}, {s(sT2)}\ns_and_b32 {s(sT0)}, {s(sT0)}, 1\ns_add_u32 {s(sKC)}, {s(sKC)}, {s(sT0)}")
        if rm == 4: p(f"s_add_u32 {s(sT0)}, {s(sT1)}, {s(sT2)}\ns_and_b32 {s(sT0)}, {s(sT0)}, 3\ns_add_u32 {s(sKC)}, {s(sKC)}, {s(sT0)}")
    p(f"""
    s_sub_u32 {s(sT0)}, {s(sKC)}, 7
    s_cmp_ge_u32 {s(sKC)}, 7
    s_cselect_b32 {s(sKC)}, {s(sT0)}, {s(sKC)}
    s_mul_i32 {s(sT0)}, {s(sGW)}, {14*128}
    s_mul_i32 {s(sT1)}, {s(sGW)}, {10*128}
    s_waitcnt lgkmcnt(0)
    """)
    stamp(p, 7)
    if OPT.get("touch", 1):
        p(f"""
        s_mov_b64 exec, 0x3fff
        buffer_load_dword {v(vTC+1)}, {v(vL128)}, {srd(sX)}, {s(sT0)} offen
        s_mov_b64 exec, 0x3ff
        buffer_load_dword {v(vTC+2)}, {v(vL128)}, {srd(sWQ)}, {s(sT1)} offen
        s_mov_b64 exec, -1
        """)
    p(f"s_cmp_ge_u32 {s(sCB)}, 15\ns_cbranch_scc1 L_k1_aux")
    st_aux = p.save()
    vXE, vXO, vW, vXR, vWR, vWC = 3, 4, 5, 8, 12, 13
    vWR2, vWC2 = 16, 207
    vS, vQ, vCS = 17, 18, 19
    vM, vR = 22, 23
    vXF, vWF, vCF, vACC, vXS = 24, 56, 92, 104, 152
    LW, LX, LSC = 0, 86016, 151552
    p(f"""
    v_lshrrev_b32 {v(vT1)}, 3, v1
    v_mul_u32_u24 {v(vT1)}, 896, {v(vT1)}
    v_lshrrev_b32 {v(vT2)}, 4, v1
    v_xor_b32 {v(vT2)}, {v(vT2)}, v1
    v_and_b32 {v(vT2)}, 7, {v(vT2)}
    v_lshl_add_u32 {v(vXE)}, {v(vT2)}, 4, {v(vT1)}
    v_xor_b32 {v(vT2)}, 4, {v(vT2)}
    v_lshl_add_u32 {v(vXO)}, {v(vT2)}, 4, {v(vT1)}
    v_add_u32 {v(vXO)}, {8*896 - 1024}, {v(vXO)}
    s_lshl_b32 {s(sRT)}, {s(sR)}, 2
    s_add_u32 {s(sRT)}, {s(sRT)}, {s(sWAVE)}
    s_mul_i32 {s(sXB)}, {s(sRT)}, {32*896}
    s_lshl_b32 {s(sM0)}, {s(sWAVE)}, 14
    s_add_u32 {s(sM0)}, {s(sM0)}, {LX}
    """)
    def ld_x(c):
        return [[f"s_lshl_b32 {s(sT0)}, {s(sKC)}, 7", f"s_add_u32 {s(sT0)}, {s(sT0)}, {s(sXB)}", f"s_add_u32 m0, {s(sM0)}, {(c % 4)*4096}",
                 f"s_add_u32 {s(sT2)}, {s(sT0)}, {16*896 - 2048}",
                 (f"buffer_load_dwordx4 {v(vXE)}, {srd(sX)}, {s(sT0)} offen lds", f"c{c}")],
                (f"buffer_load_dwordx4 {v(vXO)}, {srd(sX)}, {s(sT0)} offen offset:1024 lds", f"c{c}"),
                (f"buffer_load_dwordx4 {v(vXE)}, {srd(sX)}, {s(sT2)} offen offset:2048 lds", f"c{c}"),
                (f"buffer_load_dwordx4 {v(vXO)}, {srd(sX)}, {s(sT2)} offen offset:3072 lds", f"c{c}")]
    def ld_w(c):
        return [[f"s_mul_i32 {s(sT3)}, {s(sKC)}, {64*2688}", f"s_add_u32 m0, {s(sWL)}, {LW + c*12288}", f"s_add_u32 {s(sT3)}, {s(sT3)}, {s(sWB)}",
                 (f"buffer_load_dwordx4 {v(vW)}, {srd(sWQ)}, {s(sT3)} offen lds", f"c{c}")],
                (f"buffer_load_dwordx4 {v(vW+1)}, {srd(sWQ)}, {s(sT3)} offen offset:1024 lds", f"c{c}"),
                [(f"buffer_load_dwordx4 {v(vW+2)}, {srd(sWQ)}, {s(sT3)} offen offset:2048 lds", f"c{c}"),
                 f"s_add_u32 {s(sKC)}, {s(sKC)}, 1", f"s_cmp_eq_u32 {s(sKC)}, 7", f"s_cselect_b32 {s(sKC)}, 0, {s(sKC)}"]]
    emit(p, ld_x(0))
    for pt in range(3):
        p(f"""
        v_add_u32 {v(vT1)}, {64*pt}, v1
        v_mul_u32_u24 {v(vT2)}, 5462, {v(vT1)}
        v_lshrrev_b32 {v(vT2)}, 16, {v(vT2)}
        v_mul_u32_u24 {v(vW+pt)}, {2688 - 192}, {v(vT2)}
        v_lshl_add_u32 {v(vW+pt)}, v1, 4, {v(vW+pt)}
        """)
    p(f"""
    s_mul_i32 {s(sWB)}, {s(sCB)}, 192
    s_cmp_ge_u32 {s(sCB)}, 10
    s_cselect_b32 {s(sT0)}, 128, 0
    s_sub_u32 {s(sWB)}, {s(sWB)}, {s(sT0)}
    s_mul_i32 {s(sT0)}, {s(sWAVE)}, {16*2688}
    s_add_u32 {s(sWB)}, {s(sWB)}, {s(sT0)}
    s_mul_i32 {s(sWL)}, {s(sWAVE)}, 3072
    """)
    emit(p, ld_w(0))
    stamp(p, 8)
    p(f"""
    v_and_b32 {v(vT1)}, 31, v1
    v_lshlrev_b32 {v(vXR+3)}, 7, {v(vT1)}
    v_add_u32 {v(vXR+3)}, {s(sM0)}, {v(vXR+3)}
    v_bfe_u32 {v(vT1)}, v1, 1, 3
    v_lshrrev_b32 {v(vT2)}, 5, v1
    v_xor_b32 {v(vT1)}, {v(vT1)}, {v(vT2)}
    """)
    for sp in range(4):
        p(f"v_xor_b32 {v(vT2)}, {2*sp}, {v(vT1)}")
        p(f"v_lshl_add_u32 {v(vXR+sp)}, {v(vT2)}, 4, {v(vXR+3)}")
    for r in (vS, vQ, vCS, vCS+1, vCS+2): p(f"v_mov_b32 {v(r)}, 0")
    AHEAD = OPT.get("ahead", 2)
    for c in range(1, AHEAD): emit(p, ld_x(c)); emit(p, ld_w(c))
    stamp(p, 1)
    p(f"s_cmp_ge_u32 {s(sCB)}, 10")
    p(f"s_cbranch_scc1 L_k1_v")
    st = p.save()
    for isV in (0, 1):
        if isV:
            p.label("L_k1_v"); p.restore(st)
        tr_addr(p, vWR, 192, swap=not isV, perm_rows=False, t1=vT1, t2=vT2)
        p(f"v_add_u32 {v(vWC)}, {s(sWL)}, {v(vWR)}")
        p(f"v_add_u32 {v(vWR2)}, 49152, {v(vWR)}\nv_add_u32 {v(vWC2)}, 49152, {v(vWC)}")
        def gate(c):
            def g():
                p.wait_vm(f"c{c}"); p("s_barrier")
                if c in (3, 6): stamp(p, 3 if c == 3 else 4)
            return g
        def xreads(c):
            return [f"ds_read_b128 {v(vXF + 16*(c % 2) + 4*sp, 4)}, {v(vXR+sp)} offset:{(c % 4)*4096}" for sp in range(4)]
        def creads(c):
            base = (c % 4) * 12288; va = vWC if c < 4 else vWC2
            return [f"ds_read_b64_tr_b16 {v(vCF + 4*t + 2*h, 2)}, {v(va)} offset:{base + 64*t + 768*h}" for t in range(3) for h in range(2)]
        def wreads(sx):
            base = (sx % 16) * 3072; va = vWR if sx < 16 else vWR2
            return [f"ds_read_b64_tr_b16 {v(vWF + 12*(sx % 3) + 4*t + 2*h, 2)}, {v(va)} offset:{base + 64*t + 768*h}" for t in range(3) for h in range(2)]
        def burst(c):
            for j in range(16):
                r = vXF + 16*(c % 2) + j
                p(f"v_dot2c_f32_bf16 {v(vS)}, {s(sONES)}, {v(r)}")
                p(f"v_dot2c_f32_bf16 {v(vQ)}, {v(r)}, {v(r)}")
            for j in range(12): p(f"v_dot2c_f32_bf16 {v(vCS + j // 4)}, {s(sONES)}, {v(vCF + j)}")
        def mm(sx):
            c, sp = sx // 4, sx % 4
            xf = v(vXF + 16*(c % 2) + 4*sp, 4)
            out = []
            for t in range(3):
                wf = v(vWF + 12*(sx % 3) + 4*t, 4)
                A, B = (xf, wf) if isV else (wf, xf)
                out.append(MF(v(vACC + 16*t, 16), A, B, "0" if sx == 0 else None))
            return out
        vB2, vAU, vRR = vXF + 16, vXS + 16, vXS
        def finf(q):
            for t in range(3): half_sum(q, vCS + t, vT1)
            q(f"""
            v_and_b32 {v(vT1)}, 31, v1
            v_lshlrev_b32 {v(vT1)}, 4, {v(vT1)}
            v_add_u32 {v(vT1)}, {LSC}, {v(vT1)}
            s_lshl_b32 {s(sT0)}, {s(sWAVE)}, 2
            v_add_u32 {v(vT2)}, {s(sT0)}, {v(vT1)}
            """)
            for t in range(3): q(f"ds_write_b32 {v(vT2)}, {v(vCS+t)} offset:{t*512}")
            half_sum(q, vS, vT2); half_sum(q, vQ, vT2)
            q(f"""
            v_mul_f32 {v(vM)}, {fl(-1.0/448)}, {v(vS)}
            v_mul_f32 {v(vQ)}, {fl(1.0/448)}, {v(vQ)}
            v_fma_f32 {v(vQ)}, -{v(vM)}, {v(vM)}, {v(vQ)}
            v_max_f32 {v(vQ)}, 0, {v(vQ)}
            v_add_f32 {v(vQ)}, {fl(EPS)}, {v(vQ)}
            v_rsq_f32 {v(vR)}, {v(vQ)}
            v_cmp_lt_u32 vcc, 31, v1
            """)
            hi_or_lo(q, vB2, vM, vT2)
            if isV:
                q(f"""
                s_lshl_b32 {s(sT0)}, {s(sWAVE)}, 7
                s_add_u32 {s(sT0)}, {s(sT0)}, {LSC + 1536}
                v_and_b32 {v(vT2)}, 31, v1
                v_lshl_add_u32 {v(vT2)}, {v(vT2)}, 2, {s(sT0)}
                ds_write_b32 {v(vT2)}, {v(vR)}
                v_lshrrev_b32 {v(vT2)}, 5, v1
                v_lshl_add_u32 {v(vT2)}, {v(vT2)}, 4, {s(sT0)}
                """)
                for k in range(4): q(f"ds_read_b128 {v(vRR + 4*k, 4)}, {v(vT2)} offset:{k*32}")
            for j in range(1, 4): q(f"v_mov_b32 {v(vB2+j)}, 0")
        fin = collect(finf)
        for t in range(3):
            for j in range(1, 4): p(f"v_mov_b32 {v(vAU + 4*t + j)}, 0")
        touch2 = [[f"s_lshl_b32 {s(sT2)}, {s(sGW)}, 11", f"s_mov_b64 exec, 0xffff", f"buffer_load_dword {v(vTC+3)}, {v(vL128)}, {srd(sW2)}, {s(sT2)} offen",
                   f"s_lshl_b32 {s(sT2)}, {s(sGW)}, 9", f"s_mov_b64 exec, 0xf", f"buffer_load_dword {v(vTC+4)}, {v(vL128)}, {srd(sWO)}, {s(sT2)} offen", "s_mov_b64 exec, -1"]]
        gate(0)(); stamp(p, 2)
        emit(p, xreads(0) + creads(0) + wreads(0) + wreads(1))
        for c in range(7):
            burst(c)
            lds_ = (ld_x(c + AHEAD) + ld_w(c + AHEAD)) if c + AHEAD < 7 else (touch2 if c + AHEAD == 7 else [])
            for sp in range(4):
                sx = 4*c + sp
                fill = []
                if sp == 2 and c < 6: gate(c + 1)()
                if sx + 2 < 28: fill += wreads(sx + 2)
                if sp < 2: fill += take(lds_, 4)
                if sp == 2 and c < 6: fill += xreads(c + 1)[:2]
                if sp == 3 and c < 6: fill = xreads(c + 1)[2:] + creads(c + 1) + fill
                if c == 6:
                    if sp < 2: fill += take(fin, 14)
                    elif sp == 2: fill += take(fin, len(fin))
                    else:
                        fill += ["s_waitcnt lgkmcnt(0)", "s_barrier"] + [f"ds_read_b128 {v(vCF + 4*t, 4)}, {v(vT1)} offset:{t*512}" for t in range(3)]
                weave(p, mm(sx), fill)
        stamp(p, 5)
        for t in range(3):
            c0 = vCF + 4*t
            p(f"v_add_f32 {v(c0)}, {v(c0)}, {v(c0+1)}\nv_add_f32 {v(c0+2)}, {v(c0+2)}, {v(c0+3)}\nv_add_f32 {v(c0)}, {v(c0)}, {v(c0+2)}")
            split_hi_lo_pack(p, vAU + 4*t, c0, vT2)
            A, B = (v(vB2, 4), v(vAU + 4*t, 4)) if isV else (v(vAU + 4*t, 4), v(vB2, 4))
            mfma(p, v(vACC + 16*t, 16), A, B)
        stamp(p, 6)
        vSA = vT1
        if not isV:
            p(f"""
            v_lshlrev_b32 {v(vSA)}, 4, v1
            s_mul_i32 {s(sT0)}, {s(sRT)}, {112*512}
            s_mul_i32 {s(sT1)}, {s(sCB)}, {3*4*512}
            s_add_u32 {s(sT0)}, {s(sT0)}, {s(sT1)}
            s_mul_i32 {s(sXB)}, {s(sCB)}, 3
            """)
            for t in range(3):
                if t > 0:
                    p(f"s_cmp_ge_u32 {s(sXB)}, {28 - t}")
                    p(f"s_cbranch_scc1 L_end_{name}")
                p(f"s_cmp_lt_u32 {s(sXB)}, {14 - t}")
                p(f"s_cselect_b32 {s(sT1)}, {fl(28**-0.5 * LOG2E)}, 1.0")
                p(f"v_mul_f32 {v(vM)}, {s(sT1)}, {v(vR)}")
                acc = vACC + 16*t
                for j in range(8): p(f"v_pk_mul_f32 {v(acc+2*j, 2)}, {v(acc+2*j, 2)}, {v(vM, 2)} op_sel_hi:[1,0]")
                for j in range(8): p(f"v_cvt_pk_bf16_f32 {v(acc+j)}, {v(acc+2*j)}, {v(acc+2*j+1)}")
                for m in range(2):
                    p(f"buffer_store_dwordx4 {v(acc+4*m, 4)}, {v(vSA)}, {srd(sWS)}, {s(sT0)} offen offset:{m*1024} {K1ST}")
                p(f"s_add_u32 {s(sT0)}, {s(sT0)}, 2048")
            p(f"s_branch L_end_{name}")
        else:
            p(f"""
            v_lshrrev_b32 {v(vSA)}, 5, v1
            v_mul_u32_u24 {v(vSA)}, {448*16 - 512}, {v(vSA)}
            v_lshl_add_u32 {v(vSA)}, v1, 4, {v(vSA)}
            s_mul_i32 {s(sT0)}, {s(sRT)}, {4*448*16}
            s_mul_i32 {s(sT1)}, {s(sCB)}, {3*512}
            s_add_u32 {s(sT0)}, {s(sT0)}, {s(sT1)}
            s_add_u32 {s(sT0)}, {s(sT0)}, {WS_V - 10*3*512}
            s_add_u32 {s(sT1)}, {s(sT0)}, {2*448*16}
            """)
            for t in range(3):
                if t == 2:
                    p(f"s_cmp_ge_u32 {s(sCB)}, 14")
                    p(f"s_cbranch_scc1 L_end_{name}")
                acc = vACC + 16*t
                for j in range(8): p(f"v_pk_mul_f32 {v(acc+2*j, 2)}, {v(acc+2*j, 2)}, {v(vRR+2*j, 2)}")
                for j in range(8): p(f"v_cvt_pk_bf16_f32 {v(acc+j)}, {v(acc+2*j)}, {v(acc+2*j+1)}")
                p(f"buffer_store_dwordx4 {v(acc, 4)}, {v(vSA)}, {srd(sWS)}, {s(sT0)} offen offset:{t*512} {K1ST}")
                p(f"buffer_store_dwordx4 {v(acc+4, 4)}, {v(vSA)}, {srd(sWS)}, {s(sT1)} offen offset:{t*512} {K1ST}")
            p(f"s_branch L_end_{name}")
    p.label("L_k1_aux"); p.restore(st_aux)
    vA, vD, vSM, vB = 3, 16, 4, 128
    vT1, vT2, vT3 = 12, 13, 14
    p(f"""
    s_lshl_b32 {s(sT0)}, {s(sR)}, 2
    s_add_u32 {s(sT0)}, {s(sT0)}, {s(sWAVE)}
    s_lshl_b32 {s(sT0)}, {s(sT0)}, 13
    s_add_u32 {s(sT0)}, {s(sT0)}, {WS_FL}
    v_mov_b32 {v(vT2)}, 0
    buffer_store_dword {v(vT2)}, {v(vL128)}, {srd(sWS)}, {s(sT0)} offen
    s_cmp_ge_u32 {s(sR)}, 14
    s_cbranch_scc1 L_end_{name}
    v_lshrrev_b32 {v(vT1)}, 3, v1
    v_mul_u32_u24 {v(vA)}, 3584, {v(vT1)}
    v_and_b32 {v(vT1)}, 7, v1
    v_lshl_add_u32 {v(vA)}, {v(vT1)}, 4, {v(vA)}
    s_lshr_b32 {s(sT1)}, {s(sWAVE)}, 1
    s_lshl_b32 {s(sT0)}, {s(sR)}, 1
    s_add_u32 {s(sXB)}, {s(sT0)}, {s(sT1)}
    s_lshl_b32 {s(sT0)}, {s(sXB)}, 7
    s_and_b32 {s(sT1)}, {s(sWAVE)}, 1
    s_mul_i32 {s(sT1)}, {s(sT1)}, {224*3584}
    s_add_u32 {s(sT0)}, {s(sT0)}, {s(sT1)}
    v_and_b32 {v(vT1)}, 19, v1
    v_bfe_u32 {v(vT2)}, v1, 2, 1
    v_lshl_add_u32 {v(vT1)}, {v(vT2)}, 3, {v(vT1)}
    v_bfe_u32 {v(vT2)}, v1, 3, 1
    v_lshl_add_u32 {v(vT3)}, {v(vT2)}, 2, {v(vT1)}
    v_lshlrev_b32 {v(vT1)}, 1, {v(vT3)}
    s_lshl_b32 {s(sT2)}, {s(sR)}, 2
    s_add_u32 {s(sT2)}, {s(sT2)}, {s(sWAVE)}
    s_lshl_b32 {s(sT3)}, {s(sT2)}, 6
    buffer_load_ushort {v(vB+1)}, {v(vT1)}, {srd(sB1)}, {s(sT3)} offen
    """)
    for j in range(8): p(f"v_mov_b32 {v(vSM+j)}, 0")
    def auxld(i):
        p(f"buffer_load_dwordx4 {v(vD + 4*i, 4)}, {v(vA)}, {srd(sW1)}, {s(sT0)} offen")
        p(f"s_add_u32 {s(sT0)}, {s(sT0)}, {8*3584}")
    for i in range(10): auxld(i)
    for i in range(28):
        if i + 10 < 28: auxld(i + 10)
        for j in range(4):
            r = vD + 4*i + j
            p(f"v_lshlrev_b32 {v(vT1)}, 16, {v(r)}\nv_and_b32 {v(vT2)}, 0xffff0000, {v(r)}")
            p(f"v_pk_add_f32 {v(vSM+2*j, 2)}, {v(vSM+2*j, 2)}, {v(vT1, 2)}")
    p(f"""
    s_lshl_b32 {s(sT0)}, {s(sWAVE)}, 11
    v_lshl_add_u32 {v(vT1)}, v1, 5, {s(sT0)}
    ds_write_b128 {v(vT1)}, {v(vSM, 4)}
    ds_write_b128 {v(vT1)}, {v(vSM+4, 4)} offset:16
    s_waitcnt lgkmcnt(0)
    s_barrier
    s_lshr_b32 {s(sT0)}, {s(sWAVE)}, 1
    s_lshl_b32 {s(sT0)}, {s(sT0)}, 12
    s_and_b32 {s(sT1)}, {s(sWAVE)}, 1
    s_lshl_b32 {s(sT1)}, {s(sT1)}, 7
    s_add_u32 {s(sT0)}, {s(sT0)}, {s(sT1)}
    v_lshl_add_u32 {v(vT1)}, {v(vT3)}, 2, {s(sT0)}
    v_lshrrev_b32 {v(vT2)}, 5, v1
    v_lshl_add_u32 {v(vT1)}, {v(vT2)}, 11, {v(vT1)}
    """)
    for k in range(8): p(f"ds_read_b32 {v(vD+k)}, {v(vT1)} offset:{k*256}")
    for k in range(1, 8): p(f"v_add_f32 {v(vD)}, {v(vD)}, {v(vD+k)}")
    half_sum(p, vD, vT1)
    split_hi_lo_pack(p, vB, vD, vT1)
    p(f"""
    v_mov_b32 {v(vB+2)}, 0
    v_mov_b32 {v(vB+3)}, 0
    v_lshlrev_b32 {v(vT1)}, 4, v1
    s_lshl_b32 {s(sT0)}, {s(sT2)}, 10
    s_add_u32 {s(sT0)}, {s(sT0)}, {WS_AU}
    buffer_store_dwordx4 {v(vB, 4)}, {v(vT1)}, {srd(sWS)}, {s(sT0)} offen
    """)
    stamp(p, 12)
    epilogue(p, name, 0)
    return name, 208, 0, 163840

def K2(p):
    name = "k2_kernel"
    prologue(p, name, [sWS, sX, sWO, sW1, sW2, sB2, sOUT])
    sH, sR, sT0, sT1, sT2, sT3 = 46, 47, 48, 49, 50, 51
    sG, sM = sH, sR
    sKB, sVB, sCNT, sEX, sDS, sDL = 52, 53, 54, 56, 58, 59
    sC7, sRT0, sRT3, sCT, sKH = 60, 61, 62, 63, 55
    LH0, LH1, LA = 0, 57344, 114688
    LWO, LEX = 105472, 89088
    vL16, vT1, vT2, vT3, vT4 = 2, 3, 4, 5, 6
    vVA, vVA2, vD9, vZ = 7, 8, 10, 11
    vQF, vSB, vPB, vRD = 12, 44, 76, 92
    vXV, vHV, vBV, vAU = 140, 148, 156, 164
    vOne, vXA = 180, 181
    vDW = 224
    aO, aKV = 0, 64
    NB = 4
    p(f"""
    s_and_b32 {s(sT0)}, s2, 7
    s_lshl_b32 {s(sT0)}, {s(sT0)}, 1
    s_bfe_u32 {s(sT1)}, s2, 0x10003
    s_add_u32 {s(sH)}, {s(sT0)}, {s(sT1)}
    s_lshr_b32 {s(sR)}, s2, 4
    v_lshlrev_b32 {v(vL16)}, 4, v1
    v_lshrrev_b32 {v(vT1)}, 5, v1
    v_mul_u32_u24 {v(vVA)}, {448*16 - 512}, {v(vT1)}
    v_add_u32 {v(vVA)}, {v(vVA)}, {v(vL16)}
    v_add_u32 {v(vVA2)}, {2*448*16}, {v(vVA)}
    s_mul_i32 {s(sT0)}, {s(sH)}, 7
    s_lshr_b32 {s(sT0)}, {s(sT0)}, 1
    s_lshl_b32 {s(sT0)}, {s(sT0)}, 9
    s_mul_i32 {s(sT1)}, {s(sR)}, {4*112*512}
    s_add_u32 {s(sT1)}, {s(sT1)}, {s(sT0)}
    s_mul_i32 {s(sKB)}, {s(sWAVE)}, {16*112*512}
    s_add_u32 {s(sKB)}, {s(sKB)}, {s(sT0)}
    s_add_u32 {s(sKB)}, {s(sKB)}, {WS_QK + 56*512}
    s_mul_i32 {s(sVB)}, {s(sWAVE)}, {16*4*448*16}
    s_mul_i32 {s(sT0)}, {s(sH)}, 448
    s_add_u32 {s(sVB)}, {s(sVB)}, {s(sT0)}
    s_add_u32 {s(sVB)}, {s(sVB)}, {WS_V}
    s_mov_b32 {s(sEX)}, 0x0fffffff
    s_mov_b32 {s(sEX+1)}, 0x0fffffff
    v_mov_b32 {v(vT1)}, {s(sONES)}
    """)
    for j in range(8): p(f"v_accvgpr_write_b32 {a(aKV + 8 + j)}, {v(vT1)}")
    p("s_waitcnt lgkmcnt(0)")
    def ldk(b):
        return [f"buffer_load_dwordx4 {a(aKV + 16*b, 4)}, {v(vL16)}, {srd(sWS)}, {s(sKB)} offen",
                f"buffer_load_dwordx4 {a(aKV + 16*b + 4, 4)}, {v(vL16)}, {srd(sWS)}, {s(sKB)} offen offset:1024",
                f"s_add_u32 {s(sKB)}, {s(sKB)}, {112*512}"]
    def ldv(b):
        return [f"s_mov_b64 exec, {s(sEX,2)}",
                f"buffer_load_dwordx4 {a(aKV + 16*b + 8, 4)}, {v(vVA)}, {srd(sWS)}, {s(sVB)} offen",
                f"buffer_load_dwordx4 {a(aKV + 16*b + 12, 4)}, {v(vVA2)}, {srd(sWS)}, {s(sVB)} offen",
                f"s_mov_b64 exec, -1", f"s_add_u32 {s(sVB)}, {s(sVB)}, {4*448*16}"]
    def ldq(t):
        return [f"buffer_load_dwordx4 {v(vQF + 8*t + 4*sx, 4)}, {v(vL16)}, {srd(sWS)}, {s(sT1)} offen offset:{sx*1024}" for sx in range(2)] + [f"s_add_u32 {s(sT1)}, {s(sT1)}, {112*512}"]
    emit(p, ldq(0) + ldk(0) + ldq(1) + ldv(0) + ldq(2) + ldq(3))
    for b in range(1, NB):
        for j in range(8): p(f"v_accvgpr_write_b32 {a(aKV + 16*b + 8 + j)}, {v(vT1)}")
    p(f"""
    s_and_b32 {s(sT0)}, {s(sH)}, 1
    s_cmp_eq_u32 {s(sT0)}, 1
    s_cselect_b32 {s(sT0)}, 0, -1
    s_cselect_b32 {s(sT1)}, -1, 0
    v_cmp_lt_u32 vcc, 31, v1
    v_mov_b32 {v(vT1)}, {s(sT0)}
    v_mov_b32 {v(vT2)}, {s(sT1)}
    v_cndmask_b32 {v(vT3)}, {v(vT1)}, -1, vcc
    v_cndmask_b32 {v(vT4)}, -1, {v(vT2)}, vcc
    s_cmp_ge_u32 {s(sM)}, 7
    s_cselect_b32 {s(sT1)}, 2, 0
    s_cselect_b32 {s(sT0)}, 7, 0
    s_sub_u32 {s(sC7)}, {s(sM)}, {s(sT0)}
    s_lshl_b32 {s(sRT0)}, {s(sG)}, 2
    s_add_u32 {s(sRT0)}, {s(sRT0)}, {s(sT1)}
    s_lshr_b32 {s(sT0)}, {s(sWAVE)}, 1
    s_add_u32 {s(sRT3)}, {s(sRT0)}, {s(sT0)}
    s_and_b32 {s(sKH)}, {s(sWAVE)}, 1
    s_lshl_b32 {s(sCT)}, {s(sC7)}, 1
    s_add_u32 {s(sCT)}, {s(sCT)}, {s(sKH)}
    v_and_b32 {v(vT1)}, 31, v1
    v_mul_u32_u24 {v(vXA)}, 896, {v(vT1)}
    v_lshrrev_b32 {v(vT1)}, 5, v1
    v_lshlrev_b32 {v(vRD)}, 4, {v(vT1)}
    v_add_u32 {v(vXA)}, {v(vRD)}, {v(vXA)}
    s_mul_i32 {s(sT0)}, {s(sRT3)}, {32*896}
    s_lshl_b32 {s(sT1)}, {s(sCT)}, 6
    s_add_u32 {s(sT0)}, {s(sT0)}, {s(sT1)}
    v_add_u32 {v(vXA)}, {s(sT0)}, {v(vXA)}
    v_add_u32 {v(vRD)}, {s(sT1)}, {v(vRD)}
    v_mov_b32 {v(vZ)}, 0
    v_mov_b32 {v(vOne)}, 1
    """)
    dma128_addr(p, vDW, 3584, vT1, vT2)
    dma128_addr(p, vD9, 896, vT1, vT2)
    for k in range(1, 4): p(f"v_add_u32 {v(vDW+k)}, {k*(8*3584 - 1024)}, {v(vDW)}")
    emit(p, ldk(1) + ldv(1))
    p(f"s_lshl_b32 {s(sDS)}, {s(sM)}, 7")
    def w1grp(i):
        head = [f"s_add_u32 {s(sT2)}, {s(sWAVE)}, {4*i}", f"s_lshl_b32 m0, {s(sT2)}, 12", f"s_mul_i32 {s(sT3)}, {s(sT2)}, {32*3584}", f"s_add_u32 {s(sT3)}, {s(sT3)}, {s(sDS)}"]
        if i >= 3:
            head += [f"s_cmp_ge_u32 {s(sT2)}, 14", f"s_cselect_b32 {s(sT2)}, {448*3584 - 1792}, 0", f"s_sub_u32 {s(sT3)}, {s(sT3)}, {s(sT2)}"]
        ld = [(f"buffer_load_dwordx4 {v(vDW+k)}, {srd(sW1)}, {s(sT3)} offen offset:{k*1024} lds", f"w1_{i}") for k in range(4)]
        return [head + [ld[0]]] + ld[1:]
    stamp(p, 1)
    def qmask(t):
        q = vQF + 8*t
        return [f"v_and_b32 {v(q+j)}, {v(vT3)}, {v(q+j)}" for j in (0, 1)] + [f"v_and_b32 {v(q+j)}, {v(vT4)}, {v(q+j)}" for j in (6, 7)]
    def smf(n, half):
        return MF(v(vSB + 16*(n % 2), 16), a(aKV + 16*((n // 4) % NB) + 4*half, 4), v(vQF + 8*(n % 4) + 4*half, 4), "0" if half == 0 else None)
    def pvmf(n, half):
        return MF(a(aO + 16*(n % 4), 16), a(aKV + 16*((n // 4) % NB) + 8 + 4*half, 4), v(vPB + 8*(n % 2) + 4*half, 4), "0" if (n < 4 and half == 0) else None)
    def expcvt(n, qd):
        S = vSB + 16*(n % 2) + 4*qd
        for j in range(4): p(f"v_exp_f32 {v(S+j)}, {v(S+j)}")
        for j in range(2): p(f"v_cvt_pk_bf16_f32 {v(vPB + 8*(n % 2) + 2*qd + j)}, {v(S+2*j)}, {v(S+2*j+1)}")
    emit(p, qmask(0)); p(smf(0, 0)); p(smf(0, 1)); emit(p, qmask(1))
    stamp(p, 2)
    side = {n: [] for n in range(64)}
    side[0] += qmask(2) + ldk(2) + ldv(2); side[1] += qmask(3)
    side[2] += ldk(3) + ldv(3)
    for st in range(1, 13): side[4*st] += ldk((st + 3) % NB) + ldv((st + 3) % NB)
    jobs = []
    for i in range(5): jobs += w1grp(i)
    misc = [[f"buffer_load_dwordx4 {v(vXV, 4)}, {v(vXA)}, {srd(sX)}, 0 offen", f"buffer_load_dwordx4 {v(vXV+4, 4)}, {v(vXA)}, {srd(sX)}, 0 offen offset:32"],
            [f"buffer_load_dwordx4 {v(vBV, 4)}, {v(vRD)}, {srd(sB2)}, 0 offen", f"buffer_load_dwordx4 {v(vBV+4, 4)}, {v(vRD)}, {srd(sB2)}, 0 offen offset:32"],
            [f"s_lshl_b32 {s(sT0)}, {s(sM)}, 11", f"s_add_u32 {s(sT0)}, {s(sT0)}, {WS_AU}",
             f"buffer_load_dwordx4 {v(vAU, 4)}, {v(vL16)}, {srd(sWS)}, {s(sT0)} offen", f"buffer_load_dwordx4 {v(vAU+4, 4)}, {v(vL16)}, {srd(sWS)}, {s(sT0)} offen offset:1024"],
            [f"s_add_u32 {s(sT0)}, {s(sT0)}, {28*1024}",
             f"buffer_load_dwordx4 {v(vAU+8, 4)}, {v(vL16)}, {srd(sWS)}, {s(sT0)} offen", f"buffer_load_dwordx4 {v(vAU+12, 4)}, {v(vL16)}, {srd(sWS)}, {s(sT0)} offen offset:1024"],
            [f"s_min_u32 {s(sT2)}, {s(sWAVE)}, 2", f"s_mul_i32 {s(sT0)}, {s(sT2)}, {24*896}", f"s_lshl_b32 {s(sT1)}, {s(sC7)}, 7", f"s_add_u32 {s(sT0)}, {s(sT0)}, {s(sT1)}",
             f"s_mul_i32 {s(sT2)}, {s(sT2)}, 3072"]]
    for i in range(3):
        misc.append([f"s_add_u32 m0, {s(sT2)}, {LWO + i*1024}", f"s_add_u32 {s(sT1)}, {s(sT0)}, {i*8*896}", f"buffer_load_dwordx4 {v(vD9)}, {srd(sWO)}, {s(sT1)} offen lds"])
    slots = [n for n in range(5, 52) if n % 4 in (1, 3)]
    for k, j in enumerate(jobs): side[slots[k]].append(j)
    for k, j in enumerate(misc): side[50 + k].append(j)
    for n in range(64):
        if n + 1 < 64: p(smf(n + 1, 0))
        expcvt(n, 0)
        if n + 1 < 64: p(smf(n + 1, 1))
        expcvt(n, 1)
        if n >= 1: p(pvmf(n - 1, 0))
        expcvt(n, 2)
        if n >= 1: p(pvmf(n - 1, 1))
        emit(p, side[n])
        expcvt(n, 3)
    stamp(p, 3)
    p(pvmf(63, 0)); p(pvmf(63, 1))
    for t in range(4):
        p(f"""
        s_sub_u32 {s(sT0)}, {s(sWAVE)}, {t + 1}
        s_and_b32 {s(sT0)}, {s(sT0)}, 3
        s_cmp_eq_u32 {s(sT0)}, 3
        s_cbranch_scc1 L_red_own{t}
        s_lshl_b32 {s(sT0)}, {s(sT0)}, 12
        s_add_u32 {s(sT0)}, {s(sT0)}, {LA + t*12288}
        v_add_u32 {v(vT1)}, {s(sT0)}, {v(vL16)}
        """)
        for q in range(4): p(f"ds_write_b128 {v(vT1)}, {a(aO + 16*t + 4*q, 4)} offset:{q*1024}")
        p(f"s_branch L_red_nx{t}")
        p.label(f"L_red_own{t}")
        for j in range(16): p(f"v_accvgpr_read_b32 {v(vSB + j)}, {a(aO + 16*t + j)}")
        p.label(f"L_red_nx{t}")
    p(f"""
    s_mul_i32 {s(sT2)}, {s(sWAVE)}, 12288
    s_add_u32 {s(sT2)}, {s(sT2)}, {LA}
    v_add_u32 {v(vT2)}, {s(sT2)}, {v(vL16)}
    v_cmp_lt_u32 vcc, 31, v1
    s_lshl_b32 {s(sT0)}, {s(sR)}, 2
    s_add_u32 {s(sT0)}, {s(sT0)}, {s(sWAVE)}
    s_lshl_b32 {s(sT0)}, {s(sT0)}, 4
    s_add_u32 {s(sT0)}, {s(sT0)}, {s(sH)}
    s_lshl_b32 {s(sT1)}, {s(sT0)}, 7
    s_add_u32 {s(sT1)}, {s(sT1)}, {FB}
    s_lshl_b32 {s(sT0)}, {s(sT0)}, 11
    s_add_u32 {s(sT0)}, {s(sT0)}, {WS_O}
    s_waitcnt vmcnt(0) lgkmcnt(0)
    s_barrier
    """)
    stamp(p, 4)
    vO = vSB
    for w in range(3):
        for q in range(4): p(f"ds_read_b128 {v(vRD + 16*w + 4*q, 4)}, {v(vT2)} offset:{w*4096 + q*1024}")
    for w in range(3):
        for j in range(8): p(f"v_pk_add_f32 {v(vO+2*j, 2)}, {v(vO+2*j, 2)}, {v(vRD + 16*w + 2*j, 2)}")
    p(f"""
    v_mov_b32 {v(vT1)}, {v(vO+12)}
    v_mov_b32 {v(vT2)}, {v(vO+12)}
    v_permlane32_swap_b32 {v(vT1)}, {v(vT2)}
    v_rcp_f32 {v(vT2)}, {v(vT2)}
    """)
    for j in range(8): p(f"v_pk_mul_f32 {v(vO+2*j, 2)}, {v(vO+2*j, 2)}, {v(vT2, 2)} op_sel_hi:[1,0]")
    for j in range(8): p(f"v_cvt_pk_bf16_f32 {v(vO+j)}, {v(vO+2*j)}, {v(vO+2*j+1)}")
    for j in (6, 7): p(f"v_cndmask_b32 {v(vO+j)}, {v(vO+j)}, 0, vcc")
    p(f"buffer_store_dwordx4 {v(vO, 4)}, {v(vL16)}, {srd(sWS)}, {s(sT0)} offen sc1", tag="ost")
    p(f"buffer_store_dwordx4 {v(vO+4, 4)}, {v(vL16)}, {srd(sWS)}, {s(sT0)} offen offset:1024 sc1", tag="ost")
    vA0, vA1, vPA, vP = 12, 13, 14, 15
    vWF, vACC = 16, 96
    tr_addr(p, vA0, 128, swap=True, perm_rows=True, t1=vT1, t2=vT2, xor128=True)
    p(f"""
    s_mul_i32 {s(sT0)}, {s(sKH)}, {8*28*128}
    s_add_u32 {s(sT0)}, {s(sT0)}, {LWO}
    v_add_u32 {v(vA0)}, {s(sT0)}, {v(vA0)}
    s_lshl_b32 {s(sT0)}, {s(sKH)}, 6
    v_xor_b32 {v(vA0)}, {s(sT0)}, {v(vA0)}
    v_xor_b32 {v(vA1)}, 64, {v(vA0)}
    v_and_b32 {v(vPA)}, 7, v1
    v_lshlrev_b32 {v(vPA)}, 7, {v(vPA)}
    """)
    for j in range(8):
        p(f"v_lshlrev_b32 {v(vACC+2*j)}, 16, {v(vXV+j)}")
        p(f"v_and_b32 {v(vACC+2*j+1)}, 0xffff0000, {v(vXV+j)}")
    p(f"""
    s_mul_i32 {s(sT0)}, {s(sWAVE)}, {96*896}
    s_lshl_b32 {s(sT3)}, {s(sC7)}, 7
    s_add_u32 {s(sT0)}, {s(sT0)}, {s(sT3)}
    s_add_u32 {s(sT0)}, {s(sT0)}, {72*896}
    """)
    def wod(i):
        p(f"s_add_u32 m0, {s(sT2)}, {i*1024}")
        p(f"s_add_u32 {s(sT3)}, {s(sT0)}, {i*8*896}")
        p(f"buffer_load_dwordx4 {v(vD9)}, {srd(sWO)}, {s(sT3)} offen lds")
    for i in range(6): wod(i)
    p.wait_vm("ost")
    setflag(p, vOne, vZ, sT1)
    stamp(p, 5)
    p(f"s_cmp_ge_u32 {s(sM)}, 14\ns_cbranch_scc1 L_end_{name}")
    for i in range(6, 12): wod(i)
    p(f"""
    s_lshl_b32 {s(sT0)}, {s(sRT3)}, 11
    s_lshl_b32 {s(sT1)}, {s(sKH)}, 10
    s_add_u32 {s(sT0)}, {s(sT0)}, {s(sT1)}
    s_add_u32 {s(sT0)}, {s(sT0)}, {FB}
    s_xor_b32 {s(sT1)}, {s(sWAVE)}, 1
    s_lshl_b32 {s(sT1)}, {s(sT1)}, 12
    s_add_u32 {s(sT1)}, {s(sT1)}, {LEX}
    v_add_u32 {v(vT1)}, {s(sT1)}, {v(vL16)}
    s_lshl_b32 {s(sT1)}, {s(sWAVE)}, 12
    s_add_u32 {s(sT1)}, {s(sT1)}, {LEX}
    v_add_u32 {v(vT2)}, {s(sT1)}, {v(vL16)}
    s_lshl_b32 {s(sT2)}, {s(sRT3)}, 15
    s_lshl_b32 {s(sT1)}, {s(sKH)}, 14
    s_add_u32 {s(sT2)}, {s(sT2)}, {s(sT1)}
    s_add_u32 {s(sT2)}, {s(sT2)}, {WS_O}
    s_waitcnt vmcnt(0)
    s_barrier
    """)
    def reads3(f):
        base = (28*(f // 2) + 16*(f % 2)) * 128
        return [f"ds_read_b64_tr_b16 {v(vWF + 8*(f % 3) + 4*ct + 2*h, 2)}, {v(va)} offset:{base + h*1024}" for ct, va in ((1, vA1), (0, vA0)) for h in range(2)]
    emit(p, reads3(0) + reads3(1))
    poll(p, vP, vPA, sT0, sCNT, "pollB")
    stamp(p, 6)
    aOF = 0
    def old(f):
        r = [f"buffer_load_dwordx4 {a(aOF + 4*f, 4)}, {v(vL16)}, {srd(sWS)}, {s(sT2)} offen offset:{(f % 4)*1024} sc1"]
        if f % 4 == 3: r.append(f"s_add_u32 {s(sT2)}, {s(sT2)}, 4096")
        return r
    PF = 8
    for f in range(PF): emit(p, old(f))
    ep3 = collect(lambda q: q(f"""
    s_mul_i32 {s(sT0)}, {s(sRT3)}, {56*512}
    s_lshl_b32 {s(sT1)}, {s(sCT)}, 11
    s_add_u32 {s(sT0)}, {s(sT0)}, {s(sT1)}
    s_add_u32 {s(sT0)}, {s(sT0)}, {WS_H}
    s_mul_i32 {s(sT2)}, {s(sRT3)}, {14*256}
    s_lshl_b32 {s(sT1)}, {s(sCT)}, 8
    s_add_u32 {s(sT2)}, {s(sT2)}, {s(sT1)}
    s_add_u32 {s(sT2)}, {s(sT2)}, {WS_ST}
    s_lshl_b32 {s(sT3)}, {s(sRT3)}, 4
    s_add_u32 {s(sT3)}, {s(sT3)}, {s(sCT)}
    s_lshl_b32 {s(sT3)}, {s(sT3)}, 7
    s_add_u32 {s(sT3)}, {s(sT3)}, {FC}
    v_mov_b32 v40, 0
    v_mov_b32 v41, 0
    v_lshlrev_b32 {v(vT3)}, 3, v1
    """))
    for f in range(16):
        fill = []
        if f + PF < 16: fill.append(old(f + PF))
        if f + 2 < 16: fill += reads3(f + 2)
        if f >= 10: fill += take(ep3, 3)
        weave(p, [MF(v(vACC + 16, 16), v(vWF + 8*(f % 3) + 4, 4), a(aOF + 4*f, 4), "0" if f == 0 else None),
                  MF(v(vACC, 16), v(vWF + 8*(f % 3), 4), a(aOF + 4*f, 4))], fill)
    stamp(p, 7)
    for q in range(4): p(f"ds_write_b128 {v(vT1)}, {v(vACC + 16 + 4*q, 4)} offset:{q*1024}")
    p("s_waitcnt lgkmcnt(0)\ns_barrier")
    vR3 = 44
    for q in range(4): p(f"ds_read_b128 {v(vR3 + 4*q, 4)}, {v(vT2)} offset:{q*1024}")
    for j in range(8): p(f"v_pk_add_f32 {v(vACC+2*j, 2)}, {v(vACC+2*j, 2)}, {v(vR3+2*j, 2)}")
    for j in range(8): p(f"v_cvt_pk_bf16_f32 {v(vHV+j)}, {v(vACC+2*j)}, {v(vACC+2*j+1)}")
    p(f"""
    buffer_store_dwordx4 {v(vHV, 4)}, {v(vL16)}, {srd(sWS)}, {s(sT0)} offen sc1
    buffer_store_dwordx4 {v(vHV+4, 4)}, {v(vL16)}, {srd(sWS)}, {s(sT0)} offen offset:1024 sc1
    """)
    for j in range(8):
        p(f"v_dot2c_f32_bf16 v40, {s(sONES)}, {v(vHV+j)}")
        p(f"v_dot2c_f32_bf16 v41, {v(vHV+j)}, {v(vHV+j)}")
    half_sum(p, 40, vT1); half_sum(p, 41, vT1)
    p(f"s_mov_b32 exec_hi, 0")
    p(f"buffer_store_dwordx2 v[40:41], {v(vT3)}, {srd(sWS)}, {s(sT2)} offen sc1", tag="hst")
    p(f"s_mov_b64 exec, -1")
    sFC = sKB
    p(f"s_mov_b32 {s(sFC)}, {s(sT3)}")
    p("s_barrier")
    emit(p, w1grp(5))
    p.wait_vm("hst")
    setflag(p, vOne, vZ, sFC)
    stamp(p, 8)
    emit(p, w1grp(6))
    sW2B, sRT4 = sKB, sDS
    def w2slot(ks):
        if ks >= 20: ks -= 20
        if ks < 6: return LA, 12288, ks * 2048
        if ks < 13: return LH0, 14336, (ks - 6) * 2048
        return LH1, 14336, (ks - 13) * 2048
    sLA_, sLB_ = sVB, sEX
    vD9b = 9
    p(f"""
    s_mul_i32 {s(sW2B)}, {s(sWAVE)}, {224*896}
    s_lshl_b32 {s(sT1)}, {s(sC7)}, 7
    s_add_u32 {s(sW2B)}, {s(sW2B)}, {s(sT1)}
    s_mul_i32 {s(sLA_)}, {s(sWAVE)}, 12288
    s_mul_i32 {s(sLB_)}, {s(sWAVE)}, 14336
    v_add_u32 {v(vD9b)}, {8*896 - 1024}, {v(vD9)}
    """)
    def w2dma(ks):
        base, wstride, off = w2slot(ks)
        sb = sLA_ if wstride == 12288 else sLB_
        row = 16*ks if ks < 14 else 896 + 16*(ks - 14)
        return [[f"s_add_u32 m0, {s(sb)}, {base + off}", f"s_add_u32 {s(sT3)}, {s(sW2B)}, {row*896}",
                 (f"buffer_load_dwordx4 {v(vD9)}, {srd(sW2)}, {s(sT3)} offen lds", f"w2_{ks}"),
                 (f"buffer_load_dwordx4 {v(vD9b)}, {srd(sW2)}, {s(sT3)} offen offset:1024 lds", f"w2_{ks}")]]
    for ks in range(6): emit(p, w2dma(ks))
    vA, vPA, vP = 184, 188, 189
    vK1, vK2, vSD, vTK = 190, 192, 194, 196
    vSTt, vG = 200, 216
    vWF, vACC = 12, 48
    tr_addr(p, vA, 128, swap=True, perm_rows=False, t1=vT1, t2=vT2, xor128=True)
    p(f"""
    v_xor_b32 {v(vA+1)}, 64, {v(vA)}
    v_add_u32 {v(vA+2)}, {LH1}, {v(vA)}
    v_add_u32 {v(vA+3)}, {LH1}, {v(vA+1)}
    v_min_u32 {v(vPA)}, 13, v1
    v_lshlrev_b32 {v(vPA)}, 7, {v(vPA)}
    s_lshl_b32 {s(sRT4)}, {s(sG)}, 2
    s_add_u32 {s(sRT4)}, {s(sRT4)}, {s(sWAVE)}
    s_lshl_b32 {s(sT0)}, {s(sRT4)}, 11
    s_add_u32 {s(sT0)}, {s(sT0)}, {FC}
    s_mul_i32 {s(sT2)}, {s(sRT4)}, {56*512}
    s_add_u32 {s(sT2)}, {s(sT2)}, {WS_H}
    s_mul_i32 {s(sT1)}, {s(sRT4)}, {14*256}
    s_add_u32 {s(sT1)}, {s(sT1)}, {WS_ST}
    """)
    WD = 4
    def reads4(sx, hb):
        return [f"ds_read_b64_tr_b16 {v(vWF + 8*(sx % WD) + 4*k + 2*h, 2)}, {v(vA + 2*hb + k)} offset:{sx*2048 + 512*h}" for k in range(2) for h in range(2)]
    for sx in range(3): emit(p, reads4(sx, 0))
    poll(p, vP, vPA, sT0, sCNT, "pollC")
    stamp(p, 9)
    aHF = 0
    def hld(f):
        r = [f"buffer_load_dwordx4 {a(aHF + 4*f, 4)}, {v(vL16)}, {srd(sWS)}, {s(sT2)} offen offset:{(f % 4)*1024} sc1"]
        if f % 4 == 3: r.append(f"s_add_u32 {s(sT2)}, {s(sT2)}, 4096")
        return r
    for f in range(PF): emit(p, hld(f))
    stl = [f"buffer_load_dwordx2 {v(vSTt + 2*j, 2)}, {v(vT3)}, {srd(sWS)}, {s(sT1)} offen offset:{j*512} sc1" for j in range(7)]
    k1 = -2.0 * math.sqrt(2.0 / math.pi) * LOG2E
    k2 = k1 * 0.044715
    vM, vV = vSTt + 2, vSTt + 3
    def statf(q):
        for j in range(1, 7):
            q(f"v_add_f32 {v(vSTt)}, {v(vSTt)}, {v(vSTt+2*j)}\nv_add_f32 {v(vSTt+1)}, {v(vSTt+1)}, {v(vSTt+2*j+1)}")
        half_sum(q, vSTt, vT1); half_sum(q, vSTt + 1, vT1)
        q(f"""
        v_mul_f32 {v(vM)}, {fl(-1.0/448)}, {v(vSTt)}
        v_mul_f32 {v(vV)}, {fl(1.0/448)}, {v(vSTt+1)}
        v_fma_f32 {v(vV)}, -{v(vM)}, {v(vM)}, {v(vV)}
        v_max_f32 {v(vV)}, 0, {v(vV)}
        v_add_f32 {v(vT1)}, {fl(EPS)}, {v(vV)}
        v_fmamk_f32 {v(vT1)}, {v(vT1)}, {fl(EPS)}, {v(vV)}
        v_rsq_f32 {v(vT2)}, {v(vT1)}
        v_sqrt_f32 {v(vSD)}, {v(vT1)}
        v_mul_f32 {v(vK1)}, {fl(k1)}, {v(vT2)}
        v_mul_f32 {v(vK2)}, {v(vT2)}, {v(vT2)}
        v_mul_f32 {v(vK2)}, {v(vK2)}, {v(vT2)}
        v_mul_f32 {v(vK2)}, {fl(k2)}, {v(vK2)}
        v_cmp_lt_u32 vcc, 31, v1
        """)
        hi_or_lo(q, vTK, vM, vT2); hi_or_lo(q, vTK + 1, vSD, vT2)
        q(f"v_mov_b32 {v(vTK+2)}, 0\nv_mov_b32 {v(vTK+3)}, 0")
        q(f"""
        s_mul_i32 {s(sT0)}, {s(sRT4)}, {224*512}
        s_lshl_b32 {s(sT1)}, {s(sM)}, 12
        s_add_u32 {s(sT0)}, {s(sT0)}, {s(sT1)}
        s_add_u32 {s(sT0)}, {s(sT0)}, {WS_H1}
        s_add_u32 {s(sT1)}, {s(sT0)}, {112*512}
        s_lshl_b32 {s(sT2)}, {s(sRT4)}, 4
        s_add_u32 {s(sT2)}, {s(sT2)}, {s(sM)}
        s_lshl_b32 {s(sT2)}, {s(sT2)}, 7
        s_add_u32 {s(sT2)}, {s(sT2)}, {FD0}
        """)
    fin = collect(statf)
    def gelu_ops(ct):
        ops = []
        acc = vACC + 16*ct
        bc = "op_sel_hi:[1,0,0]"
        for j0 in range(0, 16, 8):
            for j in range(0, 8, 2): ops.append(f"v_pk_mul_f32 {v(vG+j,2)}, {v(acc+j0+j,2)}, {v(acc+j0+j,2)}")
            for j in range(0, 8, 2): ops.append(f"v_pk_fma_f32 {v(vG+j,2)}, {v(vG+j,2)}, {v(vK2,2)}, {v(vK1,2)} {bc}")
            for j in range(0, 8, 2): ops.append(f"v_pk_mul_f32 {v(vG+j,2)}, {v(vG+j,2)}, {v(acc+j0+j,2)}")
            for j in range(8): ops.append(f"v_exp_f32 {v(vG+j)}, {v(vG+j)}")
            for j in range(0, 8, 2): ops.append(f"v_pk_fma_f32 {v(vG+j,2)}, {v(vG+j,2)}, {v(vSD,2)}, {v(vSD,2)} {bc}")
            for j in range(8): ops.append(f"v_rcp_f32 {v(vG+j)}, {v(vG+j)}")
            for j in range(0, 8, 2): ops.append(f"v_pk_mul_f32 {v(vG+j,2)}, {v(vG+j,2)}, {v(acc+j0+j,2)}")
            for j in range(4): ops.append(f"v_cvt_pk_bf16_f32 {v(acc + j0 + j)}, {v(vG+2*j)}, {v(vG+2*j+1)}")
            so = sT0 if ct < 2 else sT1
            ops.append((f"buffer_store_dwordx4 {v(acc+j0, 4)}, {v(vL16)}, {srd(sWS)}, {s(so)} offen offset:{(ct % 2)*2048 + (j0//8)*1024} sc1", f"h1_{ct}"))
        return ops
    for sx in range(28):
        fill = []
        if sx + PF < 28: fill.append(hld(sx + PF))
        if sx < 7: fill.append(stl[sx])
        if sx + 3 < 28: fill += reads4(sx + 3, 0)
        if sx >= 20: fill += take(fin, 8)
        weave(p, [MF(v(vACC + 16*k, 16), v(vWF + 8*(sx % WD) + 4*k, 4), a(aHF + 4*sx, 4), "0" if sx == 0 else None) for k in range(2)], fill)
    emit(p, fin)
    for k in range(2): mfma(p, v(vACC + 16*k, 16), v(vAU + 4*k, 4), v(vTK, 4))
    p("s_barrier")
    for sx in range(3): emit(p, reads4(sx, 1))
    stamp(p, 10)
    emit(p, gelu_ops(0) + gelu_ops(1))
    dm = []
    for ks in range(6, 13): dm += w2dma(ks)
    weave(p, [MF(v(vACC + 32 + 16*k, 16), v(vAU + 8 + 4*k, 4), v(vTK, 4), "0") for k in range(2)], [])
    for sx in range(28):
        fill = []
        if sx + 3 < 28: fill += reads4(sx + 3, 1)
        if sx % 3 == 1 and dm: fill += take(dm, 1)
        if sx == 14:
            def fl0():
                p.wait_vm("h1_1"); setflag(p, vOne, vZ, sT2); p(f"s_add_u32 {s(sT2)}, {s(sT2)}, {FD1 - FD0}")
            fill.append(fl0)
        weave(p, [MF(v(vACC + 32 + 16*k, 16), v(vWF + 8*(sx % WD) + 4*k, 4), a(aHF + 4*sx, 4)) for k in range(2)], fill)
    p("s_barrier")
    stamp(p, 11)
    vA5 = 184
    vPA, vP = 228, 229
    sHB, sFD = sDL, sDS
    p(f"""
    v_add_u32 {v(vA5+4)}, {s(sLB_)}, {v(vA+2)}
    v_add_u32 {v(vA5+5)}, {s(sLB_)}, {v(vA+3)}
    v_add_u32 {v(vA5+2)}, {s(sLB_)}, {v(vA)}
    v_add_u32 {v(vA5+3)}, {s(sLB_)}, {v(vA+1)}
    s_add_u32 {s(sT0)}, {s(sLA_)}, {LA}
    v_add_u32 {v(vA5)}, {s(sT0)}, {v(vA)}
    v_add_u32 {v(vA5+1)}, {s(sT0)}, {v(vA+1)}
    v_and_b32 {v(vPA)}, 3, v1
    v_bfe_u32 {v(vT1)}, v1, 2, 1
    v_lshl_add_u32 {v(vPA)}, {v(vT1)}, 4, {v(vPA)}
    v_lshlrev_b32 {v(vPA)}, 7, {v(vPA)}
    s_mul_i32 {s(sFD)}, {s(sWAVE)}, 7
    s_lshr_b32 {s(sFD)}, {s(sFD)}, 1
    s_lshl_b32 {s(sT0)}, {s(sRT0)}, 4
    s_add_u32 {s(sFD)}, {s(sFD)}, {s(sT0)}
    s_lshl_b32 {s(sFD)}, {s(sFD)}, 7
    s_add_u32 {s(sFD)}, {s(sFD)}, {FD0}
    s_mul_i32 {s(sHB)}, {s(sRT0)}, {224*512}
    s_mul_i32 {s(sT0)}, {s(sWAVE)}, {28*512}
    s_add_u32 {s(sHB)}, {s(sHB)}, {s(sT0)}
    s_add_u32 {s(sHB)}, {s(sHB)}, {WS_H1}
    """)
    emit(p, gelu_ops(2) + gelu_ops(3))
    for ks in range(13, 16): emit(p, w2dma(ks))
    p.wait_vm("h1_3")
    setflag(p, vOne, vZ, sT2)
    stamp(p, 12)
    vWF, vACC = 12, 48
    vL16b = 230
    p(f"v_add_u32 {v(vL16b)}, {224*512}, {v(vL16)}")
    def reads5(ks):
        base, wstride, off = w2slot(ks)
        reg = {LA: 0, LH0: 1, LH1: 2}[base]
        return [lambda: p.wait_vm(f"w2_{ks}")] + [f"ds_read_b64_tr_b16 {v(vWF + 8*(ks % 3) + 4*ct + 2*h, 2)}, {v(vA5 + 2*reg + ct)} offset:{off + 512*h}" for ct in range(2) for h in range(2)]
    def h1ld(ks):
        half, k = ks // 14, ks % 14
        r = []
        if k % 4 == 0: r.append(f"s_add_u32 {s(sT1)}, {s(sHB)}, {half*112*512 + k*1024}")
        r.append(f"buffer_load_dwordx4 {a(8*ks, 4)}, {v(vL16)}, {srd(sWS)}, {s(sT1)} offen offset:{(k % 4)*1024} sc1")
        return [r, f"buffer_load_dwordx4 {a(8*ks + 4, 4)}, {v(vL16b)}, {srd(sWS)}, {s(sT1)} offen offset:{(k % 4)*1024} sc1"]
    emit(p, reads5(0) + reads5(1))
    poll(p, vP, vPA, sFD, sCNT, "pollD0")
    p(f"s_add_u32 {s(sFD)}, {s(sFD)}, {FD1 - FD0}")
    P5F = 4
    for ks in range(P5F): emit(p, h1ld(ks))
    pend = [16, 17, 18, 19] + list(range(20, 28))
    for ks in range(28):
        fill = []
        if ks + P5F == 14:
            pass
        if ks + P5F < 14 or (ks >= 12 and ks + P5F < 28 and ks + P5F >= 16): fill += h1ld(ks + P5F)
        if ks + 2 < 28: fill += reads5(ks + 2)
        if pend and ks >= 1 and (pend[0] < 20 or pend[0] - 20 < ks) and (ks % 2 == 1 or 10 <= ks < 14): fill += w2dma(pend.pop(0))
        weave(p, [MF(v(vACC + 16*(2*r + ct), 16), v(vWF + 8*(ks % 3) + 4*ct, 4), a(8*ks + 4*r, 4), "0" if ks == 0 else None) for r in range(2) for ct in range(2)], fill)
        if ks == 11:
            poll(p, vP, vPA, sFD, sCNT, "pollD1")
            emit(p, h1ld(14) + h1ld(15))
    assert not pend, pend
    p("s_barrier")
    vO = 16
    for t in range(4):
        p(f"""
        s_sub_u32 {s(sT0)}, {s(sWAVE)}, {t + 1}
        s_and_b32 {s(sT0)}, {s(sT0)}, 3
        s_cmp_eq_u32 {s(sT0)}, 3
        s_cbranch_scc1 L_r5_own{t}
        s_lshl_b32 {s(sT0)}, {s(sT0)}, 12
        s_add_u32 {s(sT0)}, {s(sT0)}, {t*12288}
        v_add_u32 {v(vT1)}, {s(sT0)}, {v(vL16)}
        """)
        for q_ in range(4): p(f"ds_write_b128 {v(vT1)}, {v(vACC + 16*t + 4*q_, 4)} offset:{q_*1024}")
        p(f"s_branch L_r5_nx{t}")
        p.label(f"L_r5_own{t}")
        for j in range(8): p(f"v_mov_b64 {v(vO + 2*j, 2)}, {v(vACC + 16*t + 2*j, 2)}")
        p.label(f"L_r5_nx{t}")
    p(f"v_add_u32 {v(vT2)}, {s(sLA_)}, {v(vL16)}")
    vE = 112
    for j in range(8):
        p(f"v_lshlrev_b32 {v(vE+2*j)}, 16, {v(vHV+j)}\nv_lshlrev_b32 {v(vT3+1)}, 16, {v(vBV+j)}")
        p(f"v_and_b32 {v(vE+2*j+1)}, 0xffff0000, {v(vHV+j)}\nv_and_b32 {v(vT3+2)}, 0xffff0000, {v(vBV+j)}")
        p(f"v_pk_add_f32 {v(vE+2*j, 2)}, {v(vE+2*j, 2)}, {v(vT3+1, 2)}")
    for j in range(8): p(f"v_pk_add_f32 {v(vO+2*j, 2)}, {v(vO+2*j, 2)}, {v(vE+2*j, 2)}")
    p("s_waitcnt lgkmcnt(0)\ns_barrier")
    vRD5 = 48
    for w in range(3):
        for q_ in range(4): p(f"ds_read_b128 {v(vRD5 + 16*w + 4*q_, 4)}, {v(vT2)} offset:{w*4096 + q_*1024}")
    for w in range(3):
        for j in range(8): p(f"v_pk_add_f32 {v(vO+2*j, 2)}, {v(vO+2*j, 2)}, {v(vRD5 + 16*w + 2*j, 2)}")
    for j in range(8): p(f"v_cvt_pk_bf16_f32 {v(vO+j)}, {v(vO+2*j)}, {v(vO+2*j+1)}")
    p(f"""
    buffer_store_dwordx4 {v(vO, 4)}, {v(vXA)}, {srd(sOUT)}, 0 offen
    buffer_store_dwordx4 {v(vO+4, 4)}, {v(vXA)}, {srd(sOUT)}, 0 offen offset:32
    """)
    epilogue(p, name, 1)
    return name, 232, 224, 163840

OPT = {}
K1ST = ""
def main(outpath):
    p = Prog()
    ks = [f(p) for f in (K1, K2)]
    p.label("L_code_end")
    body = p.finalize()
    hdr = open(f"cdna_kernels/{NAME}.s.ref").read().split("; Override launch")[0]
    for name, nv, na, lds in ks:
        hdr += f"; @launch kernel={name} grid=(256,1,1) block=(256,1,1) lds={lds}\n"
    txt = hdr + '.amdgcn_target "amdgcn-amd-amdhsa--gfx950"\n.text\n.set CODE_LEN, 0x12345\n' + body + '.section .rodata,"a"\n'
    for name, nv, na, lds in ks:
        ao = (nv + 3) // 4 * 4
        txt += f""".p2align 6
.amdhsa_kernel {name}
  .amdhsa_next_free_vgpr {ao + na}
  .amdhsa_next_free_sgpr 102
  .amdhsa_accum_offset {ao}
  .amdhsa_group_segment_fixed_size 0
  .amdhsa_kernarg_size 88
  .amdhsa_user_sgpr_count 2
  .amdhsa_user_sgpr_kernarg_segment_ptr 1
  .amdhsa_system_sgpr_workgroup_id_x 1
.end_amdhsa_kernel
"""
    import subprocess, re as _re
    open("_sz.s", "w").write(txt)
    subprocess.run(["clang", "-x", "assembler", "-target", "amdgcn-amd-amdhsa", "-mcpu=gfx950", "-c", "_sz.s", "-o", "_sz.o"], check=True)
    o = subprocess.run(["llvm-objdump", "-h", "_sz.o"], capture_output=True, text=True).stdout
    sz = int(_re.search(r"\.text\s+([0-9a-f]+)", o).group(1), 16)
    txt = txt.replace(".set CODE_LEN, 0x12345", f".set CODE_LEN, {sz - 512}")
    open(outpath, "w").write(txt)
    print("nops inserted:", p.nops, "bytes:", len(txt), "code bytes:", sz)

if __name__ == "__main__":
    for a_ in sys.argv[2:]:
        if a_ == "stamps": gen2.STAMPS = True
        elif a_.startswith("k1st="): K1ST = a_[5:]
        else:
            k_, v_ = a_.split("="); OPT[k_] = int(v_)
    main(sys.argv[1] if len(sys.argv) > 1 else f"cdna_kernels/{NAME}.s")
```

```python
import sys, math, struct
from asmlib import *
import gen2
from gen2 import *
from gen3 import cost, emit, weave, MF, take, collect

OPT = {}
K1ST = "sc1"
sLOC = 96

def K1(p):
    name = "k1_kernel"
    def touch():
        p.label("L_k1_pc")
        p(f"""
        s_getpc_b64 s[58:59]
        s_lshr_b32 s3, s2, 3
        s_lshl_b32 s3, s3, 11
        v_lshrrev_b32 v3, 5, v0
        v_lshl_add_u32 v3, v3, 7, s3
        v_min_u32 v3, CODE_LEN, v3
        global_load_dword v120, v3, s[58:59]
        """)
    prologue(p, name, [sX, sWQ, sWS, sWO, sW1, sB1, sW2], touch)
    sR, sCB, sT0, sT1, sXB, sWB, sM0, sRT, sKC, sT2, sT3, sPC, sGW, sWL, sJ = 46, 47, 48, 49, 50, 51, 52, 53, 54, 55, 56, 58, 60, 61, 62
    vT1, vT2, vTC, vL128 = 14, 15, 120, 126
    sKB, sPH = 57, 63
    vXE, vXO, vW, vXR, vWR, vWR2 = 3, 4, 5, 8, 12, 13
    LW, LX, LSC = 0, 86016, 151552
    p(f"""
    s_and_b32 {s(sJ)}, {s(sWAVE)}, 3
    s_and_b32 {s(sT0)}, s2, 3
    s_lshl_b32 {s(sT0)}, {s(sT0)}, 2
    s_bfe_u32 {s(sT1)}, s2, 0x20003
    s_add_u32 {s(sR)}, {s(sT0)}, {s(sT1)}
    s_bfe_u32 {s(sT0)}, s2, 0x10002
    s_lshl_b32 {s(sT0)}, {s(sT0)}, 3
    s_lshr_b32 {s(sT2)}, s2, 5
    s_add_u32 {s(sCB)}, {s(sT0)}, {s(sT2)}
    s_lshl_b32 {s(sRT)}, {s(sR)}, 2
    s_add_u32 {s(sRT)}, {s(sRT)}, {s(sJ)}
    s_lshl_b32 {s(sM0)}, {s(sJ)}, 14
    s_add_u32 {s(sM0)}, {s(sM0)}, {LX}
    v_lshlrev_b32 {v(vL128)}, 7, v1
    s_cmp_ge_u32 {s(sCB)}, 15
    s_cbranch_scc1 L_k1_aux
    s_cmp_ge_u32 {s(sWAVE)}, 4
    s_cbranch_scc1 L_k1_comp
    """)
    st0 = p.save()
    def xr_addr():
        p(f"""
        v_and_b32 {v(vT1)}, 31, v1
        v_lshlrev_b32 {v(vXR+3)}, 7, {v(vT1)}
        v_add_u32 {v(vXR+3)}, {s(sM0)}, {v(vXR+3)}
        v_bfe_u32 {v(vT1)}, v1, 1, 3
        v_lshrrev_b32 {v(vT2)}, 5, v1
        v_xor_b32 {v(vT1)}, {v(vT1)}, {v(vT2)}
        """)
        for sp in range(4):
            p(f"v_xor_b32 {v(vT2)}, {2*sp}, {v(vT1)}")
            p(f"v_lshl_add_u32 {v(vXR+sp)}, {v(vT2)}, 4, {v(vXR+3)}")
    p(f"""
    s_and_b32 {s(sKB)}, s2, 3
    s_lshl_b32 {s(sKB)}, {s(sKB)}, 1
    s_and_b32 {s(sT0)}, s2, 4
    s_add_u32 {s(sKB)}, {s(sKB)}, {s(sT0)}
    s_sub_u32 {s(sT0)}, {s(sKB)}, 7
    s_cmp_ge_u32 {s(sKB)}, 7
    s_cselect_b32 {s(sKB)}, {s(sT0)}, {s(sKB)}
    s_mul_i32 {s(sKB)}, {s(sKB)}, {OPT.get("xph", 1)}
    s_xor_b32 {s(sPH)}, {s(sT1)}, {s(sT2)}
    s_and_b32 {s(sPH)}, {s(sPH)}, {OPT.get("ph", 1)}
    v_lshrrev_b32 {v(vT1)}, 3, v1
    v_mul_u32_u24 {v(vT1)}, 896, {v(vT1)}
    v_lshrrev_b32 {v(vT2)}, 4, v1
    v_xor_b32 {v(vT2)}, {v(vT2)}, v1
    v_and_b32 {v(vT2)}, 7, {v(vT2)}
    v_lshl_add_u32 {v(vXE)}, {v(vT2)}, 4, {v(vT1)}
    v_xor_b32 {v(vT2)}, 4, {v(vT2)}
    v_lshl_add_u32 {v(vXO)}, {v(vT2)}, 4, {v(vT1)}
    v_add_u32 {v(vXO)}, {8*896 - 1024}, {v(vXO)}
    s_mul_i32 {s(sXB)}, {s(sRT)}, {32*896}
    s_mul_i32 {s(sWB)}, {s(sCB)}, 192
    s_cmp_ge_u32 {s(sCB)}, 10
    s_cselect_b32 {s(sT0)}, 128, 0
    s_sub_u32 {s(sWB)}, {s(sWB)}, {s(sT0)}
    s_mul_i32 {s(sT0)}, {s(sJ)}, {16*2688}
    s_add_u32 {s(sWB)}, {s(sWB)}, {s(sT0)}
    s_mul_i32 {s(sWL)}, {s(sJ)}, 3072
    """)
    for pt in range(3):
        p(f"""
        v_add_u32 {v(vT1)}, {64*pt}, v1
        v_mul_u32_u24 {v(vT2)}, 5462, {v(vT1)}
        v_lshrrev_b32 {v(vT2)}, 16, {v(vT2)}
        v_mul_u32_u24 {v(vW+pt)}, {2688 - 192}, {v(vT2)}
        v_lshl_add_u32 {v(vW+pt)}, v1, 4, {v(vW+pt)}
        """)
    def ld(c):
        msk = 3 if c < 4 else (1 if c < 6 else 0)
        p(f"""
        s_and_b32 {s(sKC)}, {s(sPH)}, {msk}
        s_xor_b32 {s(sKC)}, {s(sKC)}, {c}
        s_add_u32 {s(sKC)}, {s(sKC)}, {s(sKB)}
        s_sub_u32 {s(sT0)}, {s(sKC)}, 7
        s_cmp_ge_u32 {s(sKC)}, 7
        s_cselect_b32 {s(sKC)}, {s(sT0)}, {s(sKC)}
        s_lshl_b32 {s(sT0)}, {s(sKC)}, 7
        s_add_u32 {s(sT0)}, {s(sT0)}, {s(sXB)}
        s_add_u32 m0, {s(sM0)}, {(c % 4)*4096}
        s_add_u32 {s(sT2)}, {s(sT0)}, {16*896 - 2048}
        buffer_load_dwordx4 {v(vXE)}, {srd(sX)}, {s(sT0)} offen lds
        buffer_load_dwordx4 {v(vXO)}, {srd(sX)}, {s(sT0)} offen offset:1024 lds
        buffer_load_dwordx4 {v(vXE)}, {srd(sX)}, {s(sT2)} offen offset:2048 lds
        buffer_load_dwordx4 {v(vXO)}, {srd(sX)}, {s(sT2)} offen offset:3072 lds
        s_mul_i32 {s(sT3)}, {s(sKC)}, {64*2688}
        s_add_u32 m0, {s(sWL)}, {LW + c*12288}
        s_add_u32 {s(sT3)}, {s(sT3)}, {s(sWB)}
        buffer_load_dwordx4 {v(vW)}, {srd(sWQ)}, {s(sT3)} offen lds
        buffer_load_dwordx4 {v(vW+1)}, {srd(sWQ)}, {s(sT3)} offen offset:1024 lds
        buffer_load_dwordx4 {v(vW+2)}, {srd(sWQ)}, {s(sT3)} offen offset:2048 lds
        """, tag=f"c{c}")
    p("s_waitcnt lgkmcnt(0)")
    stamp(p, 7)
    if OPT.get("touch", 0) == 1:
        p(f"""
        s_lshl_b32 {s(sGW)}, s2, 2
        s_add_u32 {s(sGW)}, {s(sGW)}, {s(sJ)}
        s_mul_i32 {s(sT0)}, {s(sGW)}, {14*128}
        s_mul_i32 {s(sT2)}, {s(sGW)}, {10*128}
        s_mov_b64 exec, 0x3fff
        buffer_load_dword {v(vTC+1)}, {v(vL128)}, {srd(sX)}, {s(sT0)} offen
        s_mov_b64 exec, 0x3ff
        buffer_load_dword {v(vTC+2)}, {v(vL128)}, {srd(sWQ)}, {s(sT2)} offen
        s_mov_b64 exec, -1
        """)
    ld(0)
    if OPT.get("touch", 0) == 3:
        p(f"""
        s_lshl_b32 {s(sGW)}, s2, 2
        s_add_u32 {s(sGW)}, {s(sGW)}, {s(sJ)}
        s_mul_i32 {s(sT0)}, {s(sGW)}, {14*128}
        s_mul_i32 {s(sT2)}, {s(sGW)}, {10*128}
        s_mov_b64 exec, 0x3fff
        buffer_load_dword {v(vTC+1)}, {v(vL128)}, {srd(sX)}, {s(sT0)} offen
        s_mov_b64 exec, 0x3ff
        buffer_load_dword {v(vTC+2)}, {v(vL128)}, {srd(sWQ)}, {s(sT2)} offen
        s_mov_b64 exec, -1
        """)
    stamp(p, 8)
    ld(1)
    stamp(p, 1)
    for c in range(7):
        p.wait_vm(f"c{c}")
        p("s_barrier")
        if c in (0, 3, 6): stamp(p, {0: 2, 3: 3, 6: 4}[c])
        if c + 2 < 7: ld(c + 2)
        if c == 5:
            p(f"""
            s_lshl_b32 {s(sGW)}, s2, 2
            s_add_u32 {s(sGW)}, {s(sGW)}, {s(sJ)}
            s_lshl_b32 {s(sT2)}, {s(sGW)}, 11
            s_mov_b64 exec, 0xffff
            buffer_load_dword {v(vTC+3)}, {v(vL128)}, {srd(sW2)}, {s(sT2)} offen
            s_lshl_b32 {s(sT2)}, {s(sGW)}, 9
            s_mov_b64 exec, 0xf
            buffer_load_dword {v(vTC+4)}, {v(vL128)}, {srd(sWO)}, {s(sT2)} offen
            s_mov_b64 exec, -1
            """)
    p("s_barrier")
    p(f"s_branch L_end_{name}")
    p.label("L_k1_comp"); p.restore(st0)
    if OPT.get("touch", 0) == 2:
        p(f"""
        s_lshl_b32 {s(sGW)}, s2, 2
        s_add_u32 {s(sGW)}, {s(sGW)}, {s(sJ)}
        s_mul_i32 {s(sT0)}, {s(sGW)}, {14*128}
        s_mul_i32 {s(sT2)}, {s(sGW)}, {10*128}
        s_mov_b64 exec, 0x3fff
        buffer_load_dword {v(vTC+1)}, {v(vL128)}, {srd(sX)}, {s(sT0)} offen
        s_mov_b64 exec, 0x3ff
        buffer_load_dword {v(vTC+2)}, {v(vL128)}, {srd(sWQ)}, {s(sT2)} offen
        s_mov_b64 exec, -1
        """)
    xr_addr()
    vM, vR = 22, 23
    vXF, vWF, vACC = 24, 56, 128
    vCF, vB2, vAU, vRR = 92, 104, 108, 176
    for j in range(1, 4): p(f"v_mov_b32 {v(vB2+j)}, 0")
    for t in range(3):
        for j in range(1, 4): p(f"v_mov_b32 {v(vAU + 4*t + j)}, 0")
    vCA, vCW, vRW, vRA = 16, 17, 18, 19
    vS, vQ, vCS, vWC, vWC2, vT3 = 3, 4, 5, 20, 21, 127
    for r in (vS, vQ, vCS, vCS+1, vCS+2): p(f"v_mov_b32 {v(r)}, 0")
    p(f"""
    v_and_b32 {v(vT1)}, 31, v1
    v_lshlrev_b32 {v(vCA)}, 4, {v(vT1)}
    v_add_u32 {v(vCA)}, {LSC}, {v(vCA)}
    s_lshl_b32 {s(sT0)}, {s(sJ)}, 2
    v_add_u32 {v(vCW)}, {s(sT0)}, {v(vCA)}
    s_lshl_b32 {s(sT0)}, {s(sJ)}, 7
    s_add_u32 {s(sT0)}, {s(sT0)}, {LSC + 1536}
    v_lshl_add_u32 {v(vRW)}, {v(vT1)}, 2, {s(sT0)}
    v_lshrrev_b32 {v(vT2)}, 5, v1
    v_lshl_add_u32 {v(vRA)}, {v(vT2)}, 4, {s(sT0)}
    s_mul_i32 {s(sWL)}, {s(sJ)}, 3072
    v_cmp_lt_u32 vcc, 31, v1
    s_waitcnt lgkmcnt(0)
    s_cmp_ge_u32 {s(sCB)}, 10
    s_cbranch_scc1 L_k1_v
    """)
    st = p.save()
    for isV in (0, 1):
        if isV:
            p.label("L_k1_v"); p.restore(st)
        tr_addr(p, vWR, 192, swap=not isV, perm_rows=False, t1=vT1, t2=vT2)
        p(f"v_add_u32 {v(vWR2)}, 49152, {v(vWR)}")
        p(f"v_add_u32 {v(vWC)}, {s(sWL)}, {v(vWR)}")
        p(f"v_add_u32 {v(vWC2)}, {s(sWL)}, {v(vWR2)}")
        vSA = vT1
        if not isV:
            p(f"""
            v_lshlrev_b32 {v(vSA)}, 4, v1
            s_mul_i32 {s(sT0)}, {s(sRT)}, {112*512}
            s_mul_i32 {s(sT1)}, {s(sCB)}, {3*4*512}
            s_add_u32 {s(sT0)}, {s(sT0)}, {s(sT1)}
            s_mul_i32 {s(sXB)}, {s(sCB)}, 3
            """)
        else:
            p(f"""
            v_lshrrev_b32 {v(vSA)}, 5, v1
            v_mul_u32_u24 {v(vSA)}, {448*16 - 512}, {v(vSA)}
            v_lshl_add_u32 {v(vSA)}, v1, 4, {v(vSA)}
            s_mul_i32 {s(sT0)}, {s(sRT)}, {4*448*16}
            s_mul_i32 {s(sT1)}, {s(sCB)}, {3*512}
            s_add_u32 {s(sT0)}, {s(sT0)}, {s(sT1)}
            s_add_u32 {s(sT0)}, {s(sT0)}, {WS_V - 10*3*512}
            s_add_u32 {s(sT1)}, {s(sT0)}, {2*448*16}
            """)
        def xreads(c):
            return [f"ds_read_b128 {v(vXF + 16*(c % 2) + 4*sp, 4)}, {v(vXR+sp)} offset:{(c % 4)*4096}" for sp in range(4)]
        def creads(c):
            base = (c % 4) * 12288; va = vWC if c < 4 else vWC2
            return [f"ds_read_b64_tr_b16 {v(vCF + 4*t + 2*h, 2)}, {v(va)} offset:{base + 64*t + 768*h}" for t in range(3) for h in range(2)]
        def wreads(sx):
            base = (sx % 16) * 3072; va = vWR if sx < 16 else vWR2
            return [f"ds_read_b64_tr_b16 {v(vWF + 12*(sx % 3) + 4*t + 2*h, 2)}, {v(va)} offset:{base + 64*t + 768*h}" for t in range(3) for h in range(2)]
        def mm(sx):
            c, sp = sx // 4, sx % 4
            xf = v(vXF + 16*(c % 2) + 4*sp, 4)
            out = []
            for t in range(3):
                wf = v(vWF + 12*(sx % 3) + 4*t, 4)
                A, B = (xf, wf) if isV else (wf, xf)
                out.append(MF(v(vACC + 16*t, 16), A, B, "0" if sx == 0 else None))
            return out
        def burst(c):
            for j in range(16):
                r = vXF + 16*(c % 2) + j
                p(f"v_dot2c_f32_bf16 {v(vS)}, {s(sONES)}, {v(r)}")
                p(f"v_dot2c_f32_bf16 {v(vQ)}, {v(r)}, {v(r)}")
            for j in range(12): p(f"v_dot2c_f32_bf16 {v(vCS + j // 4)}, {s(sONES)}, {v(vCF + j)}")
        def finf(q):
            for t in range(3): half_sum(q, vCS + t, vT3)
            for t in range(3): q(f"ds_write_b32 {v(vCW)}, {v(vCS+t)} offset:{t*512}")
            half_sum(q, vS, vT2); half_sum(q, vQ, vT3)
            q(f"""
            v_mul_f32 {v(vM)}, {fl(-1.0/448)}, {v(vS)}
            v_mul_f32 {v(vQ)}, {fl(1.0/448)}, {v(vQ)}
            v_fma_f32 {v(vQ)}, -{v(vM)}, {v(vM)}, {v(vQ)}
            v_max_f32 {v(vQ)}, 0, {v(vQ)}
            v_add_f32 {v(vQ)}, {fl(EPS)}, {v(vQ)}
            v_rsq_f32 {v(vR)}, {v(vQ)}
            """)
            hi_or_lo(q, vB2, vM, vT2)
            if isV:
                q(f"ds_write_b32 {v(vRW)}, {v(vR)}")
                for k in range(4): q(f"ds_read_b128 {v(vRR + 4*k, 4)}, {v(vRA)} offset:{k*32}")
        fin = collect(finf)
        stamp(p, 1)
        p("s_barrier")
        stamp(p, 2)
        x0 = xreads(0)
        emit(p, x0[:1] + wreads(0) + x0[1:2] + wreads(1) + x0[2:])
        for c in range(7):
            xr = xreads(c + 1) if c < 6 else []
            for sp in range(4):
                sx = 4*c + sp
                fill = []
                if sp == 2:
                    burst(c)
                    if c < 6: p("s_barrier")
                if sp >= 2: fill += take(xr, 1)
                if sx + 2 < 28: fill += wreads(sx + 2)
                if sp == 0:
                    fill = (xreads(c)[2:] if c > 0 else []) + creads(c)[:2] + fill
                if sp == 1: fill = creads(c)[2:] + fill
                if c == 6 and sp == 2: fill += take(fin, 12) + ["s_waitcnt lgkmcnt(0)", "s_barrier"] + [f"ds_read_b128 {v(vCF + 4*t, 4)}, {v(vCA)} offset:{t*512}" for t in range(3)]
                if c == 6 and sp == 3: fill += fin
                weave(p, mm(sx), fill)
        stamp(p, 5)
        for t in range(3):
            c0 = vCF + 4*t
            p(f"v_add_f32 {v(c0)}, {v(c0)}, {v(c0+1)}\nv_add_f32 {v(c0+2)}, {v(c0+2)}, {v(c0+3)}\nv_add_f32 {v(c0)}, {v(c0)}, {v(c0+2)}")
            split_hi_lo_pack(p, vAU + 4*t, c0, vT2)
            A, B = (v(vB2, 4), v(vAU + 4*t, 4)) if isV else (v(vAU + 4*t, 4), v(vB2, 4))
            mfma(p, v(vACC + 16*t, 16), A, B)
        stamp(p, 6)
        if not isV:
            for t in range(3):
                if t > 0:
                    p(f"s_cmp_ge_u32 {s(sXB)}, {28 - t}")
                    p(f"s_cbranch_scc1 L_end_{name}")
                p(f"s_cmp_lt_u32 {s(sXB)}, {14 - t}")
                p(f"s_cselect_b32 {s(sT1)}, {fl(28**-0.5 * LOG2E)}, 1.0")
                p(f"v_mul_f32 {v(vM)}, {s(sT1)}, {v(vR)}")
                acc = vACC + 16*t
                for m in range(2):
                    for j in range(4*m, 4*m+4): p(f"v_pk_mul_f32 {v(acc+2*j, 2)}, {v(acc+2*j, 2)}, {v(vM, 2)} op_sel_hi:[1,0]")
                    for j in range(4): p(f"v_cvt_pk_bf16_f32 {v(acc+8*m+j)}, {v(acc+8*m+2*j)}, {v(acc+8*m+2*j+1)}")
                    p(f"buffer_store_dwordx4 {v(acc+8*m, 4)}, {v(vSA)}, {srd(sWS)}, {s(sT0)} offen offset:{m*1024} {K1ST}")
                p(f"s_add_u32 {s(sT0)}, {s(sT0)}, 2048")
            p(f"s_branch L_end_{name}")
        else:
            for t in range(3):
                if t == 2:
                    p(f"s_cmp_ge_u32 {s(sCB)}, 14")
                    p(f"s_cbranch_scc1 L_end_{name}")
                acc = vACC + 16*t
                for m in range(2):
                    for j in range(4*m, 4*m+4): p(f"v_pk_mul_f32 {v(acc+2*j, 2)}, {v(acc+2*j, 2)}, {v(vRR+2*j, 2)}")
                    for j in range(4): p(f"v_cvt_pk_bf16_f32 {v(acc+8*m+j)}, {v(acc+8*m+2*j)}, {v(acc+8*m+2*j+1)}")
                    p(f"buffer_store_dwordx4 {v(acc+8*m, 4)}, {v(vSA)}, {srd(sWS)}, {s(sT0 if m == 0 else sT1)} offen offset:{t*512} {K1ST}")
            p(f"s_branch L_end_{name}")
    p.label("L_k1_aux"); p.restore(st0)
    if OPT.get("touch", 0):
        p(f"""
        s_lshl_b32 {s(sGW)}, s2, 2
        s_add_u32 {s(sGW)}, {s(sGW)}, {s(sJ)}
        s_mul_i32 {s(sT0)}, {s(sGW)}, {14*128}
        s_mul_i32 {s(sT2)}, {s(sGW)}, {10*128}
        s_mov_b64 exec, 0x3fff
        buffer_load_dword {v(vTC+1)}, {v(vL128)}, {srd(sX)}, {s(sT0)} offen
        s_mov_b64 exec, 0x3ff
        buffer_load_dword {v(vTC+2)}, {v(vL128)}, {srd(sWQ)}, {s(sT2)} offen
        s_mov_b64 exec, -1
        """)
    vA, vD, vSM, vB = 3, 16, 4, 76
    vT1, vT2, vT3 = 12, 13, 14
    p(f"""
    s_lshl_b32 {s(sT0)}, {s(sR)}, 3
    s_add_u32 {s(sT0)}, {s(sT0)}, {s(sWAVE)}
    s_mul_i32 {s(sT0)}, {s(sT0)}, {48*128}
    s_add_u32 {s(sT0)}, {s(sT0)}, {WS_FL}
    s_lshl_b32 {s(sT1)}, {s(sR)}, 11
    s_add_u32 {s(sT1)}, {s(sT1)}, {FX}
    v_mov_b32 {v(vT2)}, 0
    v_lshrrev_b32 {v(vT1)}, 3, v1
    v_mul_u32_u24 {v(vA)}, 3584, {v(vT1)}
    v_and_b32 {v(vT1)}, 7, v1
    v_lshl_add_u32 {v(vA)}, {v(vT1)}, 4, {v(vA)}
    s_mov_b32 exec_hi, 0xffff
    buffer_store_dword {v(vT2)}, {v(vL128)}, {srd(sWS)}, {s(sT0)} offen
    s_mov_b64 exec, 0xffff
    buffer_store_dword {v(vT2)}, {v(vL128)}, {srd(sWS)}, {s(sT1)} offen
    s_mov_b64 exec, -1
    s_cmp_ge_u32 {s(sR)}, 14
    s_cbranch_scc1 L_end_{name}
    s_lshr_b32 {s(sT1)}, {s(sWAVE)}, 2
    s_lshl_b32 {s(sT0)}, {s(sR)}, 1
    s_add_u32 {s(sXB)}, {s(sT0)}, {s(sT1)}
    s_lshl_b32 {s(sT0)}, {s(sXB)}, 7
    s_mul_i32 {s(sT1)}, {s(sJ)}, {112*3584}
    s_add_u32 {s(sT0)}, {s(sT0)}, {s(sT1)}
    """)
    for i in range(14):
        p(f"buffer_load_dwordx4 {v(vD + 4*i, 4)}, {v(vA)}, {srd(sW1)}, {s(sT0)} offen")
        p(f"s_add_u32 {s(sT0)}, {s(sT0)}, {8*3584}")
    p(f"""
    v_and_b32 {v(vT1)}, 19, v1
    v_bfe_u32 {v(vT2)}, v1, 2, 1
    v_lshl_add_u32 {v(vT1)}, {v(vT2)}, 3, {v(vT1)}
    v_bfe_u32 {v(vT2)}, v1, 3, 1
    v_lshl_add_u32 {v(vT3)}, {v(vT2)}, 2, {v(vT1)}
    v_lshlrev_b32 {v(vT1)}, 1, {v(vT3)}
    s_lshl_b32 {s(sT2)}, {s(sR)}, 2
    s_add_u32 {s(sT2)}, {s(sT2)}, {s(sJ)}
    s_lshl_b32 {s(sT3)}, {s(sT2)}, 6
    buffer_load_ushort {v(vB+1)}, {v(vT1)}, {srd(sB1)}, {s(sT3)} offen
    """)
    for j in range(8): p(f"v_mov_b32 {v(vSM+j)}, 0")
    for i in range(14):
        for j in range(4):
            r = vD + 4*i + j
            p(f"v_lshlrev_b32 {v(vT1)}, 16, {v(r)}\nv_and_b32 {v(vT2)}, 0xffff0000, {v(r)}")
            p(f"v_pk_add_f32 {v(vSM+2*j, 2)}, {v(vSM+2*j, 2)}, {v(vT1, 2)}")
    p(f"""
    s_lshl_b32 {s(sT0)}, {s(sWAVE)}, 11
    v_lshl_add_u32 {v(vT1)}, v1, 5, {s(sT0)}
    ds_write_b128 {v(vT1)}, {v(vSM, 4)}
    ds_write_b128 {v(vT1)}, {v(vSM+4, 4)} offset:16
    s_waitcnt lgkmcnt(0)
    s_barrier
    s_cmp_ge_u32 {s(sWAVE)}, 4
    s_cbranch_scc1 L_end_{name}
    s_lshr_b32 {s(sT0)}, {s(sJ)}, 1
    s_lshl_b32 {s(sT0)}, {s(sT0)}, 13
    s_and_b32 {s(sT1)}, {s(sJ)}, 1
    s_lshl_b32 {s(sT1)}, {s(sT1)}, 7
    s_add_u32 {s(sT0)}, {s(sT0)}, {s(sT1)}
    v_lshl_add_u32 {v(vT1)}, {v(vT3)}, 2, {s(sT0)}
    v_lshrrev_b32 {v(vT2)}, 5, v1
    v_lshl_add_u32 {v(vT1)}, {v(vT2)}, 12, {v(vT1)}
    """)
    for k in range(16): p(f"ds_read_b32 {v(vD+k)}, {v(vT1)} offset:{k*256}")
    for k in range(1, 16): p(f"v_add_f32 {v(vD)}, {v(vD)}, {v(vD+k)}")
    half_sum(p, vD, vT1)
    split_hi_lo_pack(p, vB, vD, vT1)
    p(f"""
    v_mov_b32 {v(vB+2)}, 0
    v_mov_b32 {v(vB+3)}, 0
    v_lshlrev_b32 {v(vT1)}, 4, v1
    s_lshl_b32 {s(sT0)}, {s(sT2)}, 10
    s_add_u32 {s(sT0)}, {s(sT0)}, {WS_AU}
    buffer_store_dwordx4 {v(vB, 4)}, {v(vT1)}, {srd(sWS)}, {s(sT0)} offen
    """)
    stamp(p, 12)
    epilogue8(p, name, 0)
    return name, 192, 0, 163840, 512

def epilogue8(p, name, kidx):
    p.label(f"L_end_{name}")
    if gen2.STAMPS:
        p.reset()
        p("s_mov_b64 exec, -1")
        p("s_waitcnt vmcnt(0)")
        stamp(p, NST - 1)
        p(f"s_memrealtime s[94:95]")
        p("s_waitcnt lgkmcnt(0)")
        for k in range(16): p(f"v_mov_b32 v{4+k}, {s(64 + 2*k)}")
        p(f"""
        s_lshl_b32 s3, s2, 8
        s_and_b32 s4, {s(sWAVE)}, 3
        s_lshl_b32 s4, s4, 6
        s_add_u32 s3, s3, s4
        s_lshr_b32 s4, {s(sWAVE)}, 2
        s_lshl_b32 s4, s4, 17
        s_add_u32 s3, s3, s4
        s_add_u32 s3, s3, {(31 << 20) + kidx * 65536}
        v_mov_b32 v2, s3
        s_mov_b32 {s(sWS+2)}, 0x2000000
        s_mov_b64 exec, 1
        """)
        for k in range(4): p(f"buffer_store_dwordx4 {v(4+4*k, 4)}, v2, {srd(sWS)}, 0 offen offset:{16*k}")
    p("s_waitcnt vmcnt(0)")
    p.label(f"L_exit_{name}")
    p("s_endpgm")

import gen4
def K2(p):
    gen4.OPT.update(OPT)
    r = gen4.K2(p)
    return r + (256,)

def main(outpath, kernels):
    p = Prog()
    ks = [f(p) for f in kernels]
    body = p.finalize()
    hdr = open(f"cdna_kernels/{NAME}.s.ref").read().split("; Override launch")[0]
    for name, nv, na, lds, thr in ks:
        hdr += f"; @launch kernel={name} grid=(256,1,1) block=({thr},1,1) lds={lds}\n"
    txt = hdr + '.amdgcn_target "amdgcn-amd-amdhsa--gfx950"\n.text\n.set CODE_LEN, 0x12345\n' + body + '.section .rodata,"a"\n'
    for name, nv, na, lds, thr in ks:
        ao = (nv + 3) // 4 * 4
        txt += f""".p2align 6
.amdhsa_kernel {name}
  .amdhsa_next_free_vgpr {ao + na}
  .amdhsa_next_free_sgpr 102
  .amdhsa_accum_offset {ao}
  .amdhsa_group_segment_fixed_size 0
  .amdhsa_kernarg_size 88
  .amdhsa_user_sgpr_count 2
  .amdhsa_user_sgpr_kernarg_segment_ptr 1
  .amdhsa_system_sgpr_workgroup_id_x 1
.end_amdhsa_kernel
"""
    import subprocess, re as _re
    open("_sz.s", "w").write(txt)
    subprocess.run(["clang", "-x", "assembler", "-target", "amdgcn-amd-amdhsa", "-mcpu=gfx950", "-c", "_sz.s", "-o", "_sz.o"], check=True)
    o = subprocess.run(["llvm-objdump", "-h", "-t", "_sz.o"], capture_output=True, text=True).stdout
    sz = int(_re.search(r"\.text\s+([0-9a-f]+)", o).group(1), 16)
    pc0 = int(_re.search(r"([0-9a-f]+) l\s+\.text\s+[0-9a-f]+ L_k1_pc", o).group(1), 16)
    txt = txt.replace(".set CODE_LEN, 0x12345", f".set CODE_LEN, {(sz - pc0 - 64) & ~3}")
    open(outpath, "w").write(txt)
    print("nops inserted:", p.nops, "bytes:", len(txt), "code bytes:", sz)

def cli(kernels):
    global K1ST
    for a_ in sys.argv[2:]:
        if a_ == "stamps": gen2.STAMPS = True
        else:
            k_, v_ = a_.split("="); OPT[k_] = int(v_)
    main(sys.argv[1] if len(sys.argv) > 1 else f"cdna_kernels/{NAME}.s", kernels)

if __name__ == "__main__":
    cli((K1, K2))
```

```python
import sys, math, struct
from asmlib import *
import gen2, gen5
from gen2 import *
from gen3 import cost, emit, weave, MF, take, collect
from gen4 import setflag2, poll_issue, poll_check, sLOC
from gen5 import OPT, K1, cli

def K2(p):
    name = "k2_kernel"
    prologue(p, name, [sWS, sX, sWO, sW1, sW2, sB2, sOUT])
    sG, sM, sT0, sT1, sT2, sT3 = 46, 47, 48, 49, 50, 51
    sH, sR = sG, sM
    sKB, sVB, sCNT, sKH, sEX, sA, sB14 = 52, 53, 54, 55, 56, 58, 59
    sC7, sRT0, sRT3, sCT = 60, 61, 62, 63
    sFXo, sKB0, sVB0, sW2B, sU0, sU1, sU2, sU3 = 97, 98, 99, 100, 12, 13, 14, 15
    LWO, LH0, LA = 0, 57344, 114688
    LH1 = LWO
    vL16, vT1, vT2, vT3, vT4 = 2, 3, 4, 5, 6
    vVA, vVA2, vXID, vZ, vOne = 7, 8, 9, 10, 11
    vQF, vSB, vPB, vRD = 12, 44, 76, 92
    vXV, vHV, vBV, vAU = 140, 148, 156, 164
    vXA, vB2A, vPX = 180, 181, 182
    vD9, vDW, vRW = 184, 188, 192
    vO = 196
    aO, aKV, aW2 = 0, 64, 112
    NB = 4
    p(f"""
    s_and_b32 {s(sT0)}, s2, 7
    s_lshl_b32 {s(sT0)}, {s(sT0)}, 1
    s_bfe_u32 {s(sT1)}, s2, 0x10003
    s_add_u32 {s(sG)}, {s(sT0)}, {s(sT1)}
    s_lshr_b32 {s(sM)}, s2, 4
    v_lshlrev_b32 {v(vL16)}, 4, v1
    v_lshrrev_b32 {v(vT1)}, 5, v1
    v_mul_u32_u24 {v(vVA)}, {448*16 - 512}, {v(vT1)}
    v_add_u32 {v(vVA)}, {v(vVA)}, {v(vL16)}
    v_add_u32 {v(vVA2)}, {2*448*16}, {v(vVA)}
    s_mul_i32 {s(sT0)}, {s(sH)}, 7
    s_lshr_b32 {s(sT0)}, {s(sT0)}, 1
    s_lshl_b32 {s(sT0)}, {s(sT0)}, 9
    s_mul_i32 {s(sT1)}, {s(sR)}, {4*112*512}
    s_add_u32 {s(sT1)}, {s(sT1)}, {s(sT0)}
    s_add_u32 {s(sKB0)}, {s(sT0)}, {WS_QK + 56*512}
    s_mul_i32 {s(sKB)}, {s(sWAVE)}, {16*112*512}
    s_add_u32 {s(sKB)}, {s(sKB)}, {s(sKB0)}
    s_mul_i32 {s(sVB0)}, {s(sH)}, 448
    s_add_u32 {s(sVB0)}, {s(sVB0)}, {WS_V}
    s_mul_i32 {s(sVB)}, {s(sWAVE)}, {16*4*448*16}
    s_add_u32 {s(sVB)}, {s(sVB)}, {s(sVB0)}
    s_mov_b32 {s(sEX)}, 0x0fffffff
    s_mov_b32 {s(sEX+1)}, 0x0fffffff
    v_mov_b32 {v(vT1)}, {s(sONES)}
    """)
    for j, r in enumerate((sU0, sU1, sU2, sU3)):
        p(f"s_xor_b32 {s(r)}, {s(sWAVE)}, {j}\ns_mul_i32 {s(r)}, {s(r)}, {112*512}\ns_add_u32 {s(r)}, {s(r)}, {s(sT1)}")
    for j in range(8): p(f"v_accvgpr_write_b32 {a(aKV + 8 + j)}, {v(vT1)}")
    p("s_waitcnt lgkmcnt(0)")
    def ldk(b):
        return [f"buffer_load_dwordx4 {a(aKV + 16*b, 4)}, {v(vL16)}, {srd(sWS)}, {s(sKB)} offen",
                f"buffer_load_dwordx4 {a(aKV + 16*b + 4, 4)}, {v(vL16)}, {srd(sWS)}, {s(sKB)} offen offset:1024",
                f"s_add_u32 {s(sKB)}, {s(sKB)}, {112*512}"]
    def ldv(b):
        return [f"s_mov_b64 exec, {s(sEX,2)}",
                f"buffer_load_dwordx4 {a(aKV + 16*b + 8, 4)}, {v(vVA)}, {srd(sWS)}, {s(sVB)} offen",
                f"buffer_load_dwordx4 {a(aKV + 16*b + 12, 4)}, {v(vVA2)}, {srd(sWS)}, {s(sVB)} offen",
                f"s_mov_b64 exec, -1", f"s_add_u32 {s(sVB)}, {s(sVB)}, {4*448*16}"]
    def ldq(t):
        return [f"buffer_load_dwordx4 {v(vQF + 8*t + 4*sx, 4)}, {v(vL16)}, {srd(sWS)}, {s(sU0 + t)} offen offset:{sx*1024}" for sx in range(2)]
    emit(p, ldq(1) + ldk(0) + ldq(2) + ldv(0) + ldq(3) + ldq(0))
    for b in range(1, NB):
        for j in range(8): p(f"v_accvgpr_write_b32 {a(aKV + 16*b + 8 + j)}, {v(vT1)}")
    p(f"""
    s_and_b32 {s(sT0)}, {s(sH)}, 1
    s_cmp_eq_u32 {s(sT0)}, 1
    s_cselect_b32 {s(sT0)}, 0, -1
    s_cselect_b32 {s(sT1)}, -1, 0
    v_cmp_lt_u32 vcc, 31, v1
    v_mov_b32 {v(vT1)}, {s(sT0)}
    v_mov_b32 {v(vT2)}, {s(sT1)}
    v_cndmask_b32 {v(vT3)}, {v(vT1)}, -1, vcc
    v_cndmask_b32 {v(vT4)}, -1, {v(vT2)}, vcc
    """)
    emit(p, ldk(1) + ldv(1))
    p(f"""
    s_cmp_ge_u32 {s(sM)}, 7
    s_cselect_b32 {s(sT1)}, 2, 0
    s_cselect_b32 {s(sT0)}, 7, 0
    s_sub_u32 {s(sC7)}, {s(sM)}, {s(sT0)}
    s_lshl_b32 {s(sRT0)}, {s(sG)}, 2
    s_add_u32 {s(sRT0)}, {s(sRT0)}, {s(sT1)}
    s_lshr_b32 {s(sT0)}, {s(sWAVE)}, 1
    s_add_u32 {s(sRT3)}, {s(sRT0)}, {s(sT0)}
    s_and_b32 {s(sKH)}, {s(sWAVE)}, 1
    s_lshl_b32 {s(sCT)}, {s(sC7)}, 1
    s_add_u32 {s(sCT)}, {s(sCT)}, {s(sKH)}
    v_and_b32 {v(vT1)}, 31, v1
    v_mul_u32_u24 {v(vXA)}, 896, {v(vT1)}
    v_lshrrev_b32 {v(vT1)}, 5, v1
    v_lshlrev_b32 {v(vB2A)}, 4, {v(vT1)}
    v_add_u32 {v(vXA)}, {v(vB2A)}, {v(vXA)}
    s_mul_i32 {s(sT0)}, {s(sRT3)}, {32*896}
    s_lshl_b32 {s(sT1)}, {s(sCT)}, 6
    s_add_u32 {s(sT0)}, {s(sT0)}, {s(sT1)}
    v_add_u32 {v(vXA)}, {s(sT0)}, {v(vXA)}
    v_add_u32 {v(vB2A)}, {s(sT1)}, {v(vB2A)}
    v_mov_b32 {v(vZ)}, 0
    v_mov_b32 {v(vOne)}, 1
    s_getreg_b32 {s(sLOC)}, hwreg(HW_REG_XCC_ID)
    s_and_b32 {s(sLOC)}, {s(sLOC)}, 15
    s_add_u32 {s(sLOC)}, {s(sLOC)}, 1
    s_lshl_b32 {s(sFXo)}, {s(sG)}, 11
    s_add_u32 {s(sFXo)}, {s(sFXo)}, {FX}
    s_lshl_b32 {s(sT0)}, {s(sM)}, 7
    s_add_u32 {s(sT0)}, {s(sT0)}, {s(sFXo)}
    v_mov_b32 {v(vXID)}, {s(sLOC)}
    s_mov_b64 exec, 1
    buffer_store_dword {v(vXID)}, {v(vZ)}, {srd(sWS)}, {s(sT0)} offen sc1
    s_mov_b64 exec, -1
    v_min_u32 {v(vPX)}, 13, v1
    v_lshlrev_b32 {v(vPX)}, 7, {v(vPX)}
    s_mul_i32 {s(sA)}, {s(sWAVE)}, 12288
    s_add_u32 {s(sA)}, {s(sA)}, {LA}
    s_mul_i32 {s(sB14)}, {s(sWAVE)}, 14336
    """)
    dma128_addr(p, vDW, 3584, vT1, vT2)
    dma128_addr(p, vD9, 896, vT1, vT2)
    for k in range(1, 4):
        p(f"v_add_u32 {v(vDW+k)}, {k*(8*3584 - 1024)}, {v(vDW)}")
        p(f"v_add_u32 {v(vD9+k)}, {k*(8*896 - 1024)}, {v(vD9)}")
    for j in range(1, 4):
        p(f"s_xor_b32 {s(sT0)}, {s(sWAVE)}, {j}\ns_mul_i32 {s(sT0)}, {s(sT0)}, 12288\ns_add_u32 {s(sT0)}, {s(sT0)}, {(j-1)*4096}")
        p(f"v_add_u32 {v(vRW+j-1)}, {s(sT0)}, {v(vL16)}")
    p(f"""
    s_mul_i32 {s(sU0)}, {s(sWAVE)}, {112*896}
    s_lshl_b32 {s(sT0)}, {s(sC7)}, 7
    s_add_u32 {s(sW2B)}, {s(sU0)}, {s(sU0)}
    s_add_u32 {s(sU0)}, {s(sU0)}, {s(sT0)}
    s_add_u32 {s(sW2B)}, {s(sW2B)}, {s(sT0)}
    s_mul_i32 {s(sU1)}, {s(sWAVE)}, {112*3584}
    s_lshl_b32 {s(sT0)}, {s(sM)}, 7
    s_add_u32 {s(sU1)}, {s(sU1)}, {s(sT0)}
    """)
    def wgrp(srdn, sbase, va, stride, ldsbase, g, extra=0, tag=None):
        n = 4 if g < 3 else 2
        head = [f"s_add_u32 m0, {s(sB14)}, {ldsbase + g*4096}", f"s_add_u32 {s(sT3)}, {s(sbase)}, {g*32*stride + extra}"]
        ld = [(f"buffer_load_dwordx4 {v(va+k)}, {srd(srdn)}, {s(sT3)} offen offset:{k*1024} lds", tag) for k in range(n)]
        return [head + [ld[0]]] + ld[1:]
    stamp(p, 1)
    def qmask(t):
        q = vQF + 8*t
        return [f"v_and_b32 {v(q+j)}, {v(vT3)}, {v(q+j)}" for j in (0, 1)] + [f"v_and_b32 {v(q+j)}, {v(vT4)}, {v(q+j)}" for j in (6, 7)]
    T = lambda n: (n + 1) % 4
    def oacc(t): return v(vO, 16) if t == 0 else a(aO + 16*(t-1), 16)
    def smf(n, half):
        return MF(v(vSB + 16*(n % 2), 16), a(aKV + 16*((n // 4) % NB) + 4*half, 4), v(vQF + 8*T(n) + 4*half, 4), "0" if half == 0 else None)
    def pvmf(n, half):
        return MF(oacc(T(n)), a(aKV + 16*((n // 4) % NB) + 8 + 4*half, 4), v(vPB + 8*(n % 2) + 4*half, 4), "0" if (n < 4 and half == 0) else None)
    def expcvt(n, qd):
        S = vSB + 16*(n % 2) + 4*qd
        for j in range(4): p(f"v_exp_f32 {v(S+j)}, {v(S+j)}")
        for j in range(2): p(f"v_cvt_pk_bf16_f32 {v(vPB + 8*(n % 2) + 2*qd + j)}, {v(S+2*j)}, {v(S+2*j+1)}")
    emit(p, qmask(1)); p(smf(0, 0)); p(smf(0, 1)); emit(p, qmask(2))
    stamp(p, 2)
    side = {n: [] for n in range(64)}
    side[0] += qmask(3) + ldk(2) + ldv(2); side[1] += qmask(0)
    side[2] += ldk(3) + ldv(3)
    for st in range(1, 13): side[4*st] += ldk((st + 3) % NB) + ldv((st + 3) % NB)
    jobs = []
    for g in range(4): jobs += wgrp(sWO, sU0, vD9, 896, LWO, g)
    for g in range(4): jobs += wgrp(sW1, sU1, vDW, 3584, LH0, g)
    misc = [[f"buffer_load_dwordx4 {v(vXV, 4)}, {v(vXA)}, {srd(sX)}, 0 offen", f"buffer_load_dwordx4 {v(vXV+4, 4)}, {v(vXA)}, {srd(sX)}, 0 offen offset:32"],
            [f"buffer_load_dwordx4 {v(vBV, 4)}, {v(vB2A)}, {srd(sB2)}, 0 offen", f"buffer_load_dwordx4 {v(vBV+4, 4)}, {v(vB2A)}, {srd(sB2)}, 0 offen offset:32"],
            [f"s_lshl_b32 {s(sT0)}, {s(sM)}, 11", f"s_add_u32 {s(sT0)}, {s(sT0)}, {WS_AU}",
             f"buffer_load_dwordx4 {v(vAU, 4)}, {v(vL16)}, {srd(sWS)}, {s(sT0)} offen", f"buffer_load_dwordx4 {v(vAU+4, 4)}, {v(vL16)}, {srd(sWS)}, {s(sT0)} offen offset:1024"],
            [f"s_add_u32 {s(sT0)}, {s(sT0)}, {28*1024}",
             f"buffer_load_dwordx4 {v(vAU+8, 4)}, {v(vL16)}, {srd(sWS)}, {s(sT0)} offen", f"buffer_load_dwordx4 {v(vAU+12, 4)}, {v(vL16)}, {srd(sWS)}, {s(sT0)} offen offset:1024"],
            f"buffer_load_dword {v(vXID)}, {v(vPX)}, {srd(sWS)}, {s(sFXo)} offen sc1",
            [f"v_add_u32 {v(vT3+j)}, {LA}, {v(vRW+j)}" for j in range(2)] + [f"v_add_u32 {v(vT1)}, {LA}, {v(vRW+2)}", f"v_add_u32 {v(vT2)}, {s(sA)}, {v(vL16)}"],
            collect(lambda q: q(f"""
            s_lshl_b32 {s(sT0)}, {s(sR)}, 2
            s_add_u32 {s(sT0)}, {s(sT0)}, {s(sWAVE)}
            s_lshl_b32 {s(sT0)}, {s(sT0)}, 4
            s_add_u32 {s(sT0)}, {s(sT0)}, {s(sH)}
            s_lshl_b32 {s(sT1)}, {s(sT0)}, 7
            s_add_u32 {s(sT1)}, {s(sT1)}, {FB}
            s_lshl_b32 {s(sT0)}, {s(sT0)}, 11
            s_add_u32 {s(sT0)}, {s(sT0)}, {WS_O}
            """))]
    slots = [n for n in range(5, 50) if n % 4 != 0]
    for k, j in enumerate(jobs): side[slots[k]].append(j)
    for k, j in enumerate(misc): side[51 + k].append(j)
    wadr = {1: vT3, 2: vT4, 3: vT1}
    def owr(j, q): return f"ds_write_b128 {v(wadr[j])}, {a(aO + 16*(j-1) + 4*q, 4)} offset:{q*1024}"
    for n in range(64):
        wr = [owr(n - 61, q) for q in range(4)] if n >= 62 else []
        if n + 1 < 64: p(smf(n + 1, 0))
        expcvt(n, 0)
        if n + 1 < 64: p(smf(n + 1, 1))
        emit(p, take(wr, 1))
        expcvt(n, 1)
        if n >= 1: p(pvmf(n - 1, 0))
        emit(p, take(wr, 1))
        expcvt(n, 2)
        if n >= 1: p(pvmf(n - 1, 1))
        emit(p, side[n] + take(wr, 1))
        expcvt(n, 3)
        emit(p, wr)
    stamp(p, 3)
    p(pvmf(63, 0)); p(pvmf(63, 1))
    for q in range(4): p(owr(3, q))
    p(f"""
    v_cmp_ne_u32 vcc, {s(sLOC)}, {v(vXID)}
    s_cmp_eq_u64 vcc, 0
    s_cselect_b32 {s(sLOC)}, {OPT.get("loc", 1)}, 0
    s_waitcnt vmcnt(0) lgkmcnt(0)
    s_barrier
    """)
    stamp(p, 4)
    for w in range(3):
        for q in range(4): p(f"ds_read_b128 {v(vRD + 16*w + 4*q, 4)}, {v(vT2)} offset:{w*4096 + q*1024}")
    for w in range(3):
        for j in range(8): p(f"v_pk_add_f32 {v(vO+2*j, 2)}, {v(vO+2*j, 2)}, {v(vRD + 16*w + 2*j, 2)}")
    p(f"""
    v_mov_b32 {v(vT1)}, {v(vO+12)}
    v_mov_b32 {v(vT2)}, {v(vO+12)}
    v_max3_f32 {v(vT3)}, |{v(vO)}|, |{v(vO+1)}|, |{v(vO+2)}|
    v_permlane32_swap_b32 {v(vT1)}, {v(vT2)}
    """)
    for j in range(3, 15, 2): p(f"v_max3_f32 {v(vT3)}, {v(vT3)}, |{v(vO+j)}|, |{v(vO+j+1)}|")
    p(f"""
    v_max_f32 {v(vT3)}, {v(vT3)}, |{v(vO+15)}|
    s_mov_b32 {s(sT2)}, {fl(2.0**-60)}
    s_mov_b32 {s(sT3)}, {fl(2.0**60)}
    v_cmp_nle_f32 vcc, {s(sT2)}, {v(vT2)}
    v_cmp_nge_f32 s[4:5], {s(sT3)}, {v(vT2)}
    s_mov_b32 {s(sT2)}, 0x7f7fffff
    s_or_b64 vcc, vcc, s[4:5]
    v_cmp_nge_f32 s[4:5], {s(sT2)}, {v(vT3)}
    s_or_b64 vcc, vcc, s[4:5]
    """)
    if OPT.get("forceslow"): p("s_cmp_eq_u32 0, 0")
    p("s_cbranch_scc1 L_slow")
    p.label("L_slow_ret")
    p(f"""
    v_rcp_f32 {v(vT2)}, {v(vT2)}
    v_cmp_lt_u32 vcc, 31, v1
    """)
    for m in range(2):
        for j in range(4*m, 4*m+4): p(f"v_pk_mul_f32 {v(vO+2*j, 2)}, {v(vO+2*j, 2)}, {v(vT2, 2)} op_sel_hi:[1,0]")
        for j in range(4): p(f"v_cvt_pk_bf16_f32 {v(vO+8*m+j)}, {v(vO+8*m+2*j)}, {v(vO+8*m+2*j+1)}")
        if m == 1:
            for j in (2, 3): p(f"v_cndmask_b32 {v(vO+8+j)}, {v(vO+8+j)}, 0, vcc")
        p(f"buffer_store_dwordx4 {v(vO+8*m, 4)}, {v(vL16)}, {srd(sWS)}, {s(sT0)} offen offset:{m*1024} sc1", tag="ost")
    p(f"s_cmp_lt_u32 {s(sM)}, 14\ns_cbranch_scc1 L_cont")
    st = p.save()
    p("s_waitcnt vmcnt(0)")
    setflag(p, vOne, vZ, sT1)
    p(f"s_branch L_end_{name}")
    p.label("L_cont"); p.restore(st)
    NBT, NCT = OPT.get("nbt", 6), OPT.get("nct", 2)
    NRT = NBT + NCT
    assert 8 <= NRT <= 9
    vA5 = 212
    def w2src(tile):
        half, i = tile // 7, tile % 7
        return (half*896 + 32*i) * 896
    def w2dma(tile, sb, ldsoff):
        return [[f"s_add_u32 m0, {s(sb)}, {ldsoff}", f"s_add_u32 {s(sT3)}, {s(sW2B)}, {w2src(tile)}",
                 (f"buffer_load_dwordx4 {v(vD9)}, {srd(sW2)}, {s(sT3)} offen lds", f"w2_{tile}")]] + \
               [(f"buffer_load_dwordx4 {v(vD9+k)}, {srd(sW2)}, {s(sT3)} offen offset:{k*1024} lds", f"w2_{tile}") for k in range(1, 4)]
    def w2toreg(tile, slot):
        p.wait_vm(f"w2_{tile}")
        for e in range(2):
            for c in range(2):
                for h in range(2):
                    p(f"ds_read_b64_tr_b16 {a(aW2 + 16*tile + 8*e + 4*c + 2*h, 2)}, {v(vA5 + c)} offset:{slot*4096 + e*2048 + 512*h}", tag=f"r{tile}")
    for t in range(2): emit(p, w2dma(t, sA, t*4096))
    vA = 216
    tr_addr(p, vA, 128, swap=True, perm_rows=False, t1=vT1, t2=vT3, xor128=True)
    p(f"""
    v_xor_b32 {v(vA+1)}, 64, {v(vA)}
    s_lshl_b32 {s(sT2)}, {s(sKH)}, 6
    v_xor_b32 {v(vT1)}, {s(sT2)}, {v(vA)}
    v_xor_b32 {v(vT3)}, {s(sT2)}, {v(vA+1)}
    v_add_u32 {v(vA5)}, {s(sA)}, {v(vT1)}
    v_add_u32 {v(vA5+1)}, {s(sA)}, {v(vT3)}
    s_add_u32 {s(sT0)}, {s(sB14)}, {LH0}
    v_add_u32 {v(vA5+2)}, {s(sT0)}, {v(vT1)}
    v_add_u32 {v(vA5+3)}, {s(sT0)}, {v(vT3)}
    v_add_u32 {v(vA+2)}, {LH0}, {v(vA)}
    v_add_u32 {v(vA+3)}, {LH0}, {v(vA+1)}
    """)
    vA0, vA1, vPA, vP = 12, 13, 14, 15
    vWF, vACC = 16, 96
    tr_addr(p, vA0, 128, swap=True, perm_rows=True, t1=vT1, t2=vT3, xor128=True)
    p(f"""
    s_mul_i32 {s(sT0)}, {s(sKH)}, {8*28*128}
    v_add_u32 {v(vA0)}, {s(sT0)}, {v(vA0)}
    v_xor_b32 {v(vA0)}, {s(sT2)}, {v(vA0)}
    v_xor_b32 {v(vA1)}, 64, {v(vA0)}
    v_and_b32 {v(vPA)}, 7, v1
    v_lshlrev_b32 {v(vPA)}, 7, {v(vPA)}
    """)
    for j in range(8):
        p(f"v_lshlrev_b32 {v(vACC+2*j)}, 16, {v(vXV+j)}")
        p(f"v_and_b32 {v(vACC+2*j+1)}, 0xffff0000, {v(vXV+j)}")
    p.wait_vm("ost")
    setflag(p, vOne, vZ, sT1)
    stamp(p, 5)
    for t in range(NBT):
        if t + 2 < NBT:
            if t >= 1: p.wait_lg(f"r{t-1}")
            emit(p, w2dma(t + 2, sA, ((t + 2) % 3)*4096))
        w2toreg(t, t % 3)
    p(f"""
    s_lshl_b32 {s(sT0)}, {s(sRT3)}, 11
    s_lshl_b32 {s(sT1)}, {s(sKH)}, 10
    s_add_u32 {s(sT0)}, {s(sT0)}, {s(sT1)}
    s_add_u32 {s(sT0)}, {s(sT0)}, {FB}
    s_add_u32 {s(sT1)}, {s(sA)}, 8192
    v_add_u32 {v(vT1)}, {s(sT1)}, {v(vL16)}
    v_add_u32 {v(vT2)}, {LA + 8192}, {v(vRW)}
    s_lshl_b32 {s(sT2)}, {s(sRT3)}, 15
    s_lshl_b32 {s(sT1)}, {s(sKH)}, 14
    s_add_u32 {s(sT2)}, {s(sT2)}, {s(sT1)}
    s_add_u32 {s(sT2)}, {s(sT2)}, {WS_O}
    """)
    def reads3(f):
        base = (28*(f // 2) + 16*(f % 2)) * 128
        return [f"ds_read_b64_tr_b16 {v(vWF + 8*(f % 3) + 4*ct + 2*h, 2)}, {v(va)} offset:{base + h*1024}" for ct, va in ((1, vA1), (0, vA0)) for h in range(2)]
    emit(p, reads3(0) + reads3(1))
    if OPT.get("st2"): stamp(p, 1)
    poll(p, vP, vPA, sT0, sCNT, "pollB")
    stamp(p, 6)
    aOF = 0
    def old(f):
        r = [f"buffer_load_dwordx4 {a(aOF + 4*f, 4)}, {v(vL16)}, {srd(sWS)}, {s(sT2)} offen offset:{(f % 4)*1024} sc1"]
        if f % 4 == 3: r.append(f"s_add_u32 {s(sT2)}, {s(sT2)}, 4096")
        return r
    PF = OPT.get("pf", 8)
    for f in range(PF): emit(p, old(f))
    sFC = sKB
    ep3 = collect(lambda q: q(f"""
    s_mul_i32 {s(sT0)}, {s(sRT3)}, {56*512}
    s_lshl_b32 {s(sT1)}, {s(sCT)}, 11
    s_add_u32 {s(sT0)}, {s(sT0)}, {s(sT1)}
    s_add_u32 {s(sT0)}, {s(sT0)}, {WS_H}
    s_mul_i32 {s(sT2)}, {s(sRT3)}, {14*256}
    s_lshl_b32 {s(sT1)}, {s(sCT)}, 8
    s_add_u32 {s(sT2)}, {s(sT2)}, {s(sT1)}
    s_add_u32 {s(sT2)}, {s(sT2)}, {WS_ST}
    s_lshl_b32 {s(sFC)}, {s(sRT3)}, 4
    s_add_u32 {s(sFC)}, {s(sFC)}, {s(sCT)}
    s_lshl_b32 {s(sFC)}, {s(sFC)}, 7
    s_add_u32 {s(sFC)}, {s(sFC)}, {FC}
    v_mov_b32 v40, 0
    v_mov_b32 v41, 0
    v_lshlrev_b32 {v(vT3)}, 3, v1
    """))
    def m3(f, own): return MF(v(vACC + (0 if own else 16), 16), v(vWF + 8*(f % 3) + (0 if own else 4), 4), a(aOF + 4*f, 4), "0" if (f == 0 and not own) else None)
    for f in range(14):
        fill = []
        if f + PF < 16: fill.append(old(f + PF))
        fill += reads3(f + 2)
        weave(p, [m3(f, 0), m3(f, 1)], fill)
    weave(p, [m3(14, 0), m3(15, 0), m3(14, 1), m3(15, 1)], ep3)
    stamp(p, 7)
    for q in range(4): p(f"ds_write_b128 {v(vT1)}, {v(vACC + 16 + 4*q, 4)} offset:{q*1024}")
    p("s_waitcnt lgkmcnt(0)\ns_barrier")
    vR3 = 44
    for q in range(4): p(f"ds_read_b128 {v(vR3 + 4*q, 4)}, {v(vT2)} offset:{q*1024}")
    for m in range(2):
        for j in range(4*m, 4*m+4): p(f"v_pk_add_f32 {v(vACC+2*j, 2)}, {v(vACC+2*j, 2)}, {v(vR3+2*j, 2)}")
        for j in range(4*m, 4*m+4): p(f"v_cvt_pk_bf16_f32 {v(vHV+j)}, {v(vACC+2*j)}, {v(vACC+2*j+1)}")
        p(f"buffer_store_dwordx4 {v(vHV+4*m, 4)}, {v(vL16)}, {srd(sWS)}, {s(sT0)} offen offset:{m*1024} sc1")
    for j in range(8):
        p(f"v_dot2c_f32_bf16 v40, {s(sONES)}, {v(vHV+j)}")
        p(f"v_dot2c_f32_bf16 v41, {v(vHV+j)}, {v(vHV+j)}")
    p(f"""
    v_mov_b32 v42, v40
    v_mov_b32 v43, v41
    v_permlane32_swap_b32 v42, v40
    v_permlane32_swap_b32 v43, v41
    v_pk_add_f32 v[40:41], v[40:41], v[42:43]
    s_mov_b32 exec_hi, 0
    """)
    p(f"buffer_store_dwordx2 v[40:41], {v(vT3)}, {srd(sWS)}, {s(sT2)} offen sc1", tag="hst")
    p(f"s_mov_b64 exec, -1")
    for t in range(NBT, NRT): emit(p, w2dma(t, sA, ((t - NBT) % 2)*4096))
    h1w = []
    for g in range(4): h1w += wgrp(sW1, sU1, vDW, 3584, LH1, g, extra=1792, tag="h1w")
    HC = OPT.get("hc", 0)
    sRT4 = sVB
    vPA, vP = vPX, 183
    vK1, vK2, vSD, vTK = 220, 222, 224, 228
    vSTt, vG = 196, 232
    vWF, vACC = 12, 48
    p(f"""
    s_lshl_b32 {s(sRT4)}, {s(sG)}, 2
    s_add_u32 {s(sRT4)}, {s(sRT4)}, {s(sWAVE)}
    s_lshl_b32 {s(sT0)}, {s(sRT4)}, 11
    s_add_u32 {s(sT0)}, {s(sT0)}, {FC}
    s_mul_i32 {s(sT2)}, {s(sRT4)}, {56*512}
    s_add_u32 {s(sT2)}, {s(sT2)}, {WS_H}
    s_mul_i32 {s(sT1)}, {s(sRT4)}, {14*256}
    s_add_u32 {s(sT1)}, {s(sT1)}, {WS_ST}
    """)
    p.wait_vm("hst")
    setflag2(p, vOne, vZ, sFC)
    stamp(p, 8)
    emit(p, take(h1w, HC))
    assert NCT <= 2
    for t in range(NBT, NRT): w2toreg(t, (t - NBT) % 2)
    WD = 4
    def reads4(sx, hb):
        return [f"ds_read_b64_tr_b16 {v(vWF + 8*(sx % WD) + 4*k + 2*h, 2)}, {v(vA + 2*(1 - hb) + k)} offset:{sx*2048 + 512*h}" for k in range(2) for h in range(2)]
    for sx in range(3): emit(p, reads4(sx, 0))
    poll(p, vP, vPA, sT0, sCNT, "pollC")
    stamp(p, 9)
    aHF = 0
    def hld(f):
        r = [f"buffer_load_dwordx4 {a(aHF + 4*f, 4)}, {v(vL16)}, {srd(sWS)}, {s(sT2)} offen offset:{(f % 4)*1024} sc1"]
        if f % 4 == 3: r.append(f"s_add_u32 {s(sT2)}, {s(sT2)}, 4096")
        return r
    for f in range(PF): emit(p, hld(f))
    stl = [f"buffer_load_dwordx2 {v(vSTt + 2*j, 2)}, {v(vT3)}, {srd(sWS)}, {s(sT1)} offen offset:{j*512} sc1" for j in range(7)]
    k1 = -2.0 * math.sqrt(2.0 / math.pi) * LOG2E
    k2 = k1 * 0.044715
    vM, vV = vSTt + 2, vSTt + 3
    def statf(q):
        for j in range(1, 7):
            q(f"v_add_f32 {v(vSTt)}, {v(vSTt)}, {v(vSTt+2*j)}\nv_add_f32 {v(vSTt+1)}, {v(vSTt+1)}, {v(vSTt+2*j+1)}")
        half_sum(q, vSTt, vT1); half_sum(q, vSTt + 1, vT1)
        q(f"""
        v_mul_f32 {v(vM)}, {fl(-1.0/448)}, {v(vSTt)}
        v_mul_f32 {v(vV)}, {fl(1.0/448)}, {v(vSTt+1)}
        v_fma_f32 {v(vV)}, -{v(vM)}, {v(vM)}, {v(vV)}
        v_max_f32 {v(vV)}, 0, {v(vV)}
        v_add_f32 {v(vT1)}, {fl(EPS)}, {v(vV)}
        v_fmamk_f32 {v(vT1)}, {v(vT1)}, {fl(EPS)}, {v(vV)}
        v_rsq_f32 {v(vT2)}, {v(vT1)}
        v_sqrt_f32 {v(vSD)}, {v(vT1)}
        v_mul_f32 {v(vK1)}, {fl(k1)}, {v(vT2)}
        v_mul_f32 {v(vK2)}, {v(vT2)}, {v(vT2)}
        v_mul_f32 {v(vK2)}, {v(vK2)}, {v(vT2)}
        v_mul_f32 {v(vK2)}, {fl(k2)}, {v(vK2)}
        v_cmp_lt_u32 vcc, 31, v1
        """)
        hi_or_lo(q, vTK, vM, vT2); hi_or_lo(q, vTK + 1, vSD, vT2)
        q(f"v_mov_b32 {v(vTK+2)}, 0\nv_mov_b32 {v(vTK+3)}, 0")
        q(f"""
        s_mul_i32 {s(sU2)}, {s(sRT4)}, {224*512}
        s_lshl_b32 {s(sT1)}, {s(sM)}, 12
        s_add_u32 {s(sU2)}, {s(sU2)}, {s(sT1)}
        s_add_u32 {s(sU2)}, {s(sU2)}, {WS_H1}
        s_add_u32 {s(sU3)}, {s(sU2)}, {112*512}
        s_lshl_b32 {s(sFC)}, {s(sRT4)}, 4
        s_add_u32 {s(sFC)}, {s(sFC)}, {s(sM)}
        s_lshl_b32 {s(sFC)}, {s(sFC)}, 7
        s_add_u32 {s(sFC)}, {s(sFC)}, {FD0}
        """)
    fin = collect(statf)
    def gelu_ops(ct):
        ops = []
        acc = vACC + 16*ct
        bc = "op_sel_hi:[1,0,0]"
        for j0 in range(0, 16, 8):
            for j in range(0, 8, 2): ops.append(f"v_pk_mul_f32 {v(vG+j,2)}, {v(acc+j0+j,2)}, {v(acc+j0+j,2)}")
            for j in range(0, 8, 2): ops.append(f"v_pk_fma_f32 {v(vG+j,2)}, {v(vG+j,2)}, {v(vK2,2)}, {v(vK1,2)} {bc}")
            for j in range(0, 8, 2): ops.append(f"v_pk_mul_f32 {v(vG+j,2)}, {v(vG+j,2)}, {v(acc+j0+j,2)}")
            for j in range(8): ops.append(f"v_exp_f32 {v(vG+j)}, {v(vG+j)}")
            for j in range(0, 8, 2): ops.append(f"v_pk_fma_f32 {v(vG+j,2)}, {v(vG+j,2)}, {v(vSD,2)}, {v(vSD,2)} {bc}")
            for j in range(8): ops.append(f"v_rcp_f32 {v(vG+j)}, {v(vG+j)}")
            for j in range(0, 8, 2): ops.append(f"v_pk_mul_f32 {v(vG+j,2)}, {v(vG+j,2)}, {v(acc+j0+j,2)}")
            for j in range(4): ops.append(f"v_cvt_pk_bf16_f32 {v(acc + j0 + j)}, {v(vG+2*j)}, {v(vG+2*j+1)}")
            so = sU2 if ct < 2 else sU3
            ops.append((f"buffer_store_dwordx4 {v(acc+j0, 4)}, {v(vL16)}, {srd(sWS)}, {s(so)} offen offset:{(ct % 2)*2048 + (j0//8)*1024} sc1", f"h1_{ct}"))
        return ops
    def sprinkle(ops, extra, every):
        for i, o in enumerate(ops):
            emit(p, o)
            if i % every == every - 1 and extra: emit(p, take(extra, 1))
    for sx in range(28):
        fill = []
        if sx + PF < 28: fill.append(hld(sx + PF))
        elif h1w: fill += take(h1w, 1)
        if 4 <= sx < 11: fill.append(stl[sx - 4])
        if sx + 3 < 28: fill += reads4(sx + 3, 0)
        if sx >= 18: fill += take(fin, 6)
        weave(p, [MF(v(vACC + 16*k, 16), v(vWF + 8*(sx % WD) + 4*k, 4), a(aHF + 4*sx, 4), "0" if sx == 0 else None) for k in range(2)], fill)
    emit(p, fin)
    for k in range(2): mfma(p, v(vACC + 16*k, 16), v(vAU + 4*k, 4), v(vTK, 4))
    emit(p, h1w)
    stamp(p, 10)
    emit(p, gelu_ops(0) + gelu_ops(1))
    p.wait_vm("h1w")
    p("s_barrier")
    for sx in range(3): emit(p, reads4(sx, 1))
    dm = []
    for t in range(NRT, 11): dm += w2dma(t, sA, (t - 8)*4096)
    for t in range(11, 14): dm += w2dma(t, sB14, LH0 + (t - 11)*4096)
    weave(p, [MF(v(vACC + 32 + 16*k, 16), v(vAU + 8 + 4*k, 4), v(vTK, 4), "0") for k in range(2)], [])
    sHB, sFD = sKB0, sVB0
    vH = 236
    vH, vPD = 240, 242
    set5 = collect(lambda q: q(f"""
    v_and_b32 {v(vPD)}, 3, v1
    v_bfe_u32 {v(vT1)}, v1, 2, 1
    v_lshl_add_u32 {v(vPD)}, {v(vT1)}, 4, {v(vPD)}
    v_lshlrev_b32 {v(vPD)}, 7, {v(vPD)}
    s_mul_i32 {s(sFD)}, {s(sWAVE)}, 7
    s_lshr_b32 {s(sFD)}, {s(sFD)}, 1
    s_lshl_b32 {s(sT0)}, {s(sRT0)}, 4
    s_add_u32 {s(sFD)}, {s(sFD)}, {s(sT0)}
    s_lshl_b32 {s(sFD)}, {s(sFD)}, 7
    s_add_u32 {s(sFD)}, {s(sFD)}, {FD0}
    s_mul_i32 {s(sHB)}, {s(sRT0)}, {224*512}
    s_add_u32 {s(sHB)}, {s(sHB)}, {s(sB14)}
    s_add_u32 {s(sHB)}, {s(sHB)}, {WS_H1}
    s_lshr_b32 {s(sT0)}, {s(sWAVE)}, 1
    s_mul_i32 {s(sT1)}, {s(sT0)}, {224*512}
    v_add_u32 {v(vH)}, {s(sT1)}, {v(vL16)}
    s_sub_u32 {s(sT1)}, {224*512}, {s(sT1)}
    v_add_u32 {v(vH+1)}, {s(sT1)}, {v(vL16)}
    """))
    for sx in range(28):
        fill = []
        if sx + 3 < 28: fill += reads4(sx + 3, 1)
        if sx == OPT.get("fl0", 10):
            def fl0():
                p.wait_vm("h1_1"); setflag2(p, vOne, vZ, sFC); p(f"s_add_u32 {s(sFC)}, {s(sFC)}, {FD1 - FD0}")
            fill.append(fl0)
        elif dm: fill += take(dm, 1)
        if sx >= 24: fill += take(set5, 5)
        weave(p, [MF(v(vACC + 32 + 16*k, 16), v(vWF + 8*(sx % WD) + 4*k, 4), a(aHF + 4*sx, 4)) for k in range(2)], fill)
    emit(p, dm + set5)
    p("s_barrier")
    stamp(p, 11)
    RW = 14
    def h1ld(ks):
        half, k = ks // 14, ks % 14
        r = []
        if k % 4 == 0: r.append(f"s_add_u32 {s(sT0)}, {s(sHB)}, {half*112*512 + k*1024}")
        r.append(f"buffer_load_dwordx4 {a(8*(ks % RW), 4)}, {v(vH)}, {srd(sWS)}, {s(sT0)} offen offset:{(k % 4)*1024} sc1")
        return [r, f"buffer_load_dwordx4 {a(8*(ks % RW) + 4, 4)}, {v(vH+1)}, {srd(sWS)}, {s(sT0)} offen offset:{(k % 4)*1024} sc1"]
    p(poll_issue(vP, vPD, sFD))
    g2 = gelu_ops(2)
    emit(p, g2[:41])
    poll_check(p, vP, vPD, sFD, sCNT, "pollD0")
    p(f"s_add_u32 {s(sFD)}, {s(sFD)}, {FD1 - FD0}")
    P5F = OPT.get("p5f", 7)
    early = []
    for ks in range(P5F): early += h1ld(ks)
    sprinkle(g2[41:] + gelu_ops(3), early, 8)
    emit(p, early)
    stamp(p, 12)
    vAC5 = 112
    acc5 = {0: 112, 1: 48, 2: 64, 3: 196}
    vWF = 12
    def wsrc(ks, c):
        tile, e = ks // 2, ks % 2
        if tile < NRT: return a(aW2 + 16*tile + 8*e + 4*c, 4)
        return v(vWF + 8*(ks % 4) + 4*c, 4)
    def reads5(ks):
        tile, e = ks // 2, ks % 2
        if tile < NRT: return []
        reg, slot = (0, tile - 8) if tile < 11 else (1, tile - 11)
        return [lambda: p.wait_vm(f"w2_{tile}")] + [f"ds_read_b64_tr_b16 {v(vWF + 8*(ks % 4) + 4*c + 2*h, 2)}, {v(vA5 + 2*reg + c)} offset:{slot*4096 + e*2048 + 512*h}" for c in range(2) for h in range(2)]
    def m5(ks, j):
        r, c = j // 2, j % 2
        return MF(v(acc5[j], 16), wsrc(ks, c), a(8*(ks % RW) + 4*r, 4), "0" if (ks == 0 and j != 0) else None)
    for j in range(8):
        p(f"v_lshlrev_b32 {v(vAC5+2*j)}, 16, {v(vHV+j)}\nv_lshlrev_b32 {v(vT4)}, 16, {v(vBV+j)}")
        p(f"v_and_b32 {v(vAC5+2*j+1)}, 0xffff0000, {v(vHV+j)}\nv_and_b32 {v(vT4+1)}, 0xffff0000, {v(vBV+j)}")
        p(f"v_pk_add_f32 {v(vAC5+2*j, 2)}, {v(vAC5+2*j, 2)}, {v(vT4, 2)}")
    CHK = OPT.get("chk", 9)
    FL1 = OPT.get("fl1", 2)
    for ks in range(24):
        fill = []
        if OPT.get("st2") and ks in (0, 14): stamp(p, {0: 2, 14: 3}[ks])
        if ks == FL1:
            p.wait_vm("h1_3"); setflag2(p, vOne, vZ, sFC)
        if ks == CHK - 2: fill.append(poll_issue(vP, vPD, sFD))
        if ks == CHK:
            poll_check(p, vP, vPD, sFD, sCNT, "pollD1")
            for k2 in range(14, ks + P5F): fill += h1ld(k2)
        if ks + P5F < 28 and (ks + P5F < 14 or ks >= CHK): fill += h1ld(ks + P5F)
        fill += reads5(ks + 2)
        weave(p, [m5(ks, j) for j in (3, 2, 1, 0)], fill)
    if OPT.get("st2"): stamp(p, 4)
    def wr5(j): return [f"ds_write_b128 {v(vRW+j-1)}, {v(acc5[j] + 4*q, 4)} offset:{q*1024}" for q in range(4)]
    weave(p, [m5(24, 3), m5(25, 3)], reads5(26) + reads5(27))
    weave(p, [m5(24, 2), m5(25, 2), m5(26, 3), m5(27, 3), m5(26, 2), m5(27, 2)], [f"s_sub_u32 {s(sT0)}, {s(sA)}, {LA}", f"v_add_u32 {v(vT2)}, {s(sT0)}, {v(vL16)}"])
    weave(p, [m5(ks, 1) for ks in range(24, 28)], ["s_nop 5"] + wr5(3))
    weave(p, [m5(ks, 0) for ks in range(24, 28)], wr5(2))
    emit(p, wr5(1))
    p("s_waitcnt lgkmcnt(0)\ns_barrier")
    vRD5 = 48
    for w in range(3):
        for q_ in range(4): p(f"ds_read_b128 {v(vRD5 + 16*w + 4*q_, 4)}, {v(vT2)} offset:{w*4096 + q_*1024}")
    for w in range(3):
        for j in range(8): p(f"v_pk_add_f32 {v(vAC5+2*j, 2)}, {v(vAC5+2*j, 2)}, {v(vRD5 + 16*w + 2*j, 2)}")
    for j in range(8): p(f"v_cvt_pk_bf16_f32 {v(vAC5+j)}, {v(vAC5+2*j)}, {v(vAC5+2*j+1)}")
    p(f"""
    buffer_store_dwordx4 {v(vAC5, 4)}, {v(vXA)}, {srd(sOUT)}, 0 offen
    buffer_store_dwordx4 {v(vAC5+4, 4)}, {v(vXA)}, {srd(sOUT)}, 0 offen offset:32
    """)
    epilogue(p, name, 1)
    p.label("L_slow"); p.reset()
    vMX, vC = vRD, vRD + 16
    p(f"s_mov_b32 {s(sKB)}, {s(sKB0)}\ns_mov_b32 {s(sCNT)}, 64\nv_mov_b32 {v(vMX)}, 0xff7fffff")
    p.label("L_slow_max")
    emit(p, ldk(0))
    p(MF(v(vSB, 16), a(aKV, 4), v(vQF, 4), "0")); p(MF(v(vSB, 16), a(aKV + 4, 4), v(vQF + 4, 4)))
    for j in range(0, 16, 2): p(f"v_max3_f32 {v(vMX)}, {v(vMX)}, {v(vSB+j)}, {v(vSB+j+1)}")
    p(f"s_sub_u32 {s(sCNT)}, {s(sCNT)}, 1\ns_cmp_lg_u32 {s(sCNT)}, 0\ns_cbranch_scc1 L_slow_max")
    p(f"""
    v_mov_b32 {v(vT1)}, {v(vMX)}
    v_permlane32_swap_b32 {v(vT1)}, {v(vMX)}
    v_max_f32 {v(vMX)}, {v(vMX)}, {v(vT1)}
    s_mov_b32 {s(sKB)}, {s(sKB0)}
    s_mov_b32 {s(sVB)}, {s(sVB0)}
    s_mov_b32 {s(sCNT)}, 64
    """)
    for j in range(16): p(f"v_sub_f32 {v(vC+j)}, 0, {v(vMX)}\nv_mov_b32 {v(vO+j)}, 0")
    p.label("L_slow_pv")
    emit(p, ldk(0) + ldv(0))
    p(MF(v(vSB, 16), a(aKV, 4), v(vQF, 4), v(vC, 16))); p(MF(v(vSB, 16), a(aKV + 4, 4), v(vQF + 4, 4)))
    for qd in range(4): expcvt(0, qd)
    p(MF(v(vO, 16), a(aKV + 8, 4), v(vPB, 4))); p(MF(v(vO, 16), a(aKV + 12, 4), v(vPB + 4, 4)))
    p(f"s_nop 7\ns_sub_u32 {s(sCNT)}, {s(sCNT)}, 1\ns_cmp_lg_u32 {s(sCNT)}, 0\ns_cbranch_scc1 L_slow_pv")
    p(f"""
    s_nop 7
    v_mov_b32 {v(vT1)}, {v(vO+12)}
    v_mov_b32 {v(vT2)}, {v(vO+12)}
    v_permlane32_swap_b32 {v(vT1)}, {v(vT2)}
    s_branch L_slow_ret
    """)
    return name, 244, 256, 163840, 256

if __name__ == "__main__":
    cli((K1, K2))
```

```python
import sys, math, struct
from asmlib import *
import gen2
from gen2 import NAME, f2u, hx, fl, sX, sWQ, sWO, sW1, sB1, sW2, sB2, sOUT, sWS, sWAVE, sONES, LOG2E, EPS, srd, stamp, NST, \
    mfma, split_hi_lo_pack, hi_or_lo, half_sum, tr_addr, dma128_addr
from gen3 import cost, emit, weave, MF, take, collect

OPT = {}
BLK = 86144
VOFF, ONES_OFF = 57344, 86016
WS_QKV = 0
WS_O  = 0x600000
WS_H  = 0x800000
WS_ST = 0x9E0000
WS_AU = 0xA20000
WS_H1 = 0xA40000
WS_FL = 0x1180000
FB, FC, FD0, FD1 = WS_FL, WS_FL + 0x20000, WS_FL + 0x40000, WS_FL + 0x60000
FA = WS_FL + 0x80000
FX = WS_FL + 0x88000
WS_EP = WS_FL + 0x90000
WS_SIZE = 0x1220000
SRD = dict(gen2.SRD); SRD[sWS] = (80, WS_SIZE)

def KER(p):
    name = NAME + "_kernel"
    sT0, sT1, sT2, sT3 = 48, 49, 50, 51
    sEP, sXCC = 101, 96
    vL16, vZ, vEP = 2, 10, 254
    vL128, vTC = 243, 244
    p.raw(f".globl {name}\n.p2align 8\n.type {name},@function")
    p.label(name); p.reset()
    p(f"s_cmp_ge_u32 s2, 256\ns_cbranch_scc1 L_exit")
    if gen2.STAMPS:
        for k in range(1, NST): p(f"s_mov_b64 {s(64+2*k,2)}, 0")
        p(f"s_memrealtime s[92:93]")
    stamp(p, 0)
    order = [sX, sWQ, sWS, sW1, sB1, sWO, sW2, sB2, sOUT]
    for r in order: p(f"s_load_dwordx2 {s(r,2)}, s[0:1], {SRD[r][0]}")
    p.label("L_pc")
    p(f"""
    s_getpc_b64 s[58:59]
    s_lshr_b32 s3, s2, 3
    s_lshl_b32 s3, s3, 11
    v_lshrrev_b32 v3, 4, v0
    v_lshl_add_u32 v3, v3, 7, s3
    v_min_u32 v3, CODE_LEN, v3
    global_load_dword {v(vTC)}, v3, s[58:59]
    v_lshrrev_b32 v2, 6, v0
    v_and_b32 v1, 63, v0
    v_readfirstlane_b32 {s(sWAVE)}, v2
    """)
    for r in order: p(f"s_mov_b32 {s(r+2)}, {hx(SRD[r][1])}\ns_mov_b32 {s(r+3)}, 0x00020000")
    sR, sCB, sXB, sWB, sM0, sRT, sKC, sWL, sKB1, sPH = 46, 47, 52, 53, 54, 55, 56, 57, 60, 61
    vT1, vT2, vT3 = 3, 4, 5
    vXE, vXO, vW, vXR, vWR, vWR2, vWC, vWC2 = 6, 7, 12, 16, 20, 21, 22, 23
    vS, vQ, vCS, vCA, vCW, vRW1, vRA, vSA = 8, 9, 24, 27, 28, 29, 30, 31
    vM, vR = 32, 33
    vXF, vWF, vCF, vB2, vAU1, vACC, vRR = 36, 68, 104, 116, 120, 132, 180
    LW, LX, LSC = 0, 86016, 151552
    p(f"""
    s_mov_b32 {s(sONES)}, 0x3f803f80
    s_and_b32 {s(sT0)}, s2, 3
    s_lshl_b32 {s(sT0)}, {s(sT0)}, 2
    s_bfe_u32 {s(sT1)}, s2, 0x20003
    s_add_u32 {s(sR)}, {s(sT0)}, {s(sT1)}
    s_bfe_u32 {s(sT0)}, s2, 0x10002
    s_lshl_b32 {s(sT0)}, {s(sT0)}, 3
    s_lshr_b32 {s(sT2)}, s2, 5
    s_add_u32 {s(sCB)}, {s(sT0)}, {s(sT2)}
    s_lshl_b32 {s(sRT)}, {s(sR)}, 2
    s_add_u32 {s(sRT)}, {s(sRT)}, {s(sWAVE)}
    v_lshlrev_b32 {v(vL16)}, 4, v1
    v_lshlrev_b32 {v(vL128)}, 7, v1
    v_mov_b32 {v(vZ)}, 0
    s_cmp_ge_u32 {s(sCB)}, 15
    s_cbranch_scc1 L_aux
    """)
    st0 = p.save()
    p(f"""
    s_lshl_b32 {s(sM0)}, {s(sWAVE)}, 14
    s_add_u32 {s(sM0)}, {s(sM0)}, {LX}
    s_and_b32 {s(sKB1)}, s2, 3
    s_lshl_b32 {s(sKB1)}, {s(sKB1)}, 1
    s_and_b32 {s(sT0)}, s2, 4
    s_add_u32 {s(sKB1)}, {s(sKB1)}, {s(sT0)}
    s_sub_u32 {s(sT0)}, {s(sKB1)}, 7
    s_cmp_ge_u32 {s(sKB1)}, 7
    s_cselect_b32 {s(sKB1)}, {s(sT0)}, {s(sKB1)}
    s_mul_i32 {s(sKB1)}, {s(sKB1)}, {OPT.get("xph", 1)}
    s_xor_b32 {s(sPH)}, {s(sT1)}, {s(sT2)}
    s_and_b32 {s(sPH)}, {s(sPH)}, {OPT.get("ph", 1)}
    v_lshrrev_b32 {v(vT1)}, 3, v1
    v_mul_u32_u24 {v(vT1)}, 896, {v(vT1)}
    v_lshrrev_b32 {v(vT2)}, 4, v1
    v_xor_b32 {v(vT2)}, {v(vT2)}, v1
    v_and_b32 {v(vT2)}, 7, {v(vT2)}
    v_lshl_add_u32 {v(vXE)}, {v(vT2)}, 4, {v(vT1)}
    v_xor_b32 {v(vT2)}, 4, {v(vT2)}
    v_lshl_add_u32 {v(vXO)}, {v(vT2)}, 4, {v(vT1)}
    s_mul_i32 {s(sXB)}, {s(sRT)}, {32*896}
    v_add_u32 {v(vXE)}, {s(sXB)}, {v(vXE)}
    v_add_u32 {v(vXO)}, {s(sXB)}, {v(vXO)}
    v_add_u32 {v(vXO)}, {8*896 - 1024}, {v(vXO)}
    v_add_u32 v34, {16*896 - 2048}, {v(vXE)}
    v_add_u32 v35, {16*896 - 2048}, {v(vXO)}
    s_mul_i32 {s(sWB)}, {s(sCB)}, 192
    s_cmp_ge_u32 {s(sCB)}, 10
    s_cselect_b32 {s(sT0)}, 128, 0
    s_sub_u32 {s(sWB)}, {s(sWB)}, {s(sT0)}
    s_mul_i32 {s(sT0)}, {s(sWAVE)}, {16*2688}
    s_add_u32 {s(sWB)}, {s(sWB)}, {s(sT0)}
    s_mul_i32 {s(sWL)}, {s(sWAVE)}, 3072
    """)
    for pt in range(3):
        p(f"""
        v_add_u32 {v(vT1)}, {64*pt}, v1
        v_mul_u32_u24 {v(vT2)}, 5462, {v(vT1)}
        v_lshrrev_b32 {v(vT2)}, 16, {v(vT2)}
        v_mul_u32_u24 {v(vW+pt)}, {2688 - 192}, {v(vT2)}
        v_add3_u32 {v(vW+pt)}, {v(vW+pt)}, {v(vL16)}, {s(sWB)}
        """)
    sKCs = [3, 4, 5, 6, 7, 62, 63]
    for c in range(7):
        msk = 3 if c < 4 else (1 if c < 6 else 0)
        r = sKCs[c]
        p(f"""
        s_and_b32 {s(r)}, {s(sPH)}, {msk}
        s_xor_b32 {s(r)}, {s(r)}, {c}
        s_add_u32 {s(r)}, {s(r)}, {s(sKB1)}
        s_sub_u32 {s(sT0)}, {s(r)}, 7
        s_cmp_ge_u32 {s(r)}, 7
        s_cselect_b32 {s(r)}, {s(sT0)}, {s(r)}
        s_lshl_b32 {s(r)}, {s(r)}, 7
        """)
        if c == 1:
            p("s_waitcnt lgkmcnt(0)")
            stamp(p, 1) if OPT.get("st1") else None
            def ld(c):
                r = sKCs[c]; t = f"c{c}"
                return [[f"s_add_u32 m0, {s(sM0)}, {(c % 4)*4096}", f"s_mul_i32 {s(sT3)}, {s(r)}, {64*2688 // 128}",
                         (f"buffer_load_dwordx4 {v(vXE)}, {srd(sX)}, {s(r)} offen lds", t)],
                        (f"buffer_load_dwordx4 {v(vXO)}, {srd(sX)}, {s(r)} offen offset:1024 lds", t),
                        (f"buffer_load_dwordx4 v34, {srd(sX)}, {s(r)} offen offset:2048 lds", t),
                        (f"buffer_load_dwordx4 v35, {srd(sX)}, {s(r)} offen offset:3072 lds", t),
                        [f"s_add_u32 m0, {s(sWL)}, {LW + c*12288}", "s_nop 0",
                         (f"buffer_load_dwordx4 {v(vW)}, {srd(sWQ)}, {s(sT3)} offen lds", t)],
                        (f"buffer_load_dwordx4 {v(vW+1)}, {srd(sWQ)}, {s(sT3)} offen offset:1024 lds", t),
                        (f"buffer_load_dwordx4 {v(vW+2)}, {srd(sWQ)}, {s(sT3)} offen offset:2048 lds", t)]
            if OPT.get("touch", 0) == 1: p(f"""
            s_lshl_b32 {s(sT2)}, s2, 2
            s_add_u32 {s(sT2)}, {s(sT2)}, {s(sWAVE)}
            s_mul_i32 {s(sT0)}, {s(sT2)}, {14*128}
            s_mul_i32 {s(sT2)}, {s(sT2)}, {10*128}
            s_mov_b64 exec, 0x3fff
            buffer_load_dword {v(vTC)}, {v(vL128)}, {srd(sX)}, {s(sT0)} offen
            s_mov_b64 exec, 0x3ff
            buffer_load_dword {v(vTC)}, {v(vL128)}, {srd(sWQ)}, {s(sT2)} offen
            s_mov_b64 exec, -1
            """)
            emit(p, ld(0))
            if OPT.get("touch", 0) == 3: p(f"""
            s_lshl_b32 {s(sT2)}, s2, 2
            s_add_u32 {s(sT2)}, {s(sT2)}, {s(sWAVE)}
            s_mul_i32 {s(sT0)}, {s(sT2)}, {14*128}
            s_mul_i32 {s(sT2)}, {s(sT2)}, {10*128}
            s_mov_b64 exec, 0x3fff
            buffer_load_dword {v(vTC)}, {v(vL128)}, {srd(sX)}, {s(sT0)} offen
            s_mov_b64 exec, 0x3ff
            buffer_load_dword {v(vTC)}, {v(vL128)}, {srd(sWQ)}, {s(sT2)} offen
            s_mov_b64 exec, -1
            """)
            p(f"s_add_u32 s58, {s(sWS)}, {WS_EP}\ns_addc_u32 s59, {s(sWS+1)}, 0\ns_load_dword {s(sEP)}, s[58:59], 0")
    p(f"""
    v_and_b32 {v(vT1)}, 31, v1
    v_lshlrev_b32 {v(vXR+3)}, 7, {v(vT1)}
    v_add_u32 {v(vXR+3)}, {s(sM0)}, {v(vXR+3)}
    v_lshlrev_b32 {v(vCA)}, 4, {v(vT1)}
    v_add_u32 {v(vCA)}, {LSC}, {v(vCA)}
    s_lshl_b32 {s(sT0)}, {s(sWAVE)}, 2
    v_add_u32 {v(vCW)}, {s(sT0)}, {v(vCA)}
    s_lshl_b32 {s(sT0)}, {s(sWAVE)}, 7
    s_add_u32 {s(sT0)}, {s(sT0)}, {LSC + 1536}
    v_lshl_add_u32 {v(vRW1)}, {v(vT1)}, 2, {s(sT0)}
    v_lshrrev_b32 {v(vT2)}, 5, v1
    v_lshl_add_u32 {v(vRA)}, {v(vT2)}, 4, {s(sT0)}
    v_bfe_u32 {v(vT1)}, v1, 1, 3
    v_xor_b32 {v(vT1)}, {v(vT1)}, {v(vT2)}
    v_cmp_lt_u32 vcc, 31, v1
    """)
    for sp in range(4):
        p(f"v_xor_b32 {v(vT2)}, {2*sp}, {v(vT1)}")
        p(f"v_lshl_add_u32 {v(vXR+sp)}, {v(vT2)}, 4, {v(vXR+3)}")
    for r in (vS, vQ, vCS, vCS+1, vCS+2, vB2+1, vB2+2, vB2+3): p(f"v_mov_b32 {v(r)}, 0")
    for t in range(3):
        for j in range(1, 4): p(f"v_mov_b32 {v(vAU1 + 4*t + j)}, 0")
    emit(p, ld(1))
    if OPT.get("touch", 0) == 4:
        if 1: p(f"""
            s_lshl_b32 {s(sT2)}, s2, 2
            s_add_u32 {s(sT2)}, {s(sT2)}, {s(sWAVE)}
            s_mul_i32 {s(sT0)}, {s(sT2)}, {14*128}
            s_mul_i32 {s(sT2)}, {s(sT2)}, {10*128}
            s_mov_b64 exec, 0x3fff
            buffer_load_dword {v(vTC)}, {v(vL128)}, {srd(sX)}, {s(sT0)} offen
            s_mov_b64 exec, 0x3ff
            buffer_load_dword {v(vTC)}, {v(vL128)}, {srd(sWQ)}, {s(sT2)} offen
            s_mov_b64 exec, -1
            """)
    if OPT.get("ftouch", 1):
        p(f"""
        s_lshl_b32 {s(sT0)}, {s(sR)}, 4
        s_add_u32 {s(sT0)}, {s(sT0)}, {s(sCB)}
        s_lshl_b32 {s(sT0)}, {s(sT0)}, 7
        s_add_u32 {s(sT0)}, {s(sT0)}, {FA}
        s_mov_b64 exec, 1
        buffer_load_dword {v(vTC)}, {v(vZ)}, {srd(sWS)}, {s(sT0)} offen
        s_mov_b64 exec, -1
        """)
    p(f"s_waitcnt lgkmcnt(0)\ns_cmp_ge_u32 {s(sCB)}, 10\ns_cbranch_scc1 L_p1_v")
    st = p.save()
    for isV in (0, 1):
        if isV:
            p.label("L_p1_v"); p.restore(st)
        tr_addr(p, vWR, 192, swap=not isV, perm_rows=False, t1=vT1, t2=vT2)
        p(f"v_add_u32 {v(vWR2)}, 49152, {v(vWR)}\nv_add_u32 {v(vWC)}, {s(sWL)}, {v(vWR)}\nv_add_u32 {v(vWC2)}, {s(sWL)}, {v(vWR2)}")
        if not isV:
            p(f"""
            s_mul_i32 {s(sT0)}, {s(sRT)}, {BLK}
            s_mul_i32 {s(sT1)}, {s(sCB)}, {3*4*512}
            s_add_u32 {s(sT0)}, {s(sT0)}, {s(sT1)}
            s_mul_i32 {s(sXB)}, {s(sCB)}, 3
            """)
        else:
            p(f"""
            v_lshrrev_b32 {v(vSA)}, 5, v1
            v_mul_u32_u24 {v(vSA)}, {448*16 - 512}, {v(vSA)}
            v_add_u32 {v(vSA)}, {v(vSA)}, {v(vL16)}
            s_mul_i32 {s(sT2)}, {s(sRT)}, {BLK}
            s_mul_i32 {s(sT1)}, {s(sCB)}, {3*512}
            s_add_u32 {s(sT0)}, {s(sT2)}, {s(sT1)}
            s_add_u32 {s(sT0)}, {s(sT0)}, {VOFF - 10*3*512}
            s_lshl_b32 {s(sT1)}, {s(sCB)}, 4
            s_add_u32 {s(sT2)}, {s(sT2)}, {s(sT1)}
            s_add_u32 {s(sT2)}, {s(sT2)}, {ONES_OFF - 160}
            s_add_u32 {s(sT1)}, {s(sT0)}, {2*448*16}
            """)
        def xreads(c):
            return [f"ds_read_b128 {v(vXF + 16*(c % 2) + 4*sp, 4)}, {v(vXR+sp)} offset:{(c % 4)*4096}" for sp in range(4)]
        def creads(c):
            base = (c % 4) * 12288; va = vWC if c < 4 else vWC2
            return [f"ds_read_b64_tr_b16 {v(vCF + 4*t + 2*h, 2)}, {v(va)} offset:{base + 64*t + 768*h}" for t in range(3) for h in range(2)]
        def wreads(sx):
            base = (sx % 16) * 3072; va = vWR if sx < 16 else vWR2
            return [f"ds_read_b64_tr_b16 {v(vWF + 12*(sx % 3) + 4*t + 2*h, 2)}, {v(va)} offset:{base + 64*t + 768*h}" for t in range(3) for h in range(2)]
        def mm(sx):
            c, sp = sx // 4, sx % 4
            xf = v(vXF + 16*(c % 2) + 4*sp, 4)
            return [MF(v(vACC + 16*t, 16), *((xf, v(vWF + 12*(sx % 3) + 4*t, 4)) if isV else (v(vWF + 12*(sx % 3) + 4*t, 4), xf)), "0" if sx == 0 else None) for t in range(3)]
        def burst(c):
            for j in range(16):
                r = vXF + 16*(c % 2) + j
                p(f"v_dot2c_f32_bf16 {v(vS)}, {s(sONES)}, {v(r)}")
                p(f"v_dot2c_f32_bf16 {v(vQ)}, {v(r)}, {v(r)}")
            for j in range(12): p(f"v_dot2c_f32_bf16 {v(vCS + j // 4)}, {s(sONES)}, {v(vCF + j)}")
        def finf(q):
            for t in range(3): half_sum(q, vCS + t, vT3)
            for t in range(3): q(f"ds_write_b32 {v(vCW)}, {v(vCS+t)} offset:{t*512}")
            half_sum(q, vS, vT2); half_sum(q, vQ, vT3)
            q(f"""
            v_mul_f32 {v(vM)}, {fl(-1.0/448)}, {v(vS)}
            v_mul_f32 {v(vQ)}, {fl(1.0/448)}, {v(vQ)}
            v_fma_f32 {v(vQ)}, -{v(vM)}, {v(vM)}, {v(vQ)}
            v_max_f32 {v(vQ)}, 0, {v(vQ)}
            v_add_f32 {v(vQ)}, {fl(EPS)}, {v(vQ)}
            v_rsq_f32 {v(vR)}, {v(vQ)}
            """)
            hi_or_lo(q, vB2, vM, vT2)
            if isV:
                q(f"ds_write_b32 {v(vRW1)}, {v(vR)}")
                for k in range(4): q(f"ds_read_b128 {v(vRR + 4*k, 4)}, {v(vRA)} offset:{k*32}")
        fin = collect(finf)
        touch2 = [[f"s_lshl_b32 {s(sT3)}, s2, 2", f"s_add_u32 {s(sT3)}, {s(sT3)}, {s(sWAVE)}", f"s_lshl_b32 {s(sT3)}, {s(sT3)}, 9", "s_mov_b64 exec, 0xf",
                   f"buffer_load_dword {v(vTC)}, {v(vL128)}, {srd(sWO)}, {s(sT3)} offen", f"s_lshl_b32 {s(sT3)}, {s(sT3)}, 2", "s_mov_b64 exec, 0xffff",
                   f"buffer_load_dword {v(vTC)}, {v(vL128)}, {srd(sW2)}, {s(sT3)} offen", "s_mov_b64 exec, -1"]]
        if isV:
            touch2.append([f"v_mov_b32 {v(vT1)}, {s(sONES)}", "s_mov_b64 exec, 0xf", f"v_lshlrev_b32 {v(vM)}, 2, v1",
                           f"buffer_store_dword {v(vT1)}, {v(vM)}, {srd(sWS)}, {s(sT2)} offen sc1", "s_mov_b64 exec, -1"])
        p.wait_vm("c0")
        p("s_barrier")
        if OPT.get("st1"): stamp(p, 2)
        x0 = xreads(0)
        emit(p, x0[:1] + wreads(0) + x0[1:2] + wreads(1) + x0[2:])
        lds_ = ld(2)
        for c in range(7):
            xr = xreads(c + 1) if c < 6 else []
            for sp in range(4):
                sx = 4*c + sp
                fill = []
                if sp == 2:
                    burst(c)
                    if c < 6:
                        p.wait_vm(f"c{c+1}"); p("s_barrier")
                        lds_ = ld(c + 3) if c + 3 < 7 else (touch2 if c + 3 == 7 else [])
                if sp >= 2: fill += take(xr, 1)
                if sx + 2 < 28: fill += wreads(sx + 2)
                if sp == 0: fill = (xreads(c)[2:] if c > 0 else []) + creads(c)[:2] + fill
                if sp == 1: fill = creads(c)[2:] + fill
                fill += take(lds_, {0: 1, 1: 9, 2: 3, 3: 2}[sp] if c > 0 or sp >= 2 else 4)
                if c == 6 and sp == 2: fill += take(fin, 12) + ["s_waitcnt lgkmcnt(0)", "s_barrier"] + [f"ds_read_b128 {v(vCF + 4*t, 4)}, {v(vCA)} offset:{t*512}" for t in range(3)]
                if c == 6 and sp == 3: fill += fin
                weave(p, mm(sx), fill)
        for t in range(3):
            c0 = vCF + 4*t
            p(f"v_add_f32 {v(c0)}, {v(c0)}, {v(c0+1)}\nv_add_f32 {v(c0+2)}, {v(c0+2)}, {v(c0+3)}\nv_add_f32 {v(c0)}, {v(c0)}, {v(c0+2)}")
            split_hi_lo_pack(p, vAU1 + 4*t, c0, vT2)
            A, B = (v(vB2, 4), v(vAU1 + 4*t, 4)) if isV else (v(vAU1 + 4*t, 4), v(vB2, 4))
            mfma(p, v(vACC + 16*t, 16), A, B)
        if OPT.get("st1"): stamp(p, 3)
        for t in range(3):
            acc = vACC + 16*t
            if not isV:
                if t > 0: p(f"s_cmp_ge_u32 {s(sXB)}, {28 - t}\ns_cbranch_scc1 L_p1_done")
                p(f"s_cmp_lt_u32 {s(sXB)}, {14 - t}\ns_cselect_b32 {s(sT1)}, {fl(28**-0.5 * LOG2E)}, 1.0\nv_mul_f32 {v(vM)}, {s(sT1)}, {v(vR)}")
            elif t == 2: p(f"s_cmp_ge_u32 {s(sCB)}, 14\ns_cbranch_scc1 L_p1_done")
            for m in range(2):
                for j in range(4*m, 4*m+4):
                    p(f"v_pk_mul_f32 {v(acc+2*j, 2)}, {v(acc+2*j, 2)}, " + (f"{v(vRR+2*j, 2)}" if isV else f"{v(vM, 2)} op_sel_hi:[1,0]"))
                for j in range(4): p(f"v_cvt_pk_bf16_f32 {v(acc+8*m+j)}, {v(acc+8*m+2*j)}, {v(acc+8*m+2*j+1)}")
                if isV: p(f"buffer_store_dwordx4 {v(acc+8*m, 4)}, {v(vSA)}, {srd(sWS)}, {s(sT0 if m == 0 else sT1)} offen offset:{t*512} sc1")
                else: p(f"buffer_store_dwordx4 {v(acc+8*m, 4)}, {v(vL16)}, {srd(sWS)}, {s(sT0)} offen offset:{m*1024} sc1")
            if not isV: p(f"s_add_u32 {s(sT0)}, {s(sT0)}, 2048")
        p(f"s_branch L_p1_done")
    p.label("L_aux"); p.restore(st0)
    vA_, vD, vSM, vB = 6, 16, 132, 128
    p(f"""
    v_lshrrev_b32 {v(vT1)}, 3, v1
    v_mul_u32_u24 {v(vA_)}, 3584, {v(vT1)}
    v_and_b32 {v(vT1)}, 7, v1
    v_lshl_add_u32 {v(vA_)}, {v(vT1)}, 4, {v(vA_)}
    s_lshr_b32 {s(sT1)}, {s(sWAVE)}, 1
    s_lshl_b32 {s(sT0)}, {s(sR)}, 1
    s_add_u32 {s(sT0)}, {s(sT0)}, {s(sT1)}
    s_lshl_b32 {s(sT0)}, {s(sT0)}, 7
    s_and_b32 {s(sT1)}, {s(sWAVE)}, 1
    s_mul_i32 {s(sT1)}, {s(sT1)}, {224*3584}
    s_add_u32 {s(sT0)}, {s(sT0)}, {s(sT1)}
    v_and_b32 {v(vT1)}, 19, v1
    v_bfe_u32 {v(vT2)}, v1, 2, 1
    v_lshl_add_u32 {v(vT1)}, {v(vT2)}, 3, {v(vT1)}
    v_bfe_u32 {v(vT2)}, v1, 3, 1
    v_lshl_add_u32 v7, {v(vT2)}, 2, {v(vT1)}
    v_lshlrev_b32 {v(vT1)}, 1, v7
    s_lshl_b32 {s(sT3)}, {s(sRT)}, 6
    s_waitcnt lgkmcnt(0)
    s_add_u32 s58, {s(sWS)}, {WS_EP}
    s_addc_u32 s59, {s(sWS+1)}, 0
    s_load_dword {s(sEP)}, s[58:59], 0
    s_cmp_ge_u32 {s(sR)}, 14
    s_cbranch_scc1 L_p1_done
    buffer_load_ushort {v(vB+1)}, {v(vT1)}, {srd(sB1)}, {s(sT3)} offen
    """)
    for j in range(8): p(f"v_mov_b32 {v(vSM+j)}, 0")
    def auxld(i):
        p(f"buffer_load_dwordx4 {v(vD + 4*i, 4)}, {v(vA_)}, {srd(sW1)}, {s(sT0)} offen")
        p(f"s_add_u32 {s(sT0)}, {s(sT0)}, {8*3584}")
    for i in range(10): auxld(i)
    for i in range(28):
        if i + 10 < 28: auxld(i + 10)
        for j in range(4):
            r = vD + 4*i + j
            p(f"v_lshlrev_b32 {v(vT2)}, 16, {v(r)}\nv_and_b32 {v(vT3)}, 0xffff0000, {v(r)}")
            p(f"v_pk_add_f32 {v(vSM+2*j, 2)}, {v(vSM+2*j, 2)}, {v(vT2, 2)}")
    p(f"""
    s_lshl_b32 {s(sT0)}, {s(sWAVE)}, 11
    s_add_u32 {s(sT0)}, {s(sT0)}, {LSC}
    v_lshl_add_u32 {v(vT1)}, v1, 5, {s(sT0)}
    ds_write_b128 {v(vT1)}, {v(vSM, 4)}
    ds_write_b128 {v(vT1)}, {v(vSM+4, 4)} offset:16
    s_waitcnt lgkmcnt(0)
    s_barrier
    s_lshr_b32 {s(sT0)}, {s(sWAVE)}, 1
    s_lshl_b32 {s(sT0)}, {s(sT0)}, 12
    s_and_b32 {s(sT1)}, {s(sWAVE)}, 1
    s_lshl_b32 {s(sT1)}, {s(sT1)}, 7
    s_add_u32 {s(sT0)}, {s(sT0)}, {s(sT1)}
    s_add_u32 {s(sT0)}, {s(sT0)}, {LSC}
    v_lshl_add_u32 {v(vT1)}, v7, 2, {s(sT0)}
    v_lshrrev_b32 {v(vT2)}, 5, v1
    v_lshl_add_u32 {v(vT1)}, {v(vT2)}, 11, {v(vT1)}
    """)
    for k in range(8): p(f"ds_read_b32 {v(vD+k)}, {v(vT1)} offset:{k*256}")
    for k in range(1, 8): p(f"v_add_f32 {v(vD)}, {v(vD)}, {v(vD+k)}")
    half_sum(p, vD, vT1)
    split_hi_lo_pack(p, vB, vD, vT1)
    p(f"""
    v_mov_b32 {v(vB+2)}, 0
    v_mov_b32 {v(vB+3)}, 0
    s_lshl_b32 {s(sT0)}, {s(sRT)}, 10
    s_add_u32 {s(sT0)}, {s(sT0)}, {WS_AU}
    buffer_store_dwordx4 {v(vB, 4)}, {v(vL16)}, {srd(sWS)}, {s(sT0)} offen sc1
    """)
    p.label("L_p1_done"); p.reset()
    p.vm.append((set(), "p1st"))
    sFA = 3
    sG, sM = 46, 47
    sH, sR2 = sG, sM
    sKB, sCNT, sKH, sA, sB14 = 52, 54, 55, 58, 59
    sC7, sRT0, sRT3, sCT = 60, 61, 62, 63
    sFXo, sKB0, sW2B, sU0, sU1, sU2, sU3, sV0, sV1 = 97, 98, 100, 12, 13, 14, 15, 53, 99
    sWP, sWC = 24, 4
    LWO, LH0, LA = 0, 57344, 114688
    LH1 = LWO
    vT1, vT2, vT3, vT4 = 3, 4, 5, 6
    vVA, vVA2, vKA = 7, 8, 9
    vQF, vSB, vPB, vRD = 12, 44, 76, 92
    vXV, vHV, vBV, vAU = 140, 148, 156, 164
    vXA, vB2A, vPX, vP = 196+16, 196+17, 196+18, 196+19
    vD9, vDW, vRW = 184, 188, 192
    vO = 196
    vXID = 248
    vPA_ = 250
    aO, aKV, aW2 = 0, 64, 112
    NB = 4
    p(f"""
    s_waitcnt lgkmcnt(0)
    s_lshl_b32 {s(sFA)}, {s(sR)}, 4
    s_add_u32 {s(sFA)}, {s(sFA)}, {s(sCB)}
    s_lshl_b32 {s(sFA)}, {s(sFA)}, 7
    s_add_u32 {s(sFA)}, {s(sFA)}, {FA}
    s_mul_i32 {s(sEP)}, {s(sEP)}, 0x41c64e6d
    s_add_u32 {s(sEP)}, {s(sEP)}, 0x3039f4a7
    s_getreg_b32 {s(sXCC)}, hwreg(HW_REG_XCC_ID)
    s_and_b32 {s(sXCC)}, {s(sXCC)}, 15
    v_mov_b32 {v(vEP)}, {s(sEP)}
    v_mov_b32 {v(vEP+1)}, {s(sXCC)}
    s_and_b32 {s(sT0)}, s2, 7
    s_lshl_b32 {s(sT0)}, {s(sT0)}, 1
    s_bfe_u32 {s(sT1)}, s2, 0x10003
    s_add_u32 {s(sG)}, {s(sT0)}, {s(sT1)}
    s_lshr_b32 {s(sM)}, s2, 4
    s_lshl_b32 {s(sFXo)}, {s(sG)}, 11
    s_add_u32 {s(sFXo)}, {s(sFXo)}, {FX}
    s_lshl_b32 {s(sT0)}, {s(sM)}, 7
    s_add_u32 {s(sT0)}, {s(sT0)}, {s(sFXo)}
    s_mov_b64 exec, 1
    buffer_store_dwordx2 {v(vEP,2)}, {v(vZ)}, {srd(sWS)}, {s(sT0)} offen sc1
    s_mov_b64 exec, -1
    s_cmp_ge_u32 {s(sM)}, 7
    s_cselect_b32 {s(sT1)}, 2, 0
    s_cselect_b32 {s(sT0)}, 7, 0
    s_sub_u32 {s(sC7)}, {s(sM)}, {s(sT0)}
    s_lshl_b32 {s(sRT0)}, {s(sG)}, 2
    s_add_u32 {s(sRT0)}, {s(sRT0)}, {s(sT1)}
    s_lshr_b32 {s(sT0)}, {s(sWAVE)}, 1
    s_add_u32 {s(sRT3)}, {s(sRT0)}, {s(sT0)}
    s_and_b32 {s(sKH)}, {s(sWAVE)}, 1
    s_lshl_b32 {s(sCT)}, {s(sC7)}, 1
    s_add_u32 {s(sCT)}, {s(sCT)}, {s(sKH)}
    s_mul_i32 {s(sA)}, {s(sWAVE)}, 12288
    s_add_u32 {s(sA)}, {s(sA)}, {LA}
    s_mul_i32 {s(sB14)}, {s(sWAVE)}, 14336
    s_mul_i32 {s(sV0)}, {s(sWAVE)}, {112*896}
    s_lshl_b32 {s(sT0)}, {s(sC7)}, 7
    s_add_u32 {s(sW2B)}, {s(sV0)}, {s(sV0)}
    s_add_u32 {s(sV0)}, {s(sV0)}, {s(sT0)}
    s_add_u32 {s(sW2B)}, {s(sW2B)}, {s(sT0)}
    s_mul_i32 {s(sV1)}, {s(sWAVE)}, {112*3584}
    s_lshl_b32 {s(sT0)}, {s(sM)}, 7
    s_add_u32 {s(sV1)}, {s(sV1)}, {s(sT0)}
    """)
    dma128_addr(p, vDW, 3584, vT1, vT2)
    dma128_addr(p, vD9, 896, vT1, vT2)
    for k in range(1, 4):
        p(f"v_add_u32 {v(vDW+k)}, {k*(8*3584 - 1024)}, {v(vDW)}")
        p(f"v_add_u32 {v(vD9+k)}, {k*(8*896 - 1024)}, {v(vD9)}")
    def wgrp(srdn, sbase, va, stride, ldsbase, g, extra=0, tag=None):
        n = 4 if g < 3 else 2
        head = [f"s_add_u32 m0, {s(sB14)}, {ldsbase + g*4096}", f"s_add_u32 {s(sT3)}, {s(sbase)}, {g*32*stride + extra}"]
        ld_ = [(f"buffer_load_dwordx4 {v(va+k)}, {srd(srdn)}, {s(sT3)} offen offset:{k*1024} lds", tag) for k in range(n)]
        return [head + [ld_[0]]] + ld_[1:]
    jobs = []
    for g in range(4): jobs += wgrp(sWO, sV0, vD9, 896, LWO, g)
    for g in range(4): jobs += wgrp(sW1, sV1, vDW, 3584, LH0, g)
    def div3(d, x): return f"s_mul_i32 {s(d)}, {s(x)}, 43\ns_lshr_b32 {s(d)}, {s(d)}, 7"
    p(f"""
    s_mul_i32 {s(sT0)}, {s(sH)}, 7
    s_lshr_b32 {s(sT0)}, {s(sT0)}, 1
    s_lshr_b32 {s(sT1)}, {s(sT0)}, 2
    s_add_u32 {s(sT2)}, {s(sT0)}, 3
    s_lshr_b32 {s(sT2)}, {s(sT2)}, 2
    {div3(sU0, sT1)}
    {div3(sU1, sT2)}
    s_add_u32 {s(sT1)}, {s(sT1)}, 14
    s_add_u32 {s(sT2)}, {s(sT2)}, 14
    {div3(sU2, sT1)}
    {div3(sU3, sT2)}
    s_lshl_b32 {s(sKB0)}, {s(sT0)}, 9
    s_mul_i32 {s(sT0)}, {s(sH)}, 28
    s_lshr_b32 {s(sT1)}, {s(sT0)}, 5
    s_add_u32 {s(sT2)}, {s(sT0)}, 27
    s_lshr_b32 {s(sT2)}, {s(sT2)}, 5
    {div3(sT1, sT1)}
    {div3(sT2, sT2)}
    """)
    p(f"""
    v_and_b32 {v(vT1)}, 3, v1
    v_mov_b32 {v(vPA_)}, {s(sU2)}
    v_mov_b32 {v(vT2)}, {s(sU3)}
    v_cmp_eq_u32 vcc, 1, {v(vT1)}
    v_cndmask_b32 {v(vPA_)}, {v(vPA_)}, {v(vT2)}, vcc
    s_add_u32 {s(sT3)}, {s(sT1)}, 10
    v_mov_b32 {v(vT2)}, {s(sT3)}
    v_cmp_eq_u32 vcc, 2, {v(vT1)}
    v_cndmask_b32 {v(vPA_)}, {v(vPA_)}, {v(vT2)}, vcc
    s_add_u32 {s(sT3)}, {s(sT2)}, 10
    v_mov_b32 {v(vT2)}, {s(sT3)}
    v_cmp_eq_u32 vcc, 3, {v(vT1)}
    v_cndmask_b32 {v(vPA_)}, {v(vPA_)}, {v(vT2)}, vcc
    v_lshrrev_b32 {v(vT1)}, 2, v1
    s_lshl_b32 {s(sT3)}, {s(sWAVE)}, 2
    v_add_u32 {v(vT1)}, {s(sT3)}, {v(vT1)}
    v_lshl_add_u32 {v(vPA_)}, {v(vT1)}, 4, {v(vPA_)}
    s_lshl_b32 {s(sT3)}, {s(sR2)}, 4
    s_add_u32 {s(sU0)}, {s(sU0)}, {s(sT3)}
    s_add_u32 {s(sU1)}, {s(sU1)}, {s(sT3)}
    v_mov_b32 {v(vT1)}, {s(sU0)}
    v_mov_b32 {v(vT2)}, {s(sU1)}
    v_cmp_lt_u32 vcc, 39, v1
    v_cndmask_b32 {v(vT1)}, {v(vT1)}, {v(vT2)}, vcc
    v_cmp_lt_u32 vcc, 15, v1
    v_cndmask_b32 {v(vPA_)}, {v(vPA_)}, {v(vT1)}, vcc
    v_lshlrev_b32 {v(vPA_)}, 7, {v(vPA_)}
    v_add_u32 {v(vPA_)}, {FA}, {v(vPA_)}
    """)
    p(f"""
    v_lshrrev_b32 {v(vT1)}, 5, v1
    v_mul_u32_u24 {v(vVA)}, {448*16 - 512}, {v(vT1)}
    s_lshl_b32 {s(sT0)}, {s(sT0)}, 4
    s_add_u32 {s(sT0)}, {s(sT0)}, {VOFF}
    v_add3_u32 {v(vVA)}, {v(vVA)}, {v(vL16)}, {s(sT0)}
    v_add_u32 {v(vVA2)}, {2*448*16}, {v(vVA)}
    s_lshl_b32 {s(sT1)}, {s(sT1)}, 4
    s_add_u32 {s(sT1)}, {s(sT1)}, {ONES_OFF}
    v_mov_b32 {v(vT2)}, {s(sT1)}
    v_and_b32 {v(vT1)}, 31, v1
    v_cmp_lt_u32 vcc, 27, {v(vT1)}
    v_cndmask_b32 {v(vVA)}, {v(vVA)}, {v(vT2)}, vcc
    v_cndmask_b32 {v(vVA2)}, {v(vVA2)}, {v(vT2)}, vcc
    s_add_u32 {s(sT0)}, {s(sKB0)}, {56*512}
    v_add_u32 {v(vKA)}, {s(sT0)}, {v(vL16)}
    s_mul_i32 {s(sKB)}, {s(sWAVE)}, {16*BLK}
    s_mul_i32 {s(sT1)}, {s(sR2)}, {4*BLK}
    s_add_u32 {s(sT1)}, {s(sT1)}, {s(sKB0)}
    v_mul_u32_u24 {v(vXA)}, 896, {v(vT1)}
    v_lshrrev_b32 {v(vT1)}, 5, v1
    v_lshlrev_b32 {v(vB2A)}, 4, {v(vT1)}
    v_add_u32 {v(vXA)}, {v(vB2A)}, {v(vXA)}
    s_mul_i32 {s(sT0)}, {s(sRT3)}, {32*896}
    s_lshl_b32 {s(sT2)}, {s(sCT)}, 6
    s_add_u32 {s(sT0)}, {s(sT0)}, {s(sT2)}
    v_add_u32 {v(vXA)}, {s(sT0)}, {v(vXA)}
    v_add_u32 {v(vB2A)}, {s(sT2)}, {v(vB2A)}
    v_min_u32 {v(vPX)}, 13, v1
    v_lshlrev_b32 {v(vPX)}, 7, {v(vPX)}
    """)
    for j, r in enumerate((sU0, sU1, sU2, sU3)):
        p(f"s_xor_b32 {s(r)}, {s(sWAVE)}, {j}\ns_mul_i32 {s(r)}, {s(r)}, {BLK}\ns_add_u32 {s(r)}, {s(r)}, {s(sT1)}")
    for j in range(1, 4):
        p(f"s_xor_b32 {s(sT0)}, {s(sWAVE)}, {j}\ns_mul_i32 {s(sT0)}, {s(sT0)}, 12288\ns_add_u32 {s(sT0)}, {s(sT0)}, {(j-1)*4096}")
        p(f"v_add_u32 {v(vRW+j-1)}, {s(sT0)}, {v(vL16)}")
    for r in (sWP, sWC):
        p(f"s_mov_b32 {s(r)}, {s(sWS)}\ns_mov_b32 {s(r+1)}, {s(sWS+1)}\ns_mov_b32 {s(r+2)}, 0\ns_mov_b32 {s(r+3)}, 0x00020000")
    p(f"""
    s_and_b32 {s(sT0)}, {s(sH)}, 1
    s_cmp_eq_u32 {s(sT0)}, 1
    s_cselect_b32 {s(sT0)}, 0, -1
    s_cselect_b32 {s(sT1)}, -1, 0
    v_cmp_lt_u32 vcc, 31, v1
    v_mov_b32 {v(vT1)}, {s(sT0)}
    v_mov_b32 {v(vT2)}, {s(sT1)}
    v_cndmask_b32 {v(vT3)}, {v(vT1)}, -1, vcc
    v_cndmask_b32 {v(vT4)}, -1, {v(vT2)}, vcc
    """)
    p.wait_vm("p1st")
    p("s_barrier")
    def setflag(sOff):
        p(f"s_mov_b64 exec, 1\nbuffer_store_dword {v(vEP)}, {v(vZ)}, {srd(sWS)}, {s(sOff)} offen sc1\ns_mov_b64 exec, -1")
    def setflag2(sOff):
        p(f"""
        s_mov_b64 exec, 1
        buffer_store_dword {v(vEP)}, {v(vZ)}, {srd(sWP)}, {s(sOff)} offen
        buffer_store_dword {v(vEP)}, {v(vZ)}, {srd(sWC)}, {s(sOff)} offen sc1
        s_mov_b64 exec, -1
        """)
    def poll_issue(vPA, so): return f"buffer_load_dword {v(vP)}, {v(vPA)}, {srd(sWS)}, {so} offen sc1"
    def poll(vPA, so, base):
        L = p.newlabel(base)
        p(f"s_mov_b32 {s(sCNT)}, 0x40000")
        p.label(L)
        p(poll_issue(vPA, so))
        p(f"s_sub_u32 {s(sCNT)}, {s(sCNT)}, 1\ns_waitcnt vmcnt(0)\ns_cbranch_scc1 {L}_x")
        p(f"v_cmp_ne_u32 vcc, {s(sEP)}, {v(vP)}\ns_cbranch_vccnz {L}")
        p.label(L + "_x")
    def poll_check(vPA, so, base):
        L = p.newlabel(base + "ok")
        p(f"v_cmp_ne_u32 vcc, {s(sEP)}, {v(vP)}\ns_cbranch_vccz {L}")
        st = p.save()
        poll(vPA, so, base)
        p.label(L); p.restore(st)
    p(f"s_cmp_lg_u32 {s(sWAVE)}, 0\ns_cbranch_scc1 L_noflagA")
    setflag(sFA)
    p.label("L_noflagA")
    if OPT.get("st1"): stamp(p, 4)
    else: stamp(p, 1)
    misc = [[f"buffer_load_dwordx4 {v(vXV, 4)}, {v(vXA)}, {srd(sX)}, 0 offen", f"buffer_load_dwordx4 {v(vXV+4, 4)}, {v(vXA)}, {srd(sX)}, 0 offen offset:32"],
            [f"buffer_load_dwordx4 {v(vBV, 4)}, {v(vB2A)}, {srd(sB2)}, 0 offen", f"buffer_load_dwordx4 {v(vBV+4, 4)}, {v(vB2A)}, {srd(sB2)}, 0 offen offset:32"]]
    if OPT.get("ftouch", 1):
        p(f"""
        s_lshl_b32 {s(sT0)}, {s(sR2)}, 2
        s_add_u32 {s(sT0)}, {s(sT0)}, {s(sWAVE)}
        s_lshl_b32 {s(sT0)}, {s(sT0)}, 4
        s_add_u32 {s(sT0)}, {s(sT0)}, {s(sH)}
        s_lshl_b32 {s(sT1)}, {s(sRT3)}, 4
        s_add_u32 {s(sT1)}, {s(sT1)}, {s(sCT)}
        s_lshl_b32 {s(sT2)}, {s(sG)}, 2
        s_add_u32 {s(sT2)}, {s(sT2)}, {s(sWAVE)}
        s_lshl_b32 {s(sT2)}, {s(sT2)}, 4
        s_add_u32 {s(sT2)}, {s(sT2)}, {s(sM)}
        v_mov_b32 {v(vT1)}, {s(sT2)}
        v_writelane_b32 {v(vT1)}, {s(sT0)}, 0
        v_writelane_b32 {v(vT1)}, {s(sT1)}, 1
        v_lshl_add_u32 {v(vT1)}, v1, 10, {v(vT1)}
        v_lshlrev_b32 {v(vT1)}, 7, {v(vT1)}
        s_mov_b32 {s(sT0)}, {FB}
        s_mov_b64 exec, 15
        buffer_load_dword {v(vTC)}, {v(vT1)}, {srd(sWS)}, {s(sT0)} offen
        s_mov_b64 exec, -1
        """)
    emit(p, misc)
    emit(p, take(jobs, OPT.get("adma", 14)))
    poll(vPA_, "0", "pollA")
    if OPT.get("st1"): stamp(p, 5)
    def ldkv(b):
        return [f"buffer_load_dwordx4 {a(aKV + 16*b, 4)}, {v(vKA)}, {srd(sWS)}, {s(sKB)} offen sc1",
                f"buffer_load_dwordx4 {a(aKV + 16*b + 4, 4)}, {v(vKA)}, {srd(sWS)}, {s(sKB)} offen offset:1024 sc1",
                f"buffer_load_dwordx4 {a(aKV + 16*b + 8, 4)}, {v(vVA)}, {srd(sWS)}, {s(sKB)} offen sc1",
                f"buffer_load_dwordx4 {a(aKV + 16*b + 12, 4)}, {v(vVA2)}, {srd(sWS)}, {s(sKB)} offen sc1",
                f"s_add_u32 {s(sKB)}, {s(sKB)}, {BLK}"]
    def ldq(t):
        return [f"buffer_load_dwordx4 {v(vQF + 8*t + 4*sx, 4)}, {v(vL16)}, {srd(sWS)}, {s(sU0 + t)} offen offset:{sx*1024} sc1" for sx in range(2)]
    kv0 = ldkv(0)
    emit(p, ldq(1) + kv0[:2] + ldq(2) + kv0[2:] + ldq(3) + ldq(0) + ldkv(1))
    def qmask(t):
        q = vQF + 8*t
        return [f"v_and_b32 {v(q+j)}, {v(vT3)}, {v(q+j)}" for j in (0, 1)] + [f"v_and_b32 {v(q+j)}, {v(vT4)}, {v(q+j)}" for j in (6, 7)]
    T = lambda n: (n + 1) % 4
    def oacc(t): return v(vO, 16) if t == 0 else a(aO + 16*(t-1), 16)
    def smf(n, half):
        return MF(v(vSB + 16*(n % 2), 16), a(aKV + 16*((n // 4) % NB) + 4*half, 4), v(vQF + 8*T(n) + 4*half, 4), "0" if half == 0 else None)
    def pvmf(n, half):
        return MF(oacc(T(n)), a(aKV + 16*((n // 4) % NB) + 8 + 4*half, 4), v(vPB + 8*(n % 2) + 4*half, 4), "0" if (n < 4 and half == 0) else None)
    def expcvt(n, qd):
        S = vSB + 16*(n % 2) + 4*qd
        for j in range(4): p(f"v_exp_f32 {v(S+j)}, {v(S+j)}")
        for j in range(2): p(f"v_cvt_pk_bf16_f32 {v(vPB + 8*(n % 2) + 2*qd + j)}, {v(S+2*j)}, {v(S+2*j+1)}")
    emit(p, qmask(1)); p(smf(0, 0)); p(smf(0, 1)); emit(p, qmask(2))
    if OPT.get("st1"): stamp(p, 6)
    else: stamp(p, 2)
    side = {n: [] for n in range(64)}
    side[0] += qmask(3) + ldkv(2); side[1] += qmask(0)
    side[2] += ldkv(3)
    for st_ in range(1, 13): side[4*st_] += ldkv((st_ + 3) % NB)
    late = [f"buffer_load_dwordx2 {v(vXID, 2)}, {v(vPX)}, {srd(sWS)}, {s(sFXo)} offen sc1",
            [f"v_add_u32 {v(vT3+j)}, {LA}, {v(vRW+j)}" for j in range(2)] + [f"v_add_u32 {v(vT1)}, {LA}, {v(vRW+2)}", f"v_add_u32 {v(vT2)}, {s(sA)}, {v(vL16)}"],
            collect(lambda q: q(f"""
            s_lshl_b32 {s(sT0)}, {s(sR2)}, 2
            s_add_u32 {s(sT0)}, {s(sT0)}, {s(sWAVE)}
            s_lshl_b32 {s(sT0)}, {s(sT0)}, 4
            s_add_u32 {s(sT0)}, {s(sT0)}, {s(sH)}
            s_lshl_b32 {s(sT1)}, {s(sT0)}, 7
            s_add_u32 {s(sT1)}, {s(sT1)}, {FB}
            s_lshl_b32 {s(sT0)}, {s(sT0)}, 11
            s_add_u32 {s(sT0)}, {s(sT0)}, {WS_O}
            """))]
    slots = [n for n in range(5, 50) if n % 4 != 0]
    for k, j in enumerate(jobs): side[slots[k]].append(j)
    for k, j in enumerate(late): side[54 + k].append(j)
    wadr = {1: vT3, 2: vT4, 3: vT1}
    def owr(j, q): return f"ds_write_b128 {v(wadr[j])}, {a(aO + 16*(j-1) + 4*q, 4)} offset:{q*1024}"
    for n in range(64):
        wr = [owr(n - 61, q) for q in range(4)] if n >= 62 else []
        if n + 1 < 64: p(smf(n + 1, 0))
        expcvt(n, 0)
        if n + 1 < 64: p(smf(n + 1, 1))
        emit(p, take(wr, 1))
        expcvt(n, 1)
        if n >= 1: p(pvmf(n - 1, 0))
        emit(p, take(wr, 1))
        expcvt(n, 2)
        if n >= 1: p(pvmf(n - 1, 1))
        emit(p, side[n] + take(wr, 1))
        expcvt(n, 3)
        emit(p, wr)
    S_ = (lambda k: None) if OPT.get("st1") else (lambda k: stamp(p, k))
    if OPT.get("st1"): stamp(p, 7)
    S_(3)
    p(pvmf(63, 0)); p(pvmf(63, 1))
    for q in range(4): p(owr(3, q))
    p(f"""
    v_cmp_ne_u64 vcc, {v(vEP,2)}, {v(vXID,2)}
    s_cmp_eq_u64 vcc, 0
    s_cselect_b32 {s(sWP+2)}, {hx(WS_SIZE) if OPT.get("loc", 1) else 0}, 0
    s_cselect_b32 {s(sWC+2)}, {0 if OPT.get("loc", 1) else hx(WS_SIZE)}, {hx(WS_SIZE)}
    s_mov_b32 {s(sT2)}, {fl(2.0**-60)}
    s_mov_b32 {s(sT3)}, {fl(2.0**60)}
    s_waitcnt vmcnt(0) lgkmcnt(0)
    s_barrier
    """)
    S_(4)
    for q in (3, 0, 1, 2):
        for w in range(3): p(f"ds_read_b128 {v(vRD + 16*w + 4*q, 4)}, {v(vT2)} offset:{w*4096 + q*1024}")
    def addq(q):
        for w in range(3):
            for j in (2*q, 2*q+1): p(f"v_pk_add_f32 {v(vO+2*j, 2)}, {v(vO+2*j, 2)}, {v(vRD + 16*w + 2*j, 2)}")
    addq(3)
    p(f"v_mov_b32 {v(vT1)}, {v(vO+12)}\nv_mov_b32 {v(vT2)}, {v(vO+12)}")
    addq(0)
    p(f"v_permlane32_swap_b32 {v(vT1)}, {v(vT2)}")
    addq(1)
    p(f"v_cmp_nle_f32 vcc, {s(sT2)}, {v(vT2)}\nv_cmp_nge_f32 s[14:15], {s(sT3)}, {v(vT2)}")
    addq(2)
    p(f"s_mov_b32 {s(sT2)}, 0x7f7fffff\ns_or_b64 vcc, vcc, s[14:15]")
    p(f"v_max3_f32 {v(vT3)}, |{v(vO)}|, |{v(vO+1)}|, |{v(vO+2)}|")
    for j in range(3, 15, 2): p(f"v_max3_f32 {v(vT3)}, {v(vT3)}, |{v(vO+j)}|, |{v(vO+j+1)}|")
    p(f"""
    v_max_f32 {v(vT3)}, {v(vT3)}, |{v(vO+15)}|
    v_cmp_nge_f32 s[14:15], {s(sT2)}, {v(vT3)}
    s_or_b64 vcc, vcc, s[14:15]
    """)
    if OPT.get("forceslow"): p("s_cmp_eq_u32 0, 0")
    p("s_cbranch_scc1 L_slow")
    p.label("L_slow_ret")
    p(f"v_rcp_f32 {v(vT2)}, {v(vT2)}\nv_cmp_lt_u32 vcc, 31, v1")
    for m in range(2):
        for j in range(4*m, 4*m+4): p(f"v_pk_mul_f32 {v(vO+2*j, 2)}, {v(vO+2*j, 2)}, {v(vT2, 2)} op_sel_hi:[1,0]")
        for j in range(4): p(f"v_cvt_pk_bf16_f32 {v(vO+8*m+j)}, {v(vO+8*m+2*j)}, {v(vO+8*m+2*j+1)}")
        if m == 1:
            for j in (2, 3): p(f"v_cndmask_b32 {v(vO+8+j)}, {v(vO+8+j)}, 0, vcc")
        p(f"buffer_store_dwordx4 {v(vO+8*m, 4)}, {v(vL16)}, {srd(sWS)}, {s(sT0)} offen offset:{m*1024} sc1", tag="ost")
    p(f"s_cmp_lt_u32 {s(sM)}, 14\ns_cbranch_scc1 L_cont")
    st = p.save()
    p("s_waitcnt vmcnt(0)")
    setflag(sT1)
    p(f"""
    s_cmp_lg_u32 s2, 255
    s_cbranch_scc1 L_end
    s_lshl_b32 {s(sT0)}, {s(sWAVE)}, 13
    s_add_u32 {s(sT0)}, {s(sT0)}, {FX}
    """)
    poll(vL128, s(sT0), "pollX")
    p(f"s_barrier\ns_cmp_lg_u32 {s(sWAVE)}, 0\ns_cbranch_scc1 L_end\ns_mov_b32 {s(sT0)}, {WS_EP}")
    setflag(sT0)
    p(f"s_branch L_end")
    p.label("L_cont"); p.restore(st)
    NBT, NCT = OPT.get("nbt", 6), OPT.get("nct", 2)
    NRT = NBT + NCT
    assert 8 <= NRT <= 9
    vA5, vA = 216, 220
    def w2dma(tile, sb, ldsoff):
        off = ((tile // 7)*896 + 32*(tile % 7)) * 896
        return [[f"s_add_u32 m0, {s(sb)}, {ldsoff}", f"s_add_u32 {s(sT3)}, {s(sW2B)}, {off}",
                 (f"buffer_load_dwordx4 {v(vD9)}, {srd(sW2)}, {s(sT3)} offen lds", f"w2_{tile}")]] + \
               [(f"buffer_load_dwordx4 {v(vD9+k)}, {srd(sW2)}, {s(sT3)} offen offset:{k*1024} lds", f"w2_{tile}") for k in range(1, 4)]
    def w2toreg(tile, slot):
        p.wait_vm(f"w2_{tile}")
        for e in range(2):
            for c in range(2):
                for h in range(2):
                    p(f"ds_read_b64_tr_b16 {a(aW2 + 16*tile + 8*e + 4*c + 2*h, 2)}, {v(vA5 + c)} offset:{slot*4096 + e*2048 + 512*h}", tag=f"r{tile}")
    for t in range(2): emit(p, w2dma(t, sA, t*4096))
    tr_addr(p, vA, 128, swap=True, perm_rows=False, t1=vT1, t2=vT3, xor128=True)
    vA0, vA1, vPA = 12, 13, 14
    vWF, vACC = 16, 96
    p(f"""
    v_xor_b32 {v(vA+1)}, 64, {v(vA)}
    s_lshl_b32 {s(sT2)}, {s(sKH)}, 6
    v_xor_b32 {v(vT1)}, {s(sT2)}, {v(vA)}
    v_xor_b32 {v(vT3)}, {s(sT2)}, {v(vA+1)}
    v_add_u32 {v(vA5)}, {s(sA)}, {v(vT1)}
    v_add_u32 {v(vA5+1)}, {s(sA)}, {v(vT3)}
    s_add_u32 {s(sT0)}, {s(sB14)}, {LH0}
    v_add_u32 {v(vA5+2)}, {s(sT0)}, {v(vT1)}
    v_add_u32 {v(vA5+3)}, {s(sT0)}, {v(vT3)}
    v_add_u32 {v(vA+2)}, {LH0}, {v(vA)}
    v_add_u32 {v(vA+3)}, {LH0}, {v(vA+1)}
    """)
    tr_addr(p, vA0, 128, swap=True, perm_rows=True, t1=vT1, t2=vT3, xor128=True)
    p(f"""
    s_mul_i32 {s(sT0)}, {s(sKH)}, {8*28*128}
    v_add_u32 {v(vA0)}, {s(sT0)}, {v(vA0)}
    v_xor_b32 {v(vA0)}, {s(sT2)}, {v(vA0)}
    v_xor_b32 {v(vA1)}, 64, {v(vA0)}
    v_and_b32 {v(vPA)}, 7, v1
    v_lshlrev_b32 {v(vPA)}, 7, {v(vPA)}
    s_lshr_b32 {s(sT0)}, {s(sM)}, 1
    s_lshl_b32 {s(sT0)}, {s(sT0)}, 11
    s_add_u32 {s(sT0)}, {s(sT0)}, {FA + 15*128}
    v_and_b32 {v(vT1)}, 1, v1
    v_mul_u32_u24 {v(vPA_)}, {7*2048}, {v(vT1)}
    """)
    for j in range(8):
        p(f"v_lshlrev_b32 {v(vACC+2*j)}, 16, {v(vXV+j)}")
        p(f"v_and_b32 {v(vACC+2*j+1)}, 0xffff0000, {v(vXV+j)}")
    p.wait_vm("ost")
    setflag(sT1)
    S_(5)
    p(poll_issue(vPA_, s(sT0)))
    for t in range(NBT):
        if t + 2 < NBT:
            if t >= 1: p.wait_lg(f"r{t-1}")
            emit(p, w2dma(t + 2, sA, ((t + 2) % 3)*4096))
        w2toreg(t, t % 3)
        if t == 2:
            poll_check(vPA_, s(sT0), "pollU")
            p(f"""
            s_lshl_b32 {s(sT0)}, {s(sM)}, 11
            s_add_u32 {s(sT0)}, {s(sT0)}, {WS_AU}
            s_add_u32 {s(sT1)}, {s(sT0)}, {28*1024}
            buffer_load_dwordx4 {v(vAU, 4)}, {v(vL16)}, {srd(sWS)}, {s(sT0)} offen sc1
            buffer_load_dwordx4 {v(vAU+4, 4)}, {v(vL16)}, {srd(sWS)}, {s(sT0)} offen offset:1024 sc1
            buffer_load_dwordx4 {v(vAU+8, 4)}, {v(vL16)}, {srd(sWS)}, {s(sT1)} offen sc1
            buffer_load_dwordx4 {v(vAU+12, 4)}, {v(vL16)}, {srd(sWS)}, {s(sT1)} offen offset:1024 sc1
            """)
    p(f"""
    s_lshl_b32 {s(sT0)}, {s(sRT3)}, 11
    s_lshl_b32 {s(sT1)}, {s(sKH)}, 10
    s_add_u32 {s(sT0)}, {s(sT0)}, {s(sT1)}
    s_add_u32 {s(sT0)}, {s(sT0)}, {FB}
    s_add_u32 {s(sT1)}, {s(sA)}, 8192
    v_add_u32 {v(vT1)}, {s(sT1)}, {v(vL16)}
    v_add_u32 {v(vT2)}, {LA + 8192}, {v(vRW)}
    s_lshl_b32 {s(sT2)}, {s(sRT3)}, 15
    s_lshl_b32 {s(sT1)}, {s(sKH)}, 14
    s_add_u32 {s(sT2)}, {s(sT2)}, {s(sT1)}
    s_add_u32 {s(sT2)}, {s(sT2)}, {WS_O}
    """)
    def reads3(f):
        base = (28*(f // 2) + 16*(f % 2)) * 128
        return [f"ds_read_b64_tr_b16 {v(vWF + 8*(f % 3) + 4*ct + 2*h, 2)}, {v(va)} offset:{base + h*1024}" for ct, va in ((1, vA1), (0, vA0)) for h in range(2)]
    emit(p, reads3(0) + reads3(1))
    poll(vPA, s(sT0), "pollB")
    S_(6)
    aOF = 0
    def old(f):
        r = [f"buffer_load_dwordx4 {a(aOF + 4*f, 4)}, {v(vL16)}, {srd(sWS)}, {s(sT2)} offen offset:{(f % 4)*1024} sc1"]
        if f % 4 == 3: r.append(f"s_add_u32 {s(sT2)}, {s(sT2)}, 4096")
        return r
    PF = OPT.get("pf", 8)
    for f in range(PF): emit(p, old(f))
    sFC = sKB
    ep3 = collect(lambda q: q(f"""
    s_mul_i32 {s(sT0)}, {s(sRT3)}, {56*512}
    s_lshl_b32 {s(sT1)}, {s(sCT)}, 11
    s_add_u32 {s(sT0)}, {s(sT0)}, {s(sT1)}
    s_add_u32 {s(sT0)}, {s(sT0)}, {WS_H}
    s_mul_i32 {s(sT2)}, {s(sRT3)}, {14*256}
    s_lshl_b32 {s(sT1)}, {s(sCT)}, 8
    s_add_u32 {s(sT2)}, {s(sT2)}, {s(sT1)}
    s_add_u32 {s(sT2)}, {s(sT2)}, {WS_ST}
    s_lshl_b32 {s(sFC)}, {s(sRT3)}, 4
    s_add_u32 {s(sFC)}, {s(sFC)}, {s(sCT)}
    s_lshl_b32 {s(sFC)}, {s(sFC)}, 7
    s_add_u32 {s(sFC)}, {s(sFC)}, {FC}
    v_mov_b32 v40, 0
    v_mov_b32 v41, 0
    v_lshlrev_b32 {v(vT3)}, 3, v1
    """))
    def m3(f, own): return MF(v(vACC + (0 if own else 16), 16), v(vWF + 8*(f % 3) + (0 if own else 4), 4), a(aOF + 4*f, 4), "0" if (f == 0 and not own) else None)
    for f in range(14):
        fill = []
        if f + PF < 16: fill.append(old(f + PF))
        fill += reads3(f + 2)
        weave(p, [m3(f, 0), m3(f, 1)], fill)
    weave(p, [m3(14, 0), m3(15, 0), m3(14, 1), m3(15, 1)], ep3)
    S_(7)
    for q in range(4): p(f"ds_write_b128 {v(vT1)}, {v(vACC + 16 + 4*q, 4)} offset:{q*1024}")
    p("s_waitcnt lgkmcnt(0)\ns_barrier")
    vR3 = 44
    for q in range(4): p(f"ds_read_b128 {v(vR3 + 4*q, 4)}, {v(vT2)} offset:{q*1024}")
    for m in range(2):
        for j in range(4*m, 4*m+4): p(f"v_pk_add_f32 {v(vACC+2*j, 2)}, {v(vACC+2*j, 2)}, {v(vR3+2*j, 2)}")
        for j in range(4*m, 4*m+4): p(f"v_cvt_pk_bf16_f32 {v(vHV+j)}, {v(vACC+2*j)}, {v(vACC+2*j+1)}")
        p(f"buffer_store_dwordx4 {v(vHV+4*m, 4)}, {v(vL16)}, {srd(sWS)}, {s(sT0)} offen offset:{m*1024} sc1")
    for j in range(8):
        p(f"v_dot2c_f32_bf16 v40, {s(sONES)}, {v(vHV+j)}")
        p(f"v_dot2c_f32_bf16 v41, {v(vHV+j)}, {v(vHV+j)}")
    p(f"""
    v_mov_b32 v42, v40
    v_mov_b32 v43, v41
    v_permlane32_swap_b32 v42, v40
    v_permlane32_swap_b32 v43, v41
    v_pk_add_f32 v[40:41], v[40:41], v[42:43]
    s_mov_b32 exec_hi, 0
    """)
    p(f"buffer_store_dwordx2 v[40:41], {v(vT3)}, {srd(sWS)}, {s(sT2)} offen sc1", tag="hst")
    p(f"s_mov_b64 exec, -1")
    for t in range(NBT, NRT): emit(p, w2dma(t, sA, ((t - NBT) % 2)*4096))
    h1w = []
    for g in range(4): h1w += wgrp(sW1, sV1, vDW, 3584, LH1, g, extra=1792, tag="h1w")
    sRT4 = sV0
    vK1, vK2, vSD, vTK = 224, 226, 228, 180
    vSTt, vG = 196, 232
    vWF, vACC = 12, 48
    sHB, sFD = sKB0, sU0
    vH, vPD = 240, 242
    vAC5 = 112
    p(f"""
    s_lshl_b32 {s(sRT4)}, {s(sG)}, 2
    s_add_u32 {s(sRT4)}, {s(sRT4)}, {s(sWAVE)}
    v_and_b32 {v(vPD)}, 3, v1
    v_bfe_u32 {v(vT1)}, v1, 2, 1
    v_lshl_add_u32 {v(vPD)}, {v(vT1)}, 4, {v(vPD)}
    v_lshlrev_b32 {v(vPD)}, 7, {v(vPD)}
    s_mul_i32 {s(sFD)}, {s(sWAVE)}, 7
    s_lshr_b32 {s(sFD)}, {s(sFD)}, 1
    s_lshl_b32 {s(sT0)}, {s(sRT0)}, 4
    s_add_u32 {s(sFD)}, {s(sFD)}, {s(sT0)}
    s_lshl_b32 {s(sFD)}, {s(sFD)}, 7
    s_add_u32 {s(sFD)}, {s(sFD)}, {FD0}
    s_mul_i32 {s(sHB)}, {s(sRT0)}, {224*512}
    s_add_u32 {s(sHB)}, {s(sHB)}, {s(sB14)}
    s_add_u32 {s(sHB)}, {s(sHB)}, {WS_H1}
    s_lshr_b32 {s(sT0)}, {s(sWAVE)}, 1
    s_mul_i32 {s(sT1)}, {s(sT0)}, {224*512}
    v_add_u32 {v(vH)}, {s(sT1)}, {v(vL16)}
    s_sub_u32 {s(sT1)}, {224*512}, {s(sT1)}
    v_add_u32 {v(vH+1)}, {s(sT1)}, {v(vL16)}
    s_mul_i32 {s(sU2)}, {s(sRT4)}, {224*512}
    s_lshl_b32 {s(sT1)}, {s(sM)}, 12
    s_add_u32 {s(sU2)}, {s(sU2)}, {s(sT1)}
    s_add_u32 {s(sU2)}, {s(sU2)}, {WS_H1}
    s_add_u32 {s(sU3)}, {s(sU2)}, {112*512}
    s_lshl_b32 {s(sU1)}, {s(sRT4)}, 4
    s_add_u32 {s(sU1)}, {s(sU1)}, {s(sM)}
    s_lshl_b32 {s(sU1)}, {s(sU1)}, 7
    s_add_u32 {s(sU1)}, {s(sU1)}, {FD0}
    s_lshl_b32 {s(sT0)}, {s(sRT4)}, 11
    s_add_u32 {s(sT0)}, {s(sT0)}, {FC}
    s_mul_i32 {s(sT2)}, {s(sRT4)}, {56*512}
    s_add_u32 {s(sT2)}, {s(sT2)}, {WS_H}
    s_mul_i32 {s(sT1)}, {s(sRT4)}, {14*256}
    s_add_u32 {s(sT1)}, {s(sT1)}, {WS_ST}
    v_mov_b32 {v(vTK+2)}, 0
    v_mov_b32 {v(vTK+3)}, 0
    """)
    for j in range(8):
        p(f"v_lshlrev_b32 {v(vAC5+2*j)}, 16, {v(vHV+j)}\nv_lshlrev_b32 {v(vT4)}, 16, {v(vBV+j)}")
        p(f"v_and_b32 {v(vAC5+2*j+1)}, 0xffff0000, {v(vHV+j)}\nv_and_b32 {v(vT4+1)}, 0xffff0000, {v(vBV+j)}")
        p(f"v_pk_add_f32 {v(vAC5+2*j, 2)}, {v(vAC5+2*j, 2)}, {v(vT4, 2)}")
    p.wait_vm("hst")
    setflag2(sFC)
    S_(8)
    for t in range(NBT, NRT): w2toreg(t, (t - NBT) % 2)
    WD = 4
    def reads4(sx, hb):
        return [f"ds_read_b64_tr_b16 {v(vWF + 8*(sx % WD) + 4*k + 2*h, 2)}, {v(vA + 2*(1 - hb) + k)} offset:{sx*2048 + 512*h}" for k in range(2) for h in range(2)]
    for sx in range(3): emit(p, reads4(sx, 0))
    poll(vPX, s(sT0), "pollC")
    S_(9)
    aHF = 0
    def hld(f):
        r = [f"buffer_load_dwordx4 {a(aHF + 4*f, 4)}, {v(vL16)}, {srd(sWS)}, {s(sT2)} offen offset:{(f % 4)*1024} sc1"]
        if f % 4 == 3: r.append(f"s_add_u32 {s(sT2)}, {s(sT2)}, 4096")
        return r
    for f in range(PF): emit(p, hld(f))
    stl = [f"buffer_load_dwordx2 {v(vSTt + 2*j, 2)}, {v(vT3)}, {srd(sWS)}, {s(sT1)} offen offset:{j*512} sc1" for j in range(7)]
    k1 = -2.0 * math.sqrt(2.0 / math.pi) * LOG2E
    k2 = k1 * 0.044715
    vM, vV = vSTt + 2, vSTt + 3
    def statf(q):
        for j in range(1, 7):
            q(f"v_add_f32 {v(vSTt)}, {v(vSTt)}, {v(vSTt+2*j)}\nv_add_f32 {v(vSTt+1)}, {v(vSTt+1)}, {v(vSTt+2*j+1)}")
        half_sum(q, vSTt, vT1); half_sum(q, vSTt + 1, vT2)
        q(f"""
        v_mul_f32 {v(vM)}, {fl(-1.0/448)}, {v(vSTt)}
        v_mul_f32 {v(vV)}, {fl(1.0/448)}, {v(vSTt+1)}
        v_fma_f32 {v(vV)}, -{v(vM)}, {v(vM)}, {v(vV)}
        v_max_f32 {v(vV)}, 0, {v(vV)}
        v_add_f32 {v(vT1)}, {fl(EPS)}, {v(vV)}
        v_fmamk_f32 {v(vT1)}, {v(vT1)}, {fl(EPS)}, {v(vV)}
        v_rsq_f32 {v(vT2)}, {v(vT1)}
        v_sqrt_f32 {v(vSD)}, {v(vT1)}
        v_mul_f32 {v(vK1)}, {fl(k1)}, {v(vT2)}
        v_mul_f32 {v(vK2)}, {v(vT2)}, {v(vT2)}
        v_mul_f32 {v(vK2)}, {v(vK2)}, {v(vT2)}
        v_mul_f32 {v(vK2)}, {fl(k2)}, {v(vK2)}
        v_cmp_lt_u32 vcc, 31, v1
        """)
        hi_or_lo(q, vTK, vM, vT2); hi_or_lo(q, vTK + 1, vSD, vT2)
    fin = collect(statf)
    def gelu_ops(ct):
        ops = []
        acc = vACC + 16*ct
        bc = "op_sel_hi:[1,0,0]"
        for j0 in range(0, 16, 8):
            for j in range(0, 8, 2): ops.append(f"v_pk_mul_f32 {v(vG+j,2)}, {v(acc+j0+j,2)}, {v(acc+j0+j,2)}")
            for j in range(0, 8, 2): ops.append(f"v_pk_fma_f32 {v(vG+j,2)}, {v(vG+j,2)}, {v(vK2,2)}, {v(vK1,2)} {bc}")
            for j in range(0, 8, 2): ops.append(f"v_pk_mul_f32 {v(vG+j,2)}, {v(vG+j,2)}, {v(acc+j0+j,2)}")
            for j in range(8): ops.append(f"v_exp_f32 {v(vG+j)}, {v(vG+j)}")
            for j in range(0, 8, 2): ops.append(f"v_pk_fma_f32 {v(vG+j,2)}, {v(vG+j,2)}, {v(vSD,2)}, {v(vSD,2)} {bc}")
            for j in range(8): ops.append(f"v_rcp_f32 {v(vG+j)}, {v(vG+j)}")
            for j in range(0, 8, 2): ops.append(f"v_pk_mul_f32 {v(vG+j,2)}, {v(vG+j,2)}, {v(acc+j0+j,2)}")
            for j in range(4): ops.append(f"v_cvt_pk_bf16_f32 {v(acc + j0 + j)}, {v(vG+2*j)}, {v(vG+2*j+1)}")
            so = sU2 if ct < 2 else sU3
            ops.append((f"buffer_store_dwordx4 {v(acc+j0, 4)}, {v(vL16)}, {srd(sWS)}, {s(so)} offen offset:{(ct % 2)*2048 + (j0//8)*1024} sc1", f"h1_{ct}"))
        return ops
    def sprinkle(ops, extra, every):
        for i, o in enumerate(ops):
            emit(p, o)
            if i % every == every - 1 and extra: emit(p, take(extra, 1))
    for sx in range(28):
        fill = []
        if sx + PF < 28: fill.append(hld(sx + PF))
        elif h1w: fill += take(h1w, 1)
        if 4 <= sx < 11: fill.append(stl[sx - 4])
        if sx + 3 < 28: fill += reads4(sx + 3, 0)
        if sx >= 18: fill += take(fin, 5)
        weave(p, [MF(v(vACC + 16*k, 16), v(vWF + 8*(sx % WD) + 4*k, 4), a(aHF + 4*sx, 4), "0" if sx == 0 else None) for k in range(2)], fill)
    emit(p, fin)
    for k in range(2): mfma(p, v(vACC + 16*k, 16), v(vAU + 4*k, 4), v(vTK, 4))
    S_(10)
    sprinkle(gelu_ops(0), h1w, 6)
    emit(p, h1w + gelu_ops(1))
    p.wait_vm("h1w")
    p("s_barrier")
    for sx in range(3): emit(p, reads4(sx, 1))
    dm = []
    for t in range(NRT, 11): dm += w2dma(t, sA, (t - 8)*4096)
    for t in range(11, 14): dm += w2dma(t, sB14, LH0 + (t - 11)*4096)
    for k in range(2): p(MF(v(vACC + 32 + 16*k, 16), v(vAU + 8 + 4*k, 4), v(vTK, 4), "0"))
    for sx in range(28):
        fill = []
        if sx + 3 < 28: fill += reads4(sx + 3, 1)
        if sx == OPT.get("fl0", 10):
            def fl0():
                p.wait_vm("h1_1"); setflag2(sU1); p(f"s_add_u32 {s(sU1)}, {s(sU1)}, {FD1 - FD0}")
            fill.append(fl0)
        elif dm: fill += take(dm, 1)
        weave(p, [MF(v(vACC + 32 + 16*k, 16), v(vWF + 8*(sx % WD) + 4*k, 4), a(aHF + 4*sx, 4)) for k in range(2)], fill)
    emit(p, dm)
    p("s_barrier")
    S_(11)
    RW = 14
    def h1ld(ks):
        half, k = ks // 14, ks % 14
        r = []
        if k % 4 == 0: r.append(f"s_add_u32 {s(sT0)}, {s(sHB)}, {half*112*512 + k*1024}")
        r.append(f"buffer_load_dwordx4 {a(8*(ks % RW), 4)}, {v(vH)}, {srd(sWS)}, {s(sT0)} offen offset:{(k % 4)*1024} sc1")
        return [r, f"buffer_load_dwordx4 {a(8*(ks % RW) + 4, 4)}, {v(vH+1)}, {srd(sWS)}, {s(sT0)} offen offset:{(k % 4)*1024} sc1"]
    p(poll_issue(vPD, s(sFD)))
    g2 = gelu_ops(2)
    emit(p, g2[:41])
    poll_check(vPD, s(sFD), "pollD0")
    p(f"s_add_u32 {s(sFD)}, {s(sFD)}, {FD1 - FD0}")
    P5F = OPT.get("p5f", 7)
    early = []
    for ks in range(P5F): early += h1ld(ks)
    sprinkle(g2[41:] + gelu_ops(3), early, 8)
    emit(p, early)
    S_(12)
    if OPT.get("st1"): stamp(p, 12)
    acc5 = {0: 112, 1: 48, 2: 64, 3: 196}
    vWF = 12
    def wsrc(ks, c):
        tile, e = ks // 2, ks % 2
        if tile < NRT: return a(aW2 + 16*tile + 8*e + 4*c, 4)
        return v(vWF + 8*(ks % 4) + 4*c, 4)
    def reads5(ks):
        tile, e = ks // 2, ks % 2
        if tile < NRT: return []
        reg, slot = (0, tile - 8) if tile < 11 else (1, tile - 11)
        return [lambda: p.wait_vm(f"w2_{tile}")] + [f"ds_read_b64_tr_b16 {v(vWF + 8*(ks % 4) + 4*c + 2*h, 2)}, {v(vA5 + 2*reg + c)} offset:{slot*4096 + e*2048 + 512*h}" for c in range(2) for h in range(2)]
    def m5(ks, j):
        return MF(v(acc5[j], 16), wsrc(ks, j % 2), a(8*(ks % RW) + 4*(j // 2), 4), "0" if (ks == 0 and j != 0) else None)
    CHK = OPT.get("chk", 9)
    FL1 = OPT.get("fl1", 2)
    for ks in range(24):
        fill = []
        if ks == FL1:
            p.wait_vm("h1_3"); setflag2(sU1)
        if ks == CHK - 2: fill.append(poll_issue(vPD, s(sFD)))
        if ks == CHK:
            poll_check(vPD, s(sFD), "pollD1")
            for k2 in range(14, ks + P5F): fill += h1ld(k2)
        if ks + P5F < 28 and (ks + P5F < 14 or ks >= CHK): fill += h1ld(ks + P5F)
        fill += reads5(ks + 2)
        weave(p, [m5(ks, j) for j in (3, 2, 1, 0)], fill)
    def wr5(j): return [f"ds_write_b128 {v(vRW+j-1)}, {v(acc5[j] + 4*q, 4)} offset:{q*1024}" for q in range(4)]
    weave(p, [m5(24, 3), m5(25, 3)], reads5(26) + reads5(27))
    weave(p, [m5(24, 2), m5(25, 2), m5(26, 3), m5(27, 3), m5(26, 2), m5(27, 2)], [f"s_sub_u32 {s(sT0)}, {s(sA)}, {LA}", f"v_add_u32 {v(vT2)}, {s(sT0)}, {v(vL16)}"])
    weave(p, [m5(ks, 1) for ks in range(24, 28)], ["s_nop 5"] + wr5(3))
    weave(p, [m5(ks, 0) for ks in range(24, 28)], wr5(2))
    emit(p, wr5(1))
    p("s_waitcnt lgkmcnt(0)\ns_barrier")
    vRD5 = 48
    for q_ in range(4):
        for w in range(3): p(f"ds_read_b128 {v(vRD5 + 16*w + 4*q_, 4)}, {v(vT2)} offset:{w*4096 + q_*1024}")
    for m in range(2):
        for q_ in (2*m, 2*m+1):
            for w in range(3):
                for j in (2*q_, 2*q_+1): p(f"v_pk_add_f32 {v(vAC5+2*j, 2)}, {v(vAC5+2*j, 2)}, {v(vRD5 + 16*w + 2*j, 2)}")
        for j in range(4): p(f"v_cvt_pk_bf16_f32 {v(vAC5+8*m+j)}, {v(vAC5+8*m+2*j)}, {v(vAC5+8*m+2*j+1)}")
        p(f"buffer_store_dwordx4 {v(vAC5+8*m, 4)}, {v(vXA)}, {srd(sOUT)}, 0 offen offset:{32*m}")
    p.label("L_end")
    if gen2.STAMPS:
        p.reset()
        p("s_mov_b64 exec, -1\ns_waitcnt vmcnt(0)")
        stamp(p, NST - 1)
        p(f"s_memrealtime s[94:95]\ns_waitcnt lgkmcnt(0)")
        for k in range(16): p(f"v_mov_b32 v{4+k}, {s(64 + 2*k)}")
        p(f"""
        s_lshl_b32 s3, s2, 8
        s_lshl_b32 s4, {s(sWAVE)}, 6
        s_add_u32 s3, s3, s4
        s_add_u32 s3, s3, {31 << 20}
        v_mov_b32 v2, s3
        s_mov_b32 {s(sWS+2)}, 0x2000000
        s_mov_b64 exec, 1
        """)
        for k in range(4): p(f"buffer_store_dwordx4 {v(4+4*k, 4)}, v2, {srd(sWS)}, 0 offen offset:{16*k}")
    p("s_waitcnt vmcnt(0)")
    p.label("L_exit")
    p("s_endpgm")
    p.label("L_slow"); p.reset()
    vMX, vC = vRD, vRD + 16
    p(f"s_mov_b32 {s(sKB)}, 0\ns_mov_b32 {s(sCNT)}, 64\nv_mov_b32 {v(vMX)}, 0xff7fffff")
    p.label("L_slow_max")
    emit(p, ldkv(0))
    p(MF(v(vSB, 16), a(aKV, 4), v(vQF, 4), "0")); p(MF(v(vSB, 16), a(aKV + 4, 4), v(vQF + 4, 4)))
    for j in range(0, 16, 2): p(f"v_max3_f32 {v(vMX)}, {v(vMX)}, {v(vSB+j)}, {v(vSB+j+1)}")
    p(f"s_waitcnt vmcnt(0)\ns_sub_u32 {s(sCNT)}, {s(sCNT)}, 1\ns_cmp_lg_u32 {s(sCNT)}, 0\ns_cbranch_scc1 L_slow_max")
    p(f"""
    v_mov_b32 {v(vT1)}, {v(vMX)}
    v_permlane32_swap_b32 {v(vT1)}, {v(vMX)}
    v_max_f32 {v(vMX)}, {v(vMX)}, {v(vT1)}
    s_mov_b32 {s(sKB)}, 0
    s_mov_b32 {s(sCNT)}, 64
    """)
    for j in range(16): p(f"v_sub_f32 {v(vC+j)}, 0, {v(vMX)}\nv_mov_b32 {v(vO+j)}, 0")
    p.label("L_slow_pv")
    emit(p, ldkv(0))
    p(MF(v(vSB, 16), a(aKV, 4), v(vQF, 4), v(vC, 16))); p(MF(v(vSB, 16), a(aKV + 4, 4), v(vQF + 4, 4)))
    for qd in range(4): expcvt(0, qd)
    p(MF(v(vO, 16), a(aKV + 8, 4), v(vPB, 4))); p(MF(v(vO, 16), a(aKV + 12, 4), v(vPB + 4, 4)))
    p(f"s_nop 7\ns_sub_u32 {s(sCNT)}, {s(sCNT)}, 1\ns_cmp_lg_u32 {s(sCNT)}, 0\ns_cbranch_scc1 L_slow_pv")
    p(f"""
    s_nop 7
    v_mov_b32 {v(vT1)}, {v(vO+12)}
    v_mov_b32 {v(vT2)}, {v(vO+12)}
    v_permlane32_swap_b32 {v(vT1)}, {v(vT2)}
    s_branch L_slow_ret
    """)
    return name

def main(outpath):
    p = Prog()
    name = KER(p)
    body = p.finalize()
    hdr = open(f"cdna_kernels/{NAME}.s.ref").read().split("; Override launch")[0]
    hdr += "; @launch grid=(256,1,1) block=(256,1,1) lds=163840\n"
    txt = hdr + '.amdgcn_target "amdgcn-amd-amdhsa--gfx950"\n.text\n.set CODE_LEN, 0x12345\n' + body + f""".section .rodata,"a"
.p2align 6
.amdhsa_kernel {name}
  .amdhsa_next_free_vgpr 512
  .amdhsa_next_free_sgpr 102
  .amdhsa_accum_offset 256
  .amdhsa_group_segment_fixed_size 0
  .amdhsa_kernarg_size 88
  .amdhsa_user_sgpr_count 2
  .amdhsa_user_sgpr_kernarg_segment_ptr 1
  .amdhsa_system_sgpr_workgroup_id_x 1
.end_amdhsa_kernel
"""
    import subprocess, re as _re
    open("_sz.s", "w").write(txt)
    subprocess.run(["clang", "-x", "assembler", "-target", "amdgcn-amd-amdhsa", "-mcpu=gfx950", "-c", "_sz.s", "-o", "_sz.o"], check=True)
    o = subprocess.run(["llvm-objdump", "-h", "-t", "_sz.o"], capture_output=True, text=True).stdout
    sz = int(_re.search(r"\.text\s+([0-9a-f]+)", o).group(1), 16)
    pc0 = int(_re.search(r"([0-9a-f]+) l\s+\.text\s+[0-9a-f]+ L_pc", o).group(1), 16)
    txt = txt.replace(".set CODE_LEN, 0x12345", f".set CODE_LEN, {(sz - pc0 - 64) & ~3}")
    open(outpath, "w").write(txt)
    print("nops inserted:", p.nops, "bytes:", len(txt), "code bytes:", sz)

if __name__ == "__main__":
    for a_ in sys.argv[2:]:
        if a_ == "stamps": gen2.STAMPS = True
        else:
            k_, v_ = a_.split("="); OPT[k_] = int(v_)
    main(sys.argv[1] if len(sys.argv) > 1 else f"cdna_kernels/{NAME}.s")
```

```python
import re

TRANS = ("v_exp_f32", "v_log_f32", "v_rcp_f32", "v_rsq_f32", "v_sqrt_f32", "v_sin_f32", "v_cos_f32",
         "v_exp_f16", "v_rcp_iflag_f32")

def v(n, c=1): return f"v{n}" if c == 1 else f"v[{n}:{n+c-1}]"
def a(n, c=1): return f"a{n}" if c == 1 else f"a[{n}:{n+c-1}]"
def s(n, c=1): return f"s{n}" if c == 1 else f"s[{n}:{n+c-1}]"

_reg_re = re.compile(r"^-?(?:abs\()?\|?([vas])(?:(\d+)|\[(\d+):(\d+)\])\|?\)?$")

def regs_of(op):
    op = op.strip()
    if op in ("vcc", "exec", "m0", "scc"):
        return {op}
    if op in ("vcc_lo", "vcc_hi"): return {"vcc"}
    if op in ("exec_lo", "exec_hi"): return {"exec"}
    m = _reg_re.match(op)
    if not m: return set()
    k = m.group(1)
    if m.group(2) is not None: return {(k, int(m.group(2)))}
    return {(k, i) for i in range(int(m.group(3)), int(m.group(4)) + 1)}

class Ins:
    __slots__ = ("text", "op", "cls", "w", "r", "A", "B", "C", "passes", "lds", "wide", "data", "target", "states", "cnt")
    def __init__(self, text):
        self.text = text
        t = text.split(";")[0].strip()
        parts = t.split(None, 1)
        op = parts[0]
        for suf in ("_e32", "_e64"):
            if op.endswith(suf): op = op[:-4]
        self.op = op
        rest = parts[1] if len(parts) > 1 else ""
        ops, depth, cur = [], 0, ""
        for ch in rest:
            if ch in "[(": depth += 1
            if ch in "])": depth -= 1
            if ch == "," and depth == 0:
                ops.append(cur.strip()); cur = ""
            else: cur += ch
        if cur.strip(): ops.append(cur.strip())
        mods = ""
        if ops:
            last = ops[-1].split()
            if len(last) > 1:
                ops[-1] = last[0]; mods = " ".join(last[1:])
        self.w, self.r = set(), set()
        self.A = self.B = self.C = None
        self.passes = 0; self.lds = False; self.wide = False; self.data = set(); self.target = None
        self.states = 1; self.cnt = None
        R = [regs_of(o) for o in ops]
        if op == "s_nop":
            self.cls = "nop"; self.states = int(ops[0], 0) + 1
        elif op.startswith("v_smfmac"):
            self.cls = "mfma"; self.w = R[0]; self.A, self.B, self.C = R[1] | R[3], R[2], R[0]
            self.r = R[0] | R[1] | R[2] | R[3] | {"exec"}
            self.passes = 8 if "32x32" in op else 4
        elif op.startswith("v_mfma"):
            self.cls = "mfma"; self.w = R[0]; self.A, self.B, self.C = R[1], R[2], R[3]
            self.r = R[1] | R[2] | R[3] | {"exec"}
            self.passes = 8 if "32x32" in op else 4
        elif op.startswith("v_"):
            self.cls = "valu"
            if op in TRANS: self.cls = "trans"
            if op.startswith("v_dot"): self.cls = "dot"
            if op.startswith("v_permlane") and "swap" in op:
                self.w = R[0] | R[1]; self.r = R[0] | R[1]
            elif op in ("v_add_co_u32", "v_sub_co_u32", "v_addc_co_u32", "v_subb_co_u32", "v_mad_u64_u32"):
                self.w = R[0] | R[1]; self.r = set().union(*R[2:])
            elif op == "v_nop":
                pass
            else:
                self.w = R[0]; self.r = set().union(*R[1:]) if len(R) > 1 else set()
                if op in ("v_fmac_f32", "v_dot2c_f32_bf16", "v_writelane_b32", "v_pk_fmac_f16"): self.r |= R[0]
                if op.startswith("v_cmpx"): self.w |= {"exec"}
            self.r |= {"exec"}
        elif op.startswith("buffer_") or op.startswith("global_"):
            self.cls = "vmem"; self.cnt = "vm"
            if op in ("buffer_inv", "buffer_wbl2"):
                pass
            elif "lds" in mods.split() or "_lds_" in op:
                self.lds = True; self.r = set().union(*R) | {"m0"}
            elif "_load" in op:
                self.w = R[0]; self.r = set().union(*R[1:])
                if "d16" in op: self.r |= R[0]
            elif "_store" in op:
                self.r = set().union(*R)
                self.data = R[0] if op.startswith("buffer") else R[1]
                self.wide = op.endswith("x4") or op.endswith("x3")
            elif "_atomic" in op:
                self.r = set().union(*R)
                if "sc0" in mods.split(): self.w = R[0]
            self.r |= {"exec"}
        elif op.startswith("ds_"):
            self.cls = "ds"; self.cnt = "lgkm"
            if op.startswith("ds_read") or op.startswith("ds_bpermute") or op.startswith("ds_swizzle") or op.startswith("ds_permute"):
                self.w = R[0]; self.r = set().union(*R[1:])
            else:
                self.r = set().union(*R)
            self.r |= {"exec"}
        elif op.startswith("s_load") or op.startswith("s_buffer_load") or op in ("s_memtime", "s_memrealtime"):
            self.cls = "smem"; self.cnt = "smem"; self.w = R[0]; self.r = set().union(*R[1:]) if len(R) > 1 else set()
        elif op in ("s_waitcnt", "s_barrier", "s_endpgm", "s_setprio", "s_sleep"):
            self.cls = "misc"
        elif op == "s_branch" or op.startswith("s_cbranch"):
            self.cls = "branch"; self.target = ops[0]
            if "scc" in op: self.r = {"scc"}
            if "vcc" in op: self.r = {"vcc"}
            if "exec" in op: self.r = {"exec"}
        elif op.startswith("s_cmp") or op.startswith("s_bitcmp"):
            self.cls = "salu"; self.w = {"scc"}; self.r = set().union(*R)
        elif op.startswith("s_"):
            self.cls = "salu"; self.w = R[0] | {"scc"}; self.r = set().union(*R[1:]) if len(R) > 1 else set()
            if op in ("s_mov_b32", "s_mov_b64", "s_movk_i32", "s_cselect_b32", "s_cselect_b64", "s_mul_i32", "s_mul_hi_u32", "s_getpc_b64", "s_getreg_b32"):
                self.w = R[0]
            if "saveexec" in op: self.w |= {"exec"}; self.r |= {"exec"}
            if op in ("s_addk_i32", "s_mulk_i32"): self.r |= R[0]
            if op in ("s_cselect_b32", "s_cselect_b64", "s_addc_u32", "s_subb_u32"): self.r |= {"scc"}
        else:
            raise ValueError("unknown instruction " + text)

def is_valu(i): return i.cls in ("valu", "trans", "dot")
def vregs(st): return {x for x in st if isinstance(x, tuple) and x[0] in "va"}
def sregs(st): return {x for x in st if (isinstance(x, tuple) and x[0] == "s") or x == "vcc"}

def hazard(p, c):
    n = 0
    pw_v = vregs(p.w)
    if is_valu(p):
        if c.cls == "mfma" and pw_v & c.r: n = max(n, 3 if p.cls == "dot" else 2)
        if p.cls == "trans" and is_valu(c) and c.cls != "trans" and pw_v & c.r: n = max(n, 1)
        if p.cls == "trans" and c.cls in ("vmem", "ds") and pw_v & c.r: n = max(n, 1)
        if c.op in ("v_readfirstlane_b32", "v_readlane_b32") and pw_v & c.r: n = max(n, 1)
        if c.op.startswith("v_permlane") and pw_v & c.r: n = max(n, 2)
        if "dpp" in c.text and pw_v & c.r: n = max(n, 2)
        ps = sregs(p.w)
        if ps:
            if is_valu(c) and ps & c.r: n = max(n, 4 if c.op in ("v_readlane_b32", "v_writelane_b32") else 2)
            if c.cls == "vmem" and ps & c.r: n = max(n, 5)
            if c.cls in ("salu", "smem", "branch") and ps & c.r: n = max(n, 1)
        if "exec" in p.w and (c.cls in ("mfma",) or c.op.startswith("v_permlane") or c.op.startswith("v_read")): n = max(n, 4)
        if p.cls == "dot" and pw_v & (c.r | c.w) and c.cls != "nop":
            if c.op == p.op:
                srcs = c.text.split(";")[0].split(None, 1)[1].split(",")
                ab = regs_of(srcs[1]) | regs_of(srcs[2].split()[0])
                if pw_v & ab: n = max(n, 3)
            else: n = max(n, 3)
    if p.cls == "mfma":
        big = p.passes == 8
        if c.cls == "mfma":
            if p.w & (c.A | c.B): n = max(n, 12 if big else 8)
            if p.w & c.C:
                if not (p.w == c.C and p.passes == c.passes): n = max(n, 10 if big else 6)
            elif p.w & c.w and p.w != c.w: n = max(n, 10 if big else 6)
        elif is_valu(c) or c.cls in ("vmem", "ds"):
            if p.w & (c.r | c.w): n = max(n, 12 if big else 8)
            if is_valu(c) and p.C & c.w: n = max(n, 7 if big else 3)
    if p.cls == "salu" and "m0" in p.w and c.cls == "vmem" and c.lds: n = max(n, 1)
    if p.cls == "vmem" and p.wide and p.data & c.w:
        n = max(n, 2 if is_valu(c) or c.cls == "mfma" else 1)
    return n

class Prog:
    def __init__(self):
        self.items = []
        self.vm = []
        self.lg = []
        self.sm = []
        self.auto = True
        self.uid = 0
        self.dummy = {('v', k) for k in range(244, 248)}
    def raw(self, t): self.items.append(("raw", t))
    def label(self, n): self.items.append(("label", n))
    def newlabel(self, base):
        self.uid += 1
        return f"L_{base}_{self.uid}"
    def cmt(self, t): self.raw("    ; " + t)
    def _apply_wait(self, text):
        m = re.search(r"vmcnt\((\d+)\)", text)
        if m:
            n = int(m.group(1)); self.vm = self.vm[len(self.vm) - n:] if n < len(self.vm) and n > 0 else ([] if n == 0 else self.vm)
        m = re.search(r"lgkmcnt\((\d+)\)", text)
        if m:
            n = int(m.group(1))
            if n == 0: self.lg = []; self.sm = []
            elif not self.sm and n < len(self.lg): self.lg = self.lg[len(self.lg) - n:]
    def __call__(self, text, tag=None):
        for line in text.strip().split("\n"):
            line = line.strip()
            if not line or line.startswith(";"): continue
            self._emit(line, tag)
    def _emit(self, line, tag):
        i = Ins(line)
        if i.op == "s_waitcnt":
            self._apply_wait(line); self.items.append(i); return
        if self.auto:
            touch = i.r | i.w
            w = []
            idx = max((k for k, (dst, _) in enumerate(self.vm) if dst & touch), default=-1)
            if idx >= 0: w.append(f"vmcnt({min(63, len(self.vm) - 1 - idx)})")
            if any(dst & touch for dst, _ in self.sm): w.append("lgkmcnt(0)")
            else:
                idx = max((k for k, (dst, _) in enumerate(self.lg) if dst & touch), default=-1)
                if idx >= 0:
                    w.append("lgkmcnt(0)" if self.sm else f"lgkmcnt({min(15, len(self.lg) - 1 - idx)})")
            if w:
                t = "s_waitcnt " + " ".join(w)
                self._apply_wait(t); self.items.append(Ins(t))
        if i.cnt == "vm": self.vm.append((set(i.w) - self.dummy, tag))
        elif i.cnt == "lgkm": self.lg.append((set(i.w), tag))
        elif i.cnt == "smem": self.sm.append((set(i.w), tag))
        assert len(self.vm) <= 63, "too many outstanding vmem ops for vmcnt"
        self.items.append(i)
    def wait_vm(self, tag):
        idx = max((k for k, (_, t) in enumerate(self.vm) if t == tag), default=-1)
        if idx >= 0: self(f"s_waitcnt vmcnt({len(self.vm) - 1 - idx})")
    def wait_lg(self, tag):
        idx = max((k for k, (_, t) in enumerate(self.lg) if t == tag), default=-1)
        if idx >= 0: self(f"s_waitcnt lgkmcnt({0 if self.sm else min(15, len(self.lg) - 1 - idx)})")
    def state(self): return ([(frozenset(d)) for d, _ in self.vm], [(frozenset(d)) for d, _ in self.lg], len(self.sm))
    def save(self): return (list(self.vm), list(self.lg), list(self.sm))
    def restore(self, st): self.vm, self.lg, self.sm = list(st[0]), list(st[1]), list(st[2])
    def reset(self): self.vm, self.lg, self.sm = [], [], []
    @staticmethod
    def _need(hist, c):
        need, dist = 0, 0
        for p in reversed(hist):
            h = hazard(p, c)
            if h > dist: need = max(need, h - dist)
            dist += p.states
            if dist >= 20: break
        return need
    def finalize(self):
        out, hist = [], []
        nops = 0
        for it in self.items:
            if isinstance(it, Ins):
                n = self._need(hist, it)
                if n:
                    nop = Ins(f"s_nop {n-1}"); out.append(nop); hist.append(nop); nops += n
                out.append(it); hist.append(it)
                if it.op in ("s_branch", "s_endpgm"): hist = []
                hist = hist[-24:]
            else: out.append(it)
        changed = True
        while changed:
            changed = False
            lab = {it[1]: k for k, it in enumerate(out) if not isinstance(it, Ins) and it[0] == "label"}
            for k, it in enumerate(out):
                if isinstance(it, Ins) and it.cls == "branch":
                    hist = []
                    for x in out[max(0, k - 40):k + 1]:
                        if isinstance(x, Ins):
                            hist.append(x)
                            if x is not it and x.op in ("s_branch", "s_endpgm"): hist = []
                    j = lab[it.target]; dist = 0; worst = 0
                    h2 = list(hist)
                    while j < len(out) and dist < 20:
                        x = out[j]; j += 1
                        if not isinstance(x, Ins): continue
                        worst = max(worst, self._need(h2, x))
                        h2.append(x); dist += x.states
                        if x.op in ("s_branch", "s_endpgm"): break
                    if worst:
                        out.insert(k, Ins(f"s_nop {worst-1}")); changed = True; nops += worst
                        break
        self.nops = nops
        txt = []
        for it in out:
            if isinstance(it, Ins): txt.append("    " + it.text)
            elif it[0] == "label": txt.append(it[1] + ":")
            else: txt.append(it[1])
        return "\n".join(txt) + "\n"
```

```python
import sys, math, struct
from asmlib import *
import gen2
from gen2 import NAME, f2u, hx, fl, sX, sWQ, sWO, sW1, sB1, sW2, sB2, sOUT, sWS, sWAVE, sONES, LOG2E, EPS, srd, stamp, NST, \
    mfma, split_hi_lo_pack, hi_or_lo, half_sum, tr_addr, dma128_addr
from gen3 import cost, emit, weave, MF, take, collect

OPT = {}
BLK = 86144
VOFF, ONES_OFF = 57344, 86016
WS_QKV = 0
WS_O  = 0x600000
WS_H  = 0x800000
WS_ST = 0x9E0000
WS_AU = 0xA20000
WS_H1 = 0xA40000
WS_FL = 0x1180000
FB, FC, FD0, FD1 = WS_FL, WS_FL + 0x20000, WS_FL + 0x40000, WS_FL + 0x60000
FA = WS_FL + 0x80000
FX = WS_FL + 0x88000
WS_EP = WS_FL + 0x90000
WS_SIZE = 0x1220000
SRD = dict(gen2.SRD); SRD[sWS] = (80, WS_SIZE)

def KER(p):
    name = NAME + "_kernel"
    sT0, sT1, sT2, sT3 = 48, 49, 50, 51
    sEP, sXCC = 101, 96
    vL16, vZ, vEP = 2, 10, 254
    vL128, vTC = 243, 244
    p.raw(f".globl {name}\n.p2align 8\n.type {name},@function")
    p.label(name); p.reset()
    p(f"s_cmp_ge_u32 s2, 256\ns_cbranch_scc1 L_exit")
    if gen2.STAMPS:
        for k in range(1, NST): p(f"s_mov_b64 {s(64+2*k,2)}, 0")
        p(f"s_memrealtime s[92:93]")
    stamp(p, 0)
    order = [sX, sWQ, sWS, sW1, sB1, sWO, sW2, sB2, sOUT]
    for r in order: p(f"s_load_dwordx2 {s(r,2)}, s[0:1], {SRD[r][0]}")
    p.label("L_pc")
    p(f"""
    s_getpc_b64 s[58:59]
    s_lshr_b32 s3, s2, 3
    s_lshl_b32 s3, s3, 11
    v_lshrrev_b32 v3, 4, v0
    v_lshl_add_u32 v3, v3, 7, s3
    v_min_u32 v3, CODE_LEN, v3
    global_load_dword {v(vTC)}, v3, s[58:59]
    v_lshrrev_b32 v2, 6, v0
    v_and_b32 v1, 63, v0
    v_readfirstlane_b32 {s(sWAVE)}, v2
    """)
    for r in order: p(f"s_mov_b32 {s(r+2)}, {hx(SRD[r][1])}\ns_mov_b32 {s(r+3)}, 0x00020000")
    sR, sCB, sXB, sWB, sM0, sRT, sKC, sWL, sKB1, sPH = 46, 47, 52, 53, 54, 55, 56, 57, 60, 61
    vT1, vT2, vT3 = 3, 4, 5
    vXE, vXO, vW, vXR, vWR, vWR2, vWC, vWC2 = 6, 7, 12, 16, 20, 21, 22, 23
    vS, vQ, vCS, vCA, vCW, vRW1, vRA, vSA = 8, 9, 24, 27, 28, 29, 30, 31
    vM, vR = 32, 33
    vXF, vWF, vCF, vB2, vAU1, vRR = 36, 148, 172, 188, 192, 188
    acc1 = {0: 204, 1: 220, 2: 172}
    LW, LX, LSC = 0, 86016, 151552
    p(f"""
    s_mov_b32 {s(sONES)}, 0x3f803f80
    s_and_b32 {s(sT0)}, s2, 3
    s_lshl_b32 {s(sT0)}, {s(sT0)}, 2
    s_bfe_u32 {s(sT1)}, s2, 0x20003
    s_add_u32 {s(sR)}, {s(sT0)}, {s(sT1)}
    s_bfe_u32 {s(sT0)}, s2, 0x10002
    s_lshl_b32 {s(sT0)}, {s(sT0)}, 3
    s_lshr_b32 {s(sT2)}, s2, 5
    s_add_u32 {s(sCB)}, {s(sT0)}, {s(sT2)}
    s_lshl_b32 {s(sRT)}, {s(sR)}, 2
    s_add_u32 {s(sRT)}, {s(sRT)}, {s(sWAVE)}
    v_lshlrev_b32 {v(vL16)}, 4, v1
    v_lshlrev_b32 {v(vL128)}, 7, v1
    v_mov_b32 {v(vZ)}, 0
    s_cmp_ge_u32 {s(sCB)}, 15
    s_cbranch_scc1 L_aux
    """)
    st0 = p.save()
    p(f"""
    s_lshl_b32 {s(sM0)}, {s(sWAVE)}, 14
    s_add_u32 {s(sM0)}, {s(sM0)}, {LX}
    s_and_b32 {s(sKB1)}, s2, 3
    s_lshl_b32 {s(sKB1)}, {s(sKB1)}, 1
    s_and_b32 {s(sT0)}, s2, 4
    s_add_u32 {s(sKB1)}, {s(sKB1)}, {s(sT0)}
    s_sub_u32 {s(sT0)}, {s(sKB1)}, 7
    s_cmp_ge_u32 {s(sKB1)}, 7
    s_cselect_b32 {s(sKB1)}, {s(sT0)}, {s(sKB1)}
    s_mul_i32 {s(sKB1)}, {s(sKB1)}, {OPT.get("xph", 1)}
    s_xor_b32 {s(sPH)}, {s(sT1)}, {s(sT2)}
    s_and_b32 {s(sPH)}, {s(sPH)}, {OPT.get("ph", 1)}
    v_lshrrev_b32 {v(vT1)}, 3, v1
    v_mul_u32_u24 {v(vT1)}, 896, {v(vT1)}
    v_lshrrev_b32 {v(vT2)}, 4, v1
    v_xor_b32 {v(vT2)}, {v(vT2)}, v1
    v_and_b32 {v(vT2)}, 7, {v(vT2)}
    v_lshl_add_u32 {v(vXE)}, {v(vT2)}, 4, {v(vT1)}
    v_xor_b32 {v(vT2)}, 4, {v(vT2)}
    v_lshl_add_u32 {v(vXO)}, {v(vT2)}, 4, {v(vT1)}
    s_mul_i32 {s(sXB)}, {s(sRT)}, {32*896}
    v_add_u32 {v(vXE)}, {s(sXB)}, {v(vXE)}
    v_add_u32 {v(vXO)}, {s(sXB)}, {v(vXO)}
    v_add_u32 {v(vXO)}, {8*896 - 1024}, {v(vXO)}
    v_add_u32 v34, {16*896 - 2048}, {v(vXE)}
    v_add_u32 v35, {16*896 - 2048}, {v(vXO)}
    s_mul_i32 {s(sWB)}, {s(sCB)}, 192
    s_cmp_ge_u32 {s(sCB)}, 10
    s_cselect_b32 {s(sT0)}, 128, 0
    s_sub_u32 {s(sWB)}, {s(sWB)}, {s(sT0)}
    s_mul_i32 {s(sT0)}, {s(sWAVE)}, {16*2688}
    s_add_u32 {s(sWB)}, {s(sWB)}, {s(sT0)}
    s_mul_i32 {s(sWL)}, {s(sWAVE)}, 3072
    """)
    for pt in range(3):
        p(f"""
        v_add_u32 {v(vT1)}, {64*pt}, v1
        v_mul_u32_u24 {v(vT2)}, 5462, {v(vT1)}
        v_lshrrev_b32 {v(vT2)}, 16, {v(vT2)}
        v_mul_u32_u24 {v(vW+pt)}, {2688 - 192}, {v(vT2)}
        v_add3_u32 {v(vW+pt)}, {v(vW+pt)}, {v(vL16)}, {s(sWB)}
        """)
    sKCs = [3, 4, 5, 6, 7, 62, 63]
    for c in range(7):
        msk = 3 if c < 4 else (1 if c < 6 else 0)
        r = sKCs[c]
        p(f"""
        s_and_b32 {s(r)}, {s(sPH)}, {msk}
        s_xor_b32 {s(r)}, {s(r)}, {c}
        s_add_u32 {s(r)}, {s(r)}, {s(sKB1)}
        s_sub_u32 {s(sT0)}, {s(r)}, 7
        s_cmp_ge_u32 {s(r)}, 7
        s_cselect_b32 {s(r)}, {s(sT0)}, {s(r)}
        s_lshl_b32 {s(r)}, {s(r)}, 7
        """)
        if c == 1:
            p("s_waitcnt lgkmcnt(0)")
            stamp(p, 1) if OPT.get("st1") else None
            def ld(c):
                r = sKCs[c]; t = f"c{c}"
                return [[f"s_add_u32 m0, {s(sM0)}, {(c % 4)*4096}", f"s_mul_i32 {s(sT3)}, {s(r)}, {64*2688 // 128}",
                         (f"buffer_load_dwordx4 {v(vXE)}, {srd(sX)}, {s(r)} offen lds", t)],
                        (f"buffer_load_dwordx4 {v(vXO)}, {srd(sX)}, {s(r)} offen offset:1024 lds", t),
                        (f"buffer_load_dwordx4 v34, {srd(sX)}, {s(r)} offen offset:2048 lds", t),
                        (f"buffer_load_dwordx4 v35, {srd(sX)}, {s(r)} offen offset:3072 lds", t),
                        [f"s_add_u32 m0, {s(sWL)}, {LW + c*12288}", "s_nop 0",
                         (f"buffer_load_dwordx4 {v(vW)}, {srd(sWQ)}, {s(sT3)} offen lds", t)],
                        (f"buffer_load_dwordx4 {v(vW+1)}, {srd(sWQ)}, {s(sT3)} offen offset:1024 lds", t),
                        (f"buffer_load_dwordx4 {v(vW+2)}, {srd(sWQ)}, {s(sT3)} offen offset:2048 lds", t)]
            if OPT.get("touch", 0) == 1: p(f"""
            s_lshl_b32 {s(sT2)}, s2, 2
            s_add_u32 {s(sT2)}, {s(sT2)}, {s(sWAVE)}
            s_mul_i32 {s(sT0)}, {s(sT2)}, {14*128}
            s_mul_i32 {s(sT2)}, {s(sT2)}, {10*128}
            s_mov_b64 exec, 0x3fff
            buffer_load_dword {v(vTC)}, {v(vL128)}, {srd(sX)}, {s(sT0)} offen
            s_mov_b64 exec, 0x3ff
            buffer_load_dword {v(vTC)}, {v(vL128)}, {srd(sWQ)}, {s(sT2)} offen
            s_mov_b64 exec, -1
            """)
            emit(p, ld(0))
            if OPT.get("touch", 0) == 3: p(f"""
            s_lshl_b32 {s(sT2)}, s2, 2
            s_add_u32 {s(sT2)}, {s(sT2)}, {s(sWAVE)}
            s_mul_i32 {s(sT0)}, {s(sT2)}, {14*128}
            s_mul_i32 {s(sT2)}, {s(sT2)}, {10*128}
            s_mov_b64 exec, 0x3fff
            buffer_load_dword {v(vTC)}, {v(vL128)}, {srd(sX)}, {s(sT0)} offen
            s_mov_b64 exec, 0x3ff
            buffer_load_dword {v(vTC)}, {v(vL128)}, {srd(sWQ)}, {s(sT2)} offen
            s_mov_b64 exec, -1
            """)
            p(f"s_add_u32 s58, {s(sWS)}, {WS_EP}\ns_addc_u32 s59, {s(sWS+1)}, 0\ns_load_dword {s(sEP)}, s[58:59], 0")
    p(f"""
    v_and_b32 {v(vT1)}, 31, v1
    v_lshlrev_b32 {v(vXR+3)}, 7, {v(vT1)}
    v_add_u32 {v(vXR+3)}, {s(sM0)}, {v(vXR+3)}
    v_lshlrev_b32 {v(vCA)}, 4, {v(vT1)}
    v_add_u32 {v(vCA)}, {LSC}, {v(vCA)}
    s_lshl_b32 {s(sT0)}, {s(sWAVE)}, 2
    v_add_u32 {v(vCW)}, {s(sT0)}, {v(vCA)}
    s_lshl_b32 {s(sT0)}, {s(sWAVE)}, 7
    s_add_u32 {s(sT0)}, {s(sT0)}, {LSC + 1536}
    v_lshl_add_u32 {v(vRW1)}, {v(vT1)}, 2, {s(sT0)}
    v_lshrrev_b32 {v(vT2)}, 5, v1
    v_lshl_add_u32 {v(vRA)}, {v(vT2)}, 4, {s(sT0)}
    v_bfe_u32 {v(vT1)}, v1, 1, 3
    v_xor_b32 {v(vT1)}, {v(vT1)}, {v(vT2)}
    v_cmp_lt_u32 vcc, 31, v1
    """)
    for sp in range(4):
        p(f"v_xor_b32 {v(vT2)}, {2*sp}, {v(vT1)}")
        p(f"v_lshl_add_u32 {v(vXR+sp)}, {v(vT2)}, 4, {v(vXR+3)}")
    for r in (vS, vQ, vCS, vCS+1, vCS+2, vB2+1, vB2+2, vB2+3): p(f"v_mov_b32 {v(r)}, 0")
    for t in range(3):
        for j in range(1, 4): p(f"v_mov_b32 {v(vAU1 + 4*t + j)}, 0")
    emit(p, ld(1))
    if OPT.get("touch", 0) == 4:
        if 1: p(f"""
            s_lshl_b32 {s(sT2)}, s2, 2
            s_add_u32 {s(sT2)}, {s(sT2)}, {s(sWAVE)}
            s_mul_i32 {s(sT0)}, {s(sT2)}, {14*128}
            s_mul_i32 {s(sT2)}, {s(sT2)}, {10*128}
            s_mov_b64 exec, 0x3fff
            buffer_load_dword {v(vTC)}, {v(vL128)}, {srd(sX)}, {s(sT0)} offen
            s_mov_b64 exec, 0x3ff
            buffer_load_dword {v(vTC)}, {v(vL128)}, {srd(sWQ)}, {s(sT2)} offen
            s_mov_b64 exec, -1
            """)
    if OPT.get("ftouch", 1):
        p(f"""
        s_lshl_b32 {s(sT0)}, {s(sR)}, 4
        s_add_u32 {s(sT0)}, {s(sT0)}, {s(sCB)}
        s_lshl_b32 {s(sT0)}, {s(sT0)}, 7
        s_add_u32 {s(sT0)}, {s(sT0)}, {FA}
        s_mov_b64 exec, 1
        buffer_load_dword {v(vTC)}, {v(vZ)}, {srd(sWS)}, {s(sT0)} offen
        s_mov_b64 exec, -1
        """)
    p(f"s_waitcnt lgkmcnt(0)\ns_cmp_ge_u32 {s(sCB)}, 10\ns_cbranch_scc1 L_p1_v")
    st = p.save()
    for isV in (0, 1):
        if isV:
            p.label("L_p1_v"); p.restore(st)
        tr_addr(p, vWR, 192, swap=not isV, perm_rows=False, t1=vT1, t2=vT2)
        p(f"v_add_u32 {v(vWR2)}, 49152, {v(vWR)}\nv_add_u32 {v(vWC)}, {s(sWL)}, {v(vWR)}\nv_add_u32 {v(vWC2)}, {s(sWL)}, {v(vWR2)}")
        if not isV:
            p(f"""
            s_mul_i32 {s(sT0)}, {s(sRT)}, {BLK}
            s_mul_i32 {s(sT1)}, {s(sCB)}, {3*4*512}
            s_add_u32 {s(sT0)}, {s(sT0)}, {s(sT1)}
            s_mul_i32 {s(sXB)}, {s(sCB)}, 3
            """)
        else:
            p(f"""
            v_lshrrev_b32 {v(vSA)}, 5, v1
            v_mul_u32_u24 {v(vSA)}, {448*16 - 512}, {v(vSA)}
            v_add_u32 {v(vSA)}, {v(vSA)}, {v(vL16)}
            s_mul_i32 {s(sT2)}, {s(sRT)}, {BLK}
            s_mul_i32 {s(sT1)}, {s(sCB)}, {3*512}
            s_add_u32 {s(sT0)}, {s(sT2)}, {s(sT1)}
            s_add_u32 {s(sT0)}, {s(sT0)}, {VOFF - 10*3*512}
            s_lshl_b32 {s(sT1)}, {s(sCB)}, 4
            s_add_u32 {s(sT2)}, {s(sT2)}, {s(sT1)}
            s_add_u32 {s(sT2)}, {s(sT2)}, {ONES_OFF - 160}
            s_add_u32 {s(sT1)}, {s(sT0)}, {2*448*16}
            """)
        def xreads(c):
            return [f"ds_read_b128 {v(vXF + 16*c + 4*sp, 4)}, {v(vXR+sp)} offset:{(c % 4)*4096}" for sp in range(4)]
        def creads(c):
            base = (c % 4) * 12288; va = vWC if c < 4 else vWC2
            return [f"ds_read_b64_tr_b16 {v(vCF + 4*t + 2*h, 2)}, {v(va)} offset:{base + 64*t + 768*h}" for t in range(3) for h in range(2)]
        def wreads(sx):
            base = (sx % 16) * 3072; va = vWR if sx < 16 else vWR2
            return [f"ds_read_b64_tr_b16 {v(vWF + 8*(sx % 3) + 4*t + 2*h, 2)}, {v(va)} offset:{base + 64*t + 768*h}" for t in range(2) for h in range(2)]
        def wreads2(sx):
            base = (sx % 16) * 3072; va = vWR if sx < 16 else vWR2
            return [f"ds_read_b64_tr_b16 {v(vWF + 4*(sx % 6) + 2*h, 2)}, {v(va)} offset:{base + 128 + 768*h}" for h in range(2)]
        def AB(xf, wf): return (xf, wf) if isV else (wf, xf)
        def mm(sx):
            return [MF(v(acc1[t], 16), *AB(v(vXF + 4*sx, 4), v(vWF + 8*(sx % 3) + 4*t, 4)), "0" if sx == 0 else None) for t in range(2)]
        def burst(c):
            for j in range(16):
                r = vXF + 16*c + j
                p(f"v_dot2c_f32_bf16 {v(vS)}, {s(sONES)}, {v(r)}")
                p(f"v_dot2c_f32_bf16 {v(vQ)}, {v(r)}, {v(r)}")
            for j in range(12): p(f"v_dot2c_f32_bf16 {v(vCS + j // 4)}, {s(sONES)}, {v(vCF + j)}")
        def finf(q):
            for t in range(3): half_sum(q, vCS + t, vT3)
            for t in range(3): q(f"ds_write_b32 {v(vCW)}, {v(vCS+t)} offset:{t*512}")
            half_sum(q, vS, vT2); half_sum(q, vQ, vT3)
            q(f"""
            v_mul_f32 {v(vM)}, {fl(-1.0/448)}, {v(vS)}
            v_mul_f32 {v(vQ)}, {fl(1.0/448)}, {v(vQ)}
            v_fma_f32 {v(vQ)}, -{v(vM)}, {v(vM)}, {v(vQ)}
            v_max_f32 {v(vQ)}, 0, {v(vQ)}
            v_add_f32 {v(vQ)}, {fl(EPS)}, {v(vQ)}
            v_rsq_f32 {v(vR)}, {v(vQ)}
            """)
            hi_or_lo(q, vB2, vM, vT2)
            if isV: q(f"ds_write_b32 {v(vRW1)}, {v(vR)}")
        fin = collect(finf)
        touch2 = [[f"s_lshl_b32 {s(sT3)}, s2, 2", f"s_add_u32 {s(sT3)}, {s(sT3)}, {s(sWAVE)}", f"s_lshl_b32 {s(sT3)}, {s(sT3)}, 9", "s_mov_b64 exec, 0xf",
                   f"buffer_load_dword {v(vTC)}, {v(vL128)}, {srd(sWO)}, {s(sT3)} offen", f"s_lshl_b32 {s(sT3)}, {s(sT3)}, 2", "s_mov_b64 exec, 0xffff",
                   f"buffer_load_dword {v(vTC)}, {v(vL128)}, {srd(sW2)}, {s(sT3)} offen", "s_mov_b64 exec, -1"]]
        if isV:
            touch2.append([f"v_mov_b32 {v(vT1)}, {s(sONES)}", "s_mov_b64 exec, 0xf", f"v_lshlrev_b32 {v(vM)}, 2, v1",
                           f"buffer_store_dword {v(vT1)}, {v(vM)}, {srd(sWS)}, {s(sT2)} offen sc1", "s_mov_b64 exec, -1"])
        p.wait_vm("c0")
        p("s_barrier")
        if OPT.get("st1"): stamp(p, 2)
        x0 = xreads(0)
        emit(p, x0[:1] + wreads(0) + x0[1:2] + wreads(1) + x0[2:])
        lds_ = ld(2)
        for c in range(7):
            xr = xreads(c + 1) if c < 6 else []
            for sp in range(4):
                sx = 4*c + sp
                fill = []
                if sp == 2:
                    burst(c)
                    if c < 6:
                        if OPT.get("st1") == 2 and c in (1, 3): stamp(p, 8 + c // 2 * 2)
                        p.wait_vm(f"c{c+1}"); p("s_barrier")
                        if OPT.get("st1") == 2:
                            if c in (1, 3): stamp(p, 9 + c // 2 * 2)
                            if c in (0, 2, 4, 5): stamp(p, {0: 4, 2: 5, 4: 6, 5: 7}[c])
                        lds_ = ld(c + 3) if c + 3 < 7 else (touch2 if c + 3 == 7 else [])
                if sp >= 2: fill += take(xr, 1)
                if sx + 2 < 28: fill += wreads(sx + 2)
                if sp == 0: fill = (xreads(c)[2:] if c > 0 else []) + creads(c)[:2] + fill
                if sp == 1: fill = creads(c)[2:] + fill
                fill += take(lds_, {0: 1, 1: 9, 2: 3, 3: 2}[sp] if c > 0 or sp >= 2 else 4)
                if c == 6 and sp == 2: fill += take(fin, 12) + ["s_waitcnt lgkmcnt(0)", "s_barrier"] + [f"ds_read_b128 {v(vCF + 4*t, 4)}, {v(vCA)} offset:{t*512}" for t in range(3)]
                if c == 6 and sp == 3: fill += fin
                weave(p, mm(sx), fill)
        for t in range(3):
            c0 = vCF + 4*t
            p(f"v_add_f32 {v(c0)}, {v(c0)}, {v(c0+1)}\nv_add_f32 {v(c0+2)}, {v(c0+2)}, {v(c0+3)}\nv_add_f32 {v(c0)}, {v(c0)}, {v(c0+2)}")
            split_hi_lo_pack(p, vAU1 + 4*t, c0, vT2)
            p(MF(v(acc1[t], 16), *AB(v(vB2, 4), v(vAU1 + 4*t, 4)), "0" if t == 2 else None))
        if isV:
            for k in range(4): p(f"ds_read_b128 {v(vRR + 4*k, 4)}, {v(vRA)} offset:{k*32}")
        for sx in range(5): emit(p, wreads2(sx))
        if OPT.get("st1"): stamp(p, 3)
        def epi(t, pk):
            acc = acc1[t]; o = []
            if not isV: o += [f"s_cmp_lt_u32 {s(sXB)}, {14 - t}", f"s_cselect_b32 {s(sT1)}, {fl(28**-0.5 * LOG2E)}, 1.0", f"v_mul_f32 {v(vM)}, {s(sT1)}, {v(vR)}"]
            for m in range(2):
                if pk:
                    for j in range(4*m, 4*m+4):
                        o.append(f"v_pk_mul_f32 {v(acc+2*j, 2)}, {v(acc+2*j, 2)}, " + (f"{v(vRR+2*j, 2)}" if isV else f"{v(vM, 2)} op_sel_hi:[1,0]"))
                else:
                    for j in range(8*m, 8*m+8): o.append(f"v_mul_f32 {v(acc+j)}, {v(vRR+j) if isV else v(vM)}, {v(acc+j)}")
                for j in range(4): o.append(f"v_cvt_pk_bf16_f32 {v(acc+8*m+j)}, {v(acc+8*m+2*j)}, {v(acc+8*m+2*j+1)}")
                if isV: o.append(f"buffer_store_dwordx4 {v(acc+8*m, 4)}, {v(vSA)}, {srd(sWS)}, {s(sT0 if m == 0 else sT1)} offen offset:{t*512} sc1")
                else: o.append(f"buffer_store_dwordx4 {v(acc+8*m, 4)}, {v(vL16)}, {srd(sWS)}, {s(sT0)} offen offset:{(t % 2)*2048 + m*1024} sc1")
            return o
        emit(p, epi(0, True))
        if not isV: p(f"s_cmp_ge_u32 {s(sXB)}, 27\ns_cbranch_scc1 L_p1_done")
        emit(p, epi(1, True))
        if isV: p(f"s_cmp_ge_u32 {s(sCB)}, 14\ns_cbranch_scc1 L_p1_done")
        else: p(f"s_add_u32 {s(sT0)}, {s(sT0)}, 4096")
        for sx in range(28):
            weave(p, [MF(v(acc1[2], 16), *AB(v(vXF + 4*sx, 4), v(vWF + 4*(sx % 6), 4)))], wreads2(sx + 5) if sx + 5 < 28 else [])
        emit(p, epi(2, True))
        p(f"s_branch L_p1_done")
    p.label("L_aux"); p.restore(st0)
    vA_, vD, vSM, vB = 6, 16, 132, 128
    p(f"""
    v_lshrrev_b32 {v(vT1)}, 3, v1
    v_mul_u32_u24 {v(vA_)}, 3584, {v(vT1)}
    v_and_b32 {v(vT1)}, 7, v1
    v_lshl_add_u32 {v(vA_)}, {v(vT1)}, 4, {v(vA_)}
    s_lshr_b32 {s(sT1)}, {s(sWAVE)}, 1
    s_lshl_b32 {s(sT0)}, {s(sR)}, 1
    s_add_u32 {s(sT0)}, {s(sT0)}, {s(sT1)}
    s_lshl_b32 {s(sT0)}, {s(sT0)}, 7
    s_and_b32 {s(sT1)}, {s(sWAVE)}, 1
    s_mul_i32 {s(sT1)}, {s(sT1)}, {224*3584}
    s_add_u32 {s(sT0)}, {s(sT0)}, {s(sT1)}
    v_and_b32 {v(vT1)}, 19, v1
    v_bfe_u32 {v(vT2)}, v1, 2, 1
    v_lshl_add_u32 {v(vT1)}, {v(vT2)}, 3, {v(vT1)}
    v_bfe_u32 {v(vT2)}, v1, 3, 1
    v_lshl_add_u32 v7, {v(vT2)}, 2, {v(vT1)}
    v_lshlrev_b32 {v(vT1)}, 1, v7
    s_lshl_b32 {s(sT3)}, {s(sRT)}, 6
    s_waitcnt lgkmcnt(0)
    s_add_u32 s58, {s(sWS)}, {WS_EP}
    s_addc_u32 s59, {s(sWS+1)}, 0
    s_load_dword {s(sEP)}, s[58:59], 0
    s_cmp_ge_u32 {s(sR)}, 14
    s_cbranch_scc1 L_p1_done
    buffer_load_ushort {v(vB+1)}, {v(vT1)}, {srd(sB1)}, {s(sT3)} offen
    """)
    for j in range(8): p(f"v_mov_b32 {v(vSM+j)}, 0")
    def auxld(i):
        p(f"buffer_load_dwordx4 {v(vD + 4*i, 4)}, {v(vA_)}, {srd(sW1)}, {s(sT0)} offen")
        p(f"s_add_u32 {s(sT0)}, {s(sT0)}, {8*3584}")
    for i in range(10): auxld(i)
    for i in range(28):
        if i + 10 < 28: auxld(i + 10)
        for j in range(4):
            r = vD + 4*i + j
            p(f"v_lshlrev_b32 {v(vT2)}, 16, {v(r)}\nv_and_b32 {v(vT3)}, 0xffff0000, {v(r)}")
            p(f"v_pk_add_f32 {v(vSM+2*j, 2)}, {v(vSM+2*j, 2)}, {v(vT2, 2)}")
    p(f"""
    s_lshl_b32 {s(sT0)}, {s(sWAVE)}, 11
    s_add_u32 {s(sT0)}, {s(sT0)}, {LSC}
    v_lshl_add_u32 {v(vT1)}, v1, 5, {s(sT0)}
    ds_write_b128 {v(vT1)}, {v(vSM, 4)}
    ds_write_b128 {v(vT1)}, {v(vSM+4, 4)} offset:16
    s_waitcnt lgkmcnt(0)
    s_barrier
    s_lshr_b32 {s(sT0)}, {s(sWAVE)}, 1
    s_lshl_b32 {s(sT0)}, {s(sT0)}, 12
    s_and_b32 {s(sT1)}, {s(sWAVE)}, 1
    s_lshl_b32 {s(sT1)}, {s(sT1)}, 7
    s_add_u32 {s(sT0)}, {s(sT0)}, {s(sT1)}
    s_add_u32 {s(sT0)}, {s(sT0)}, {LSC}
    v_lshl_add_u32 {v(vT1)}, v7, 2, {s(sT0)}
    v_lshrrev_b32 {v(vT2)}, 5, v1
    v_lshl_add_u32 {v(vT1)}, {v(vT2)}, 11, {v(vT1)}
    """)
    for k in range(8): p(f"ds_read_b32 {v(vD+k)}, {v(vT1)} offset:{k*256}")
    for k in range(1, 8): p(f"v_add_f32 {v(vD)}, {v(vD)}, {v(vD+k)}")
    half_sum(p, vD, vT1)
    split_hi_lo_pack(p, vB, vD, vT1)
    p(f"""
    v_mov_b32 {v(vB+2)}, 0
    v_mov_b32 {v(vB+3)}, 0
    s_lshl_b32 {s(sT0)}, {s(sRT)}, 10
    s_add_u32 {s(sT0)}, {s(sT0)}, {WS_AU}
    buffer_store_dwordx4 {v(vB, 4)}, {v(vL16)}, {srd(sWS)}, {s(sT0)} offen sc1
    """)
    p.label("L_p1_done"); p.reset()
    p.vm.append((set(), "p1st"))
    sFA = 3
    sG, sM = 46, 47
    sH, sR2 = sG, sM
    sKB, sCNT, sKH, sA, sB14 = 52, 54, 55, 58, 59
    sC7, sRT0, sRT3, sCT = 60, 61, 62, 63
    sFXo, sKB0, sW2B, sU0, sU1, sU2, sU3, sV0, sV1 = 97, 98, 100, 12, 13, 14, 15, 53, 99
    sWP, sWC = 24, 4
    LWO, LH0, LA = 0, 57344, 114688
    LH1 = LWO
    vT1, vT2, vT3, vT4 = 3, 4, 5, 6
    vVA, vVA2, vKA, vIDX = 7, 8, 9, 11
    vQF, vSB, vPB, vRD = 12, 44, 76, 92
    vXV, vHV, vBV, vAU = 140, 148, 156, 164
    vXA, vB2A, vPX, vP = 196+16, 196+17, 196+18, 196+19
    vD9, vDW, vRW = 184, 188, 192
    vO = 196
    vXID = 248
    vPA_ = 250
    aO, aKV, aW2 = 0, 64, 112
    NB = 4
    p(f"""
    s_waitcnt lgkmcnt(0)
    s_lshl_b32 {s(sFA)}, {s(sR)}, 4
    s_add_u32 {s(sFA)}, {s(sFA)}, {s(sCB)}
    s_lshl_b32 {s(sFA)}, {s(sFA)}, 7
    s_add_u32 {s(sFA)}, {s(sFA)}, {FA}
    s_mul_i32 {s(sEP)}, {s(sEP)}, 0x41c64e6d
    s_add_u32 {s(sEP)}, {s(sEP)}, 0x3039f4a7
    s_getreg_b32 {s(sXCC)}, hwreg(HW_REG_XCC_ID)
    s_and_b32 {s(sXCC)}, {s(sXCC)}, 15
    v_mov_b32 {v(vEP)}, {s(sEP)}
    v_mov_b32 {v(vEP+1)}, {s(sXCC)}
    s_and_b32 {s(sT0)}, s2, 7
    s_lshl_b32 {s(sT0)}, {s(sT0)}, 1
    s_bfe_u32 {s(sT1)}, s2, 0x10003
    s_add_u32 {s(sG)}, {s(sT0)}, {s(sT1)}
    s_lshr_b32 {s(sM)}, s2, 4
    s_lshl_b32 {s(sFXo)}, {s(sG)}, 11
    s_add_u32 {s(sFXo)}, {s(sFXo)}, {FX}
    s_lshl_b32 {s(sT0)}, {s(sM)}, 7
    s_add_u32 {s(sT0)}, {s(sT0)}, {s(sFXo)}
    s_mov_b64 exec, 1
    buffer_store_dwordx2 {v(vEP,2)}, {v(vZ)}, {srd(sWS)}, {s(sT0)} offen sc1
    s_mov_b64 exec, -1
    s_cmp_ge_u32 {s(sM)}, 7
    s_cselect_b32 {s(sT1)}, 2, 0
    s_cselect_b32 {s(sT0)}, 7, 0
    s_sub_u32 {s(sC7)}, {s(sM)}, {s(sT0)}
    s_lshl_b32 {s(sRT0)}, {s(sG)}, 2
    s_add_u32 {s(sRT0)}, {s(sRT0)}, {s(sT1)}
    s_lshr_b32 {s(sT0)}, {s(sWAVE)}, 1
    s_add_u32 {s(sRT3)}, {s(sRT0)}, {s(sT0)}
    s_and_b32 {s(sKH)}, {s(sWAVE)}, 1
    s_lshl_b32 {s(sCT)}, {s(sC7)}, 1
    s_add_u32 {s(sCT)}, {s(sCT)}, {s(sKH)}
    s_mul_i32 {s(sA)}, {s(sWAVE)}, 12288
    s_add_u32 {s(sA)}, {s(sA)}, {LA}
    s_mul_i32 {s(sB14)}, {s(sWAVE)}, 14336
    s_mul_i32 {s(sV0)}, {s(sWAVE)}, {112*896}
    s_lshl_b32 {s(sT0)}, {s(sC7)}, 7
    s_add_u32 {s(sW2B)}, {s(sV0)}, {s(sV0)}
    s_add_u32 {s(sV0)}, {s(sV0)}, {s(sT0)}
    s_add_u32 {s(sW2B)}, {s(sW2B)}, {s(sT0)}
    s_mul_i32 {s(sV1)}, {s(sWAVE)}, {112*3584}
    s_lshl_b32 {s(sT0)}, {s(sM)}, 7
    s_add_u32 {s(sV1)}, {s(sV1)}, {s(sT0)}
    """)
    dma128_addr(p, vDW, 3584, vT1, vT2)
    dma128_addr(p, vD9, 896, vT1, vT2)
    for k in range(1, 4):
        p(f"v_add_u32 {v(vDW+k)}, {k*(8*3584 - 1024)}, {v(vDW)}")
        p(f"v_add_u32 {v(vD9+k)}, {k*(8*896 - 1024)}, {v(vD9)}")
    def wgrp(srdn, sbase, va, stride, ldsbase, g, extra=0, tag=None):
        n = 4 if g < 3 else 2
        head = [f"s_add_u32 m0, {s(sB14)}, {ldsbase + g*4096}", f"s_add_u32 {s(sT3)}, {s(sbase)}, {g*32*stride + extra}"]
        ld_ = [(f"buffer_load_dwordx4 {v(va+k)}, {srd(srdn)}, {s(sT3)} offen offset:{k*1024} lds", tag) for k in range(n)]
        return [head + [ld_[0]]] + ld_[1:]
    jobs = []
    for g in range(4): jobs += wgrp(sWO, sV0, vD9, 896, LWO, g)
    for g in range(4): jobs += wgrp(sW1, sV1, vDW, 3584, LH0, g)
    def div3(d, x): return f"s_mul_i32 {s(d)}, {s(x)}, 43\ns_lshr_b32 {s(d)}, {s(d)}, 7"
    p(f"""
    s_mul_i32 {s(sT0)}, {s(sH)}, 7
    s_lshr_b32 {s(sT0)}, {s(sT0)}, 1
    s_lshr_b32 {s(sT1)}, {s(sT0)}, 2
    s_add_u32 {s(sT2)}, {s(sT0)}, 3
    s_lshr_b32 {s(sT2)}, {s(sT2)}, 2
    {div3(sU0, sT1)}
    {div3(sU1, sT2)}
    s_add_u32 {s(sT1)}, {s(sT1)}, 14
    s_add_u32 {s(sT2)}, {s(sT2)}, 14
    {div3(sU2, sT1)}
    {div3(sU3, sT2)}
    s_lshl_b32 {s(sKB0)}, {s(sT0)}, 9
    s_mul_i32 {s(sT0)}, {s(sH)}, 28
    s_lshr_b32 {s(sT1)}, {s(sT0)}, 5
    s_add_u32 {s(sT2)}, {s(sT0)}, 27
    s_lshr_b32 {s(sT2)}, {s(sT2)}, 5
    {div3(sT1, sT1)}
    {div3(sT2, sT2)}
    """)
    p(f"""
    v_and_b32 {v(vT1)}, 3, v1
    v_mov_b32 {v(vPA_)}, {s(sU2)}
    v_mov_b32 {v(vT2)}, {s(sU3)}
    v_cmp_eq_u32 vcc, 1, {v(vT1)}
    v_cndmask_b32 {v(vPA_)}, {v(vPA_)}, {v(vT2)}, vcc
    s_add_u32 {s(sT3)}, {s(sT1)}, 10
    v_mov_b32 {v(vT2)}, {s(sT3)}
    v_cmp_eq_u32 vcc, 2, {v(vT1)}
    v_cndmask_b32 {v(vPA_)}, {v(vPA_)}, {v(vT2)}, vcc
    s_add_u32 {s(sT3)}, {s(sT2)}, 10
    v_mov_b32 {v(vT2)}, {s(sT3)}
    v_cmp_eq_u32 vcc, 3, {v(vT1)}
    v_cndmask_b32 {v(vPA_)}, {v(vPA_)}, {v(vT2)}, vcc
    v_lshrrev_b32 {v(vT1)}, 2, v1
    s_lshl_b32 {s(sT3)}, {s(sWAVE)}, 2
    v_add_u32 {v(vT1)}, {s(sT3)}, {v(vT1)}
    v_lshl_add_u32 {v(vPA_)}, {v(vT1)}, 4, {v(vPA_)}
    s_lshl_b32 {s(sT3)}, {s(sR2)}, 4
    s_add_u32 {s(sU0)}, {s(sU0)}, {s(sT3)}
    s_add_u32 {s(sU1)}, {s(sU1)}, {s(sT3)}
    v_mov_b32 {v(vT1)}, {s(sU0)}
    v_mov_b32 {v(vT2)}, {s(sU1)}
    v_cmp_lt_u32 vcc, 39, v1
    v_cndmask_b32 {v(vT1)}, {v(vT1)}, {v(vT2)}, vcc
    v_cmp_lt_u32 vcc, 15, v1
    v_cndmask_b32 {v(vPA_)}, {v(vPA_)}, {v(vT1)}, vcc
    v_lshlrev_b32 {v(vPA_)}, 7, {v(vPA_)}
    v_add_u32 {v(vPA_)}, {FA}, {v(vPA_)}
    """)
    p(f"""
    v_lshrrev_b32 {v(vT1)}, 5, v1
    v_mul_u32_u24 {v(vVA)}, {448*16 - 512}, {v(vT1)}
    s_lshl_b32 {s(sT0)}, {s(sT0)}, 4
    s_add_u32 {s(sT0)}, {s(sT0)}, {VOFF}
    v_add3_u32 {v(vVA)}, {v(vVA)}, {v(vL16)}, {s(sT0)}
    v_add_u32 {v(vVA2)}, {2*448*16}, {v(vVA)}
    s_lshl_b32 {s(sT1)}, {s(sT1)}, 4
    s_add_u32 {s(sT1)}, {s(sT1)}, {ONES_OFF}
    v_mov_b32 {v(vT2)}, {s(sT1)}
    v_and_b32 {v(vT1)}, 31, v1
    v_cmp_lt_u32 vcc, 27, {v(vT1)}
    v_cndmask_b32 {v(vVA)}, {v(vVA)}, {v(vT2)}, vcc
    v_cndmask_b32 {v(vVA2)}, {v(vVA2)}, {v(vT2)}, vcc
    s_add_u32 {s(sT0)}, {s(sKB0)}, {56*512}
    v_and_b32 {v(vKA)}, 51, v1
    v_bfe_u32 {v(vT2)}, v1, 2, 1
    v_lshl_add_u32 {v(vKA)}, {v(vT2)}, 3, {v(vKA)}
    v_bfe_u32 {v(vT2)}, v1, 3, 1
    v_lshl_add_u32 {v(vKA)}, {v(vT2)}, 2, {v(vKA)}
    v_lshl_add_u32 {v(vKA)}, {v(vKA)}, 4, {s(sT0)}
    v_mov_b32 {v(vIDX)}, 0xdddddddd
    s_mul_i32 {s(sKB)}, {s(sWAVE)}, {16*BLK}
    s_mul_i32 {s(sT1)}, {s(sR2)}, {4*BLK}
    s_add_u32 {s(sT1)}, {s(sT1)}, {s(sKB0)}
    v_mul_u32_u24 {v(vXA)}, 896, {v(vT1)}
    v_lshrrev_b32 {v(vT1)}, 5, v1
    v_lshlrev_b32 {v(vB2A)}, 4, {v(vT1)}
    v_add_u32 {v(vXA)}, {v(vB2A)}, {v(vXA)}
    s_mul_i32 {s(sT0)}, {s(sRT3)}, {32*896}
    s_lshl_b32 {s(sT2)}, {s(sCT)}, 6
    s_add_u32 {s(sT0)}, {s(sT0)}, {s(sT2)}
    v_add_u32 {v(vXA)}, {s(sT0)}, {v(vXA)}
    v_add_u32 {v(vB2A)}, {s(sT2)}, {v(vB2A)}
    v_min_u32 {v(vPX)}, 13, v1
    v_lshlrev_b32 {v(vPX)}, 7, {v(vPX)}
    """)
    for j, r in enumerate((sU0, sU1, sU2, sU3)):
        p(f"s_xor_b32 {s(r)}, {s(sWAVE)}, {j}\ns_mul_i32 {s(r)}, {s(r)}, {BLK}\ns_add_u32 {s(r)}, {s(r)}, {s(sT1)}")
    for j in range(1, 4):
        p(f"s_xor_b32 {s(sT0)}, {s(sWAVE)}, {j}\ns_mul_i32 {s(sT0)}, {s(sT0)}, 12288\ns_add_u32 {s(sT0)}, {s(sT0)}, {(j-1)*4096}")
        p(f"v_add_u32 {v(vRW+j-1)}, {s(sT0)}, {v(vL16)}")
    for r in (sWP, sWC):
        p(f"s_mov_b32 {s(r)}, {s(sWS)}\ns_mov_b32 {s(r+1)}, {s(sWS+1)}\ns_mov_b32 {s(r+2)}, 0\ns_mov_b32 {s(r+3)}, 0x00020000")
    p(f"""
    s_and_b32 {s(sT0)}, {s(sH)}, 1
    s_cmp_eq_u32 {s(sT0)}, 1
    s_cselect_b32 {s(sT0)}, 0, -1
    s_cselect_b32 {s(sT1)}, -1, 0
    v_cmp_lt_u32 vcc, 31, v1
    v_mov_b32 {v(vT1)}, {s(sT0)}
    v_mov_b32 {v(vT2)}, {s(sT1)}
    v_cndmask_b32 {v(vT3)}, {v(vT1)}, -1, vcc
    v_cndmask_b32 {v(vT4)}, -1, {v(vT2)}, vcc
    """)
    for j in range(16): p(f"v_mov_b32 {v(vO+j)}, 0")
    for j in range(48): p(f"v_accvgpr_write_b32 {a(aO+j)}, 0")
    p.wait_vm("p1st")
    p("s_barrier")
    def setflag(sOff):
        p(f"s_mov_b64 exec, 1\nbuffer_store_dword {v(vEP)}, {v(vZ)}, {srd(sWS)}, {s(sOff)} offen sc1\ns_mov_b64 exec, -1")
    def setflag2(sOff):
        p(f"""
        s_mov_b64 exec, 1
        buffer_store_dword {v(vEP)}, {v(vZ)}, {srd(sWP)}, {s(sOff)} offen
        buffer_store_dword {v(vEP)}, {v(vZ)}, {srd(sWC)}, {s(sOff)} offen sc1
        s_mov_b64 exec, -1
        """)
    def poll_issue(vPA, so): return f"buffer_load_dword {v(vP)}, {v(vPA)}, {srd(sWS)}, {so} offen sc1"
    def poll(vPA, so, base):
        L = p.newlabel(base)
        p(f"s_mov_b32 {s(sCNT)}, 0x40000")
        p.label(L)
        p(poll_issue(vPA, so))
        p(f"s_sub_u32 {s(sCNT)}, {s(sCNT)}, 1\ns_waitcnt vmcnt(0)\ns_cbranch_scc1 {L}_x")
        p(f"v_cmp_ne_u32 vcc, {s(sEP)}, {v(vP)}\ns_cbranch_vccnz {L}")
        p.label(L + "_x")
    def spoll(items, base):
        PR = [8, 10, 32, 34, 16, 18, 48, 50, 56]
        L = p.newlabel(base)
        p(f"s_mov_b32 {s(sCNT)}, 0x40000\ns_mov_b32 vcc_lo, {s(sEP)}\ns_mov_b32 vcc_hi, {s(sEP)}")
        p.label(L)
        for i, (so, imm) in enumerate(items):
            p(f"s_buffer_load_dword {s(PR[i // 2] + i % 2)}, {srd(sWS)}, {s(so)} offset:{imm} glc")
        p(f"s_sub_u32 {s(sCNT)}, {s(sCNT)}, 1\ns_waitcnt lgkmcnt(0)\ns_cbranch_scc1 {L}_x")
        n = len(items) // 2
        for i in range(n): p(f"s_xor_b64 {s(PR[i], 2)}, {s(PR[i], 2)}, vcc")
        for i in range(1, n): p(f"s_or_b64 {s(PR[0], 2)}, {s(PR[0], 2)}, {s(PR[i], 2)}")
        p(f"s_cbranch_scc1 {L}")
        p.label(L + "_x")
    def poll_check(vPA, so, base):
        L = p.newlabel(base + "ok")
        p(f"v_cmp_ne_u32 vcc, {s(sEP)}, {v(vP)}\ns_cbranch_vccz {L}")
        st = p.save()
        poll(vPA, so, base)
        p.label(L); p.restore(st)
    p(f"s_cmp_lg_u32 {s(sWAVE)}, 0\ns_cbranch_scc1 L_noflagA")
    setflag(sFA)
    p.label("L_noflagA")
    if OPT.get("st1") == 1: stamp(p, 4)
    elif not OPT.get("st1"): stamp(p, 1)
    misc = [[f"buffer_load_dwordx4 {v(vXV, 4)}, {v(vXA)}, {srd(sX)}, 0 offen", f"buffer_load_dwordx4 {v(vXV+4, 4)}, {v(vXA)}, {srd(sX)}, 0 offen offset:32"],
            [f"buffer_load_dwordx4 {v(vBV, 4)}, {v(vB2A)}, {srd(sB2)}, 0 offen", f"buffer_load_dwordx4 {v(vBV+4, 4)}, {v(vB2A)}, {srd(sB2)}, 0 offen offset:32"]]
    if OPT.get("ftouch", 1):
        p(f"""
        s_lshl_b32 {s(sT0)}, {s(sR2)}, 2
        s_add_u32 {s(sT0)}, {s(sT0)}, {s(sWAVE)}
        s_lshl_b32 {s(sT0)}, {s(sT0)}, 4
        s_add_u32 {s(sT0)}, {s(sT0)}, {s(sH)}
        s_lshl_b32 {s(sT1)}, {s(sRT3)}, 4
        s_add_u32 {s(sT1)}, {s(sT1)}, {s(sCT)}
        s_lshl_b32 {s(sT2)}, {s(sG)}, 2
        s_add_u32 {s(sT2)}, {s(sT2)}, {s(sWAVE)}
        s_lshl_b32 {s(sT2)}, {s(sT2)}, 4
        s_add_u32 {s(sT2)}, {s(sT2)}, {s(sM)}
        v_mov_b32 {v(vT1)}, {s(sT2)}
        v_writelane_b32 {v(vT1)}, {s(sT0)}, 0
        v_writelane_b32 {v(vT1)}, {s(sT1)}, 1
        v_lshl_add_u32 {v(vT1)}, v1, 10, {v(vT1)}
        v_lshlrev_b32 {v(vT1)}, 7, {v(vT1)}
        s_mov_b32 {s(sT0)}, {FB}
        s_mov_b64 exec, 15
        buffer_load_dword {v(vTC)}, {v(vT1)}, {srd(sWS)}, {s(sT0)} offen
        s_mov_b64 exec, -1
        """)
    emit(p, misc)
    emit(p, take(jobs, OPT.get("adma", 14)))
    poll(vPA_, "0", "pollA")
    if OPT.get("st1") == 1: stamp(p, 5)
    def ldkv(b):
        return [f"buffer_load_dwordx4 {a(aKV + 16*b, 4)}, {v(vKA)}, {srd(sWS)}, {s(sKB)} offen sc1",
                f"buffer_load_dwordx4 {a(aKV + 16*b + 4, 4)}, {v(vKA)}, {srd(sWS)}, {s(sKB)} offen offset:1024 sc1",
                f"buffer_load_dwordx4 {a(aKV + 16*b + 8, 4)}, {v(vVA)}, {srd(sWS)}, {s(sKB)} offen sc1",
                f"buffer_load_dwordx4 {a(aKV + 16*b + 12, 4)}, {v(vVA2)}, {srd(sWS)}, {s(sKB)} offen sc1",
                f"s_add_u32 {s(sKB)}, {s(sKB)}, {BLK}"]
    def ldq(t):
        return [f"buffer_load_dwordx4 {v(vQF + 8*t + 4*sx, 4)}, {v(vL16)}, {srd(sWS)}, {s(sU0 + t)} offen offset:{sx*1024} sc1" for sx in range(2)]
    kv0 = ldkv(0)
    emit(p, ldq(1) + kv0[:2] + ldq(2) + kv0[2:] + ldq(3) + ldq(0) + ldkv(1))
    def qmask(t):
        q = vQF + 8*t
        return [f"v_and_b32 {v(q+j)}, {v(vT3)}, {v(q+j)}" for j in (0, 1)] + [f"v_and_b32 {v(q+j)}, {v(vT4)}, {v(q+j)}" for j in (6, 7)]
    T = lambda n: (n + 1) % 4
    def oacc(t): return v(vO, 16) if t == 0 else a(aO + 16*(t-1), 16)
    def smf(n, half):
        return MF(v(vSB + 16*(n % 3), 16), a(aKV + 16*((n // 4) % NB) + 4*half, 4), v(vQF + 8*T(n) + 4*half, 4), "0" if half == 0 else None)
    def SM(d, A, B): return f"v_smfmac_f32_32x32x32_bf16 {d}, {A}, {B}, {v(vIDX)}"
    def pvmf(n, half):
        return SM(oacc(T(n)), a(aKV + 16*((n // 4) % NB) + 8 + 4*half, 4), v(vSB + 16*(n % 3) + 8*half, 8))
    def expcvt(n, qd):
        S = vSB + 16*(n % 3) + 4*qd
        for j in range(4): p(f"v_exp_f32 {v(S+j)}, {v(S+j)}")
    emit(p, qmask(1)); p(smf(0, 0)); p(smf(0, 1)); emit(p, qmask(2))
    if OPT.get("st1") == 1: stamp(p, 6)
    elif not OPT.get("st1"): stamp(p, 2)
    side = {n: [] for n in range(64)}
    side[0] += qmask(3) + ldkv(2); side[1] += qmask(0)
    side[2] += ldkv(3)
    for st_ in range(1, 13): side[4*st_] += ldkv((st_ + 3) % NB)
    late = [f"buffer_load_dwordx2 {v(vXID, 2)}, {v(vPX)}, {srd(sWS)}, {s(sFXo)} offen sc1",
            [f"v_add_u32 {v(vT3+j)}, {LA}, {v(vRW+j)}" for j in range(2)] + [f"v_add_u32 {v(vT1)}, {LA}, {v(vRW+2)}", f"v_add_u32 {v(vT2)}, {s(sA)}, {v(vL16)}"],
            collect(lambda q: q(f"""
            s_lshl_b32 {s(sT0)}, {s(sR2)}, 2
            s_add_u32 {s(sT0)}, {s(sT0)}, {s(sWAVE)}
            s_lshl_b32 {s(sT0)}, {s(sT0)}, 4
            s_add_u32 {s(sT0)}, {s(sT0)}, {s(sH)}
            s_lshl_b32 {s(sT1)}, {s(sT0)}, 7
            s_add_u32 {s(sT1)}, {s(sT1)}, {FB}
            s_lshl_b32 {s(sT0)}, {s(sT0)}, 11
            s_add_u32 {s(sT0)}, {s(sT0)}, {WS_O}
            """))]
    slots = [n for n in range(5, 50) if n % 4 != 0]
    for k, j in enumerate(jobs): side[slots[k]].append(j)
    for k, j in enumerate(late): side[54 + k].append(j)
    wadr = {1: vT3, 2: vT4, 3: vT1}
    def owr(j, q): return f"ds_write_b128 {v(wadr[j])}, {a(aO + 16*(j-1) + 4*q, 4)} offset:{q*1024}"
    for n in range(64):
        wr = [owr(n - 61, q) for q in range(4)] if n >= 62 else []
        if n + 1 < 64: p(smf(n + 1, 0))
        expcvt(n, 0)
        if n + 1 < 64: p(smf(n + 1, 1))
        emit(p, take(wr, 1))
        expcvt(n, 1)
        if n >= 1: p(pvmf(n - 1, 0))
        emit(p, take(wr, 1))
        expcvt(n, 2)
        if n >= 1: p(pvmf(n - 1, 1))
        emit(p, side[n] + take(wr, 1))
        expcvt(n, 3)
        emit(p, wr)
    S_ = (lambda k: None) if OPT.get("st1") else (lambda k: stamp(p, k))
    if OPT.get("st1") == 1: stamp(p, 7)
    S_(3)
    p(pvmf(63, 0)); p(pvmf(63, 1))
    for q in range(4): p(owr(3, q))
    p(f"""
    v_cmp_ne_u64 vcc, {v(vEP,2)}, {v(vXID,2)}
    s_cmp_eq_u64 vcc, 0
    s_cselect_b32 {s(sWP+2)}, {hx(WS_SIZE) if OPT.get("loc", 1) else 0}, 0
    s_cselect_b32 {s(sWC+2)}, {0 if OPT.get("loc", 1) else hx(WS_SIZE)}, {hx(WS_SIZE)}
    s_mov_b32 {s(sT2)}, {fl(2.0**-60)}
    s_mov_b32 {s(sT3)}, {fl(2.0**60)}
    s_waitcnt vmcnt(0) lgkmcnt(0)
    s_barrier
    """)
    S_(4)
    for q in (3, 0, 1, 2):
        for w in range(3): p(f"ds_read_b128 {v(vRD + 16*w + 4*q, 4)}, {v(vT2)} offset:{w*4096 + q*1024}")
    def addq(q):
        for w in range(3):
            for j in (2*q, 2*q+1): p(f"v_pk_add_f32 {v(vO+2*j, 2)}, {v(vO+2*j, 2)}, {v(vRD + 16*w + 2*j, 2)}")
    addq(3)
    p(f"v_mov_b32 {v(vT1)}, {v(vO+12)}\nv_mov_b32 {v(vT2)}, {v(vO+12)}")
    addq(0)
    p(f"v_permlane32_swap_b32 {v(vT1)}, {v(vT2)}")
    addq(1)
    p(f"v_cmp_nle_f32 vcc, {s(sT2)}, {v(vT2)}\nv_cmp_nge_f32 s[14:15], {s(sT3)}, {v(vT2)}")
    addq(2)
    p(f"s_mov_b32 {s(sT2)}, 0x7f7fffff\ns_or_b64 vcc, vcc, s[14:15]")
    p(f"v_max3_f32 {v(vT3)}, |{v(vO)}|, |{v(vO+1)}|, |{v(vO+2)}|")
    for j in range(3, 15, 2): p(f"v_max3_f32 {v(vT3)}, {v(vT3)}, |{v(vO+j)}|, |{v(vO+j+1)}|")
    p(f"""
    v_max_f32 {v(vT3)}, {v(vT3)}, |{v(vO+15)}|
    v_cmp_nge_f32 s[14:15], {s(sT2)}, {v(vT3)}
    s_or_b64 vcc, vcc, s[14:15]
    """)
    if OPT.get("forceslow"): p("s_cmp_eq_u32 0, 0")
    p("s_cbranch_scc1 L_slow")
    p.label("L_slow_ret")
    p(f"v_rcp_f32 {v(vT2)}, {v(vT2)}\nv_cmp_lt_u32 vcc, 31, v1")
    for m in range(2):
        for j in range(4*m, 4*m+4): p(f"v_pk_mul_f32 {v(vO+2*j, 2)}, {v(vO+2*j, 2)}, {v(vT2, 2)} op_sel_hi:[1,0]")
        for j in range(4): p(f"v_cvt_pk_bf16_f32 {v(vO+8*m+j)}, {v(vO+8*m+2*j)}, {v(vO+8*m+2*j+1)}")
        if m == 1:
            for j in (2, 3): p(f"v_cndmask_b32 {v(vO+8+j)}, {v(vO+8+j)}, 0, vcc")
        p(f"buffer_store_dwordx4 {v(vO+8*m, 4)}, {v(vL16)}, {srd(sWS)}, {s(sT0)} offen offset:{m*1024} sc1", tag="ost")
    p(f"s_cmp_lt_u32 {s(sM)}, 14\ns_cbranch_scc1 L_cont")
    st = p.save()
    p("s_waitcnt vmcnt(0)")
    setflag(sT1)
    p(f"""
    s_cmp_lg_u32 s2, 255
    s_cbranch_scc1 L_end
    s_lshl_b32 {s(sT0)}, {s(sWAVE)}, 13
    s_add_u32 {s(sT0)}, {s(sT0)}, {FX}
    """)
    poll(vL128, s(sT0), "pollX")
    p(f"s_barrier\ns_cmp_lg_u32 {s(sWAVE)}, 0\ns_cbranch_scc1 L_end\ns_mov_b32 {s(sT0)}, {WS_EP}")
    setflag(sT0)
    p(f"s_branch L_end")
    p.label("L_cont"); p.restore(st)
    NBT, NCT = OPT.get("nbt", 6), OPT.get("nct", 2)
    NRT = NBT + NCT
    assert 8 <= NRT <= 9
    vA5, vA = 216, 220
    def w2dma(tile, sb, ldsoff):
        off = ((tile // 7)*896 + 32*(tile % 7)) * 896
        return [[f"s_add_u32 m0, {s(sb)}, {ldsoff}", f"s_add_u32 {s(sT3)}, {s(sW2B)}, {off}",
                 (f"buffer_load_dwordx4 {v(vD9)}, {srd(sW2)}, {s(sT3)} offen lds", f"w2_{tile}")]] + \
               [(f"buffer_load_dwordx4 {v(vD9+k)}, {srd(sW2)}, {s(sT3)} offen offset:{k*1024} lds", f"w2_{tile}") for k in range(1, 4)]
    def w2toreg(tile, slot):
        p.wait_vm(f"w2_{tile}")
        for e in range(2):
            for c in range(2):
                for h in range(2):
                    p(f"ds_read_b64_tr_b16 {a(aW2 + 16*tile + 8*e + 4*c + 2*h, 2)}, {v(vA5 + c)} offset:{slot*4096 + e*2048 + 512*h}", tag=f"r{tile}")
    for t in range(2): emit(p, w2dma(t, sA, t*4096))
    tr_addr(p, vA, 128, swap=True, perm_rows=False, t1=vT1, t2=vT3, xor128=True)
    vA0, vA1, vPA = 12, 13, 14
    vWF, vACC = 16, 96
    p(f"""
    v_xor_b32 {v(vA+1)}, 64, {v(vA)}
    s_lshl_b32 {s(sT2)}, {s(sKH)}, 6
    v_xor_b32 {v(vT1)}, {s(sT2)}, {v(vA)}
    v_xor_b32 {v(vT3)}, {s(sT2)}, {v(vA+1)}
    v_add_u32 {v(vA5)}, {s(sA)}, {v(vT1)}
    v_add_u32 {v(vA5+1)}, {s(sA)}, {v(vT3)}
    s_add_u32 {s(sT0)}, {s(sB14)}, {LH0}
    v_add_u32 {v(vA5+2)}, {s(sT0)}, {v(vT1)}
    v_add_u32 {v(vA5+3)}, {s(sT0)}, {v(vT3)}
    v_add_u32 {v(vA+2)}, {LH0}, {v(vA)}
    v_add_u32 {v(vA+3)}, {LH0}, {v(vA+1)}
    """)
    tr_addr(p, vA0, 128, swap=True, perm_rows=True, t1=vT1, t2=vT3, xor128=True)
    p(f"""
    s_mul_i32 {s(sT0)}, {s(sKH)}, {8*28*128}
    v_add_u32 {v(vA0)}, {s(sT0)}, {v(vA0)}
    v_xor_b32 {v(vA0)}, {s(sT2)}, {v(vA0)}
    v_xor_b32 {v(vA1)}, 64, {v(vA0)}
    v_and_b32 {v(vPA)}, 7, v1
    v_lshlrev_b32 {v(vPA)}, 7, {v(vPA)}
    s_lshr_b32 {s(sT0)}, {s(sM)}, 1
    s_lshl_b32 {s(sT0)}, {s(sT0)}, 11
    s_add_u32 {s(sT0)}, {s(sT0)}, {FA + 15*128}
    v_and_b32 {v(vT1)}, 1, v1
    v_mul_u32_u24 {v(vPA_)}, {7*2048}, {v(vT1)}
    """)
    for j in range(8):
        p(f"v_lshlrev_b32 {v(vACC+2*j)}, 16, {v(vXV+j)}")
        p(f"v_and_b32 {v(vACC+2*j+1)}, 0xffff0000, {v(vXV+j)}")
    p.wait_vm("ost")
    setflag(sT1)
    S_(5)
    p(poll_issue(vPA_, s(sT0)))
    for t in range(NBT):
        if t + 2 < NBT:
            if t >= 1: p.wait_lg(f"r{t-1}")
            emit(p, w2dma(t + 2, sA, ((t + 2) % 3)*4096))
        w2toreg(t, t % 3)
        if t == 2:
            poll_check(vPA_, s(sT0), "pollU")
            p(f"""
            s_lshl_b32 {s(sT0)}, {s(sM)}, 11
            s_add_u32 {s(sT0)}, {s(sT0)}, {WS_AU}
            s_add_u32 {s(sT1)}, {s(sT0)}, {28*1024}
            buffer_load_dwordx4 {v(vAU, 4)}, {v(vL16)}, {srd(sWS)}, {s(sT0)} offen sc1
            buffer_load_dwordx4 {v(vAU+4, 4)}, {v(vL16)}, {srd(sWS)}, {s(sT0)} offen offset:1024 sc1
            buffer_load_dwordx4 {v(vAU+8, 4)}, {v(vL16)}, {srd(sWS)}, {s(sT1)} offen sc1
            buffer_load_dwordx4 {v(vAU+12, 4)}, {v(vL16)}, {srd(sWS)}, {s(sT1)} offen offset:1024 sc1
            """)
    p(f"""
    s_lshl_b32 {s(sT0)}, {s(sRT3)}, 11
    s_lshl_b32 {s(sT1)}, {s(sKH)}, 10
    s_add_u32 {s(sT0)}, {s(sT0)}, {s(sT1)}
    s_add_u32 {s(sT0)}, {s(sT0)}, {FB}
    s_add_u32 {s(sT1)}, {s(sA)}, 8192
    v_add_u32 {v(vT1)}, {s(sT1)}, {v(vL16)}
    v_add_u32 {v(vT2)}, {LA + 8192}, {v(vRW)}
    s_lshl_b32 {s(sT2)}, {s(sRT3)}, 15
    s_lshl_b32 {s(sT1)}, {s(sKH)}, 14
    s_add_u32 {s(sT2)}, {s(sT2)}, {s(sT1)}
    s_add_u32 {s(sT2)}, {s(sT2)}, {WS_O}
    """)
    def reads3(f):
        base = (28*(f // 2) + 16*(f % 2)) * 128
        return [f"ds_read_b64_tr_b16 {v(vWF + 8*(f % 3) + 4*ct + 2*h, 2)}, {v(va)} offset:{base + h*1024}" for ct, va in ((1, vA1), (0, vA0)) for h in range(2)]
    emit(p, reads3(0) + reads3(1))
    if OPT.get("sb", 1): spoll([(sT0, 128*i) for i in range(8)], "pollB")
    else: poll(vPA, s(sT0), "pollB")
    S_(6)
    aOF = 0
    def old(f):
        r = [f"buffer_load_dwordx4 {a(aOF + 4*f, 4)}, {v(vL16)}, {srd(sWS)}, {s(sT2)} offen offset:{(f % 4)*1024} sc1"]
        if f % 4 == 3: r.append(f"s_add_u32 {s(sT2)}, {s(sT2)}, 4096")
        return r
    PF = OPT.get("pf", 8)
    for f in range(PF): emit(p, old(f))
    sFC = sKB
    ep3 = collect(lambda q: q(f"""
    s_mul_i32 {s(sT0)}, {s(sRT3)}, {56*512}
    s_lshl_b32 {s(sT1)}, {s(sCT)}, 11
    s_add_u32 {s(sT0)}, {s(sT0)}, {s(sT1)}
    s_add_u32 {s(sT0)}, {s(sT0)}, {WS_H}
    s_mul_i32 {s(sT2)}, {s(sRT3)}, {14*256}
    s_lshl_b32 {s(sT1)}, {s(sCT)}, 8
    s_add_u32 {s(sT2)}, {s(sT2)}, {s(sT1)}
    s_add_u32 {s(sT2)}, {s(sT2)}, {WS_ST}
    s_lshl_b32 {s(sFC)}, {s(sRT3)}, 4
    s_add_u32 {s(sFC)}, {s(sFC)}, {s(sCT)}
    s_lshl_b32 {s(sFC)}, {s(sFC)}, 7
    s_add_u32 {s(sFC)}, {s(sFC)}, {FC}
    v_mov_b32 v40, 0
    v_mov_b32 v41, 0
    v_lshlrev_b32 {v(vT3)}, 3, v1
    """))
    def m3(f, own): return MF(v(vACC + (0 if own else 16), 16), v(vWF + 8*(f % 3) + (0 if own else 4), 4), a(aOF + 4*f, 4), "0" if (f == 0 and not own) else None)
    for f in range(14):
        fill = []
        if f + PF < 16: fill.append(old(f + PF))
        fill += reads3(f + 2)
        weave(p, [m3(f, 0), m3(f, 1)], fill)
    weave(p, [m3(14, 0), m3(15, 0), m3(14, 1), m3(15, 1)], ep3)
    S_(7)
    for q in range(4): p(f"ds_write_b128 {v(vT1)}, {v(vACC + 16 + 4*q, 4)} offset:{q*1024}")
    p("s_waitcnt lgkmcnt(0)\ns_barrier")
    vR3 = 44
    for q in range(4): p(f"ds_read_b128 {v(vR3 + 4*q, 4)}, {v(vT2)} offset:{q*1024}")
    for m in range(2):
        for j in range(4*m, 4*m+4): p(f"v_pk_add_f32 {v(vACC+2*j, 2)}, {v(vACC+2*j, 2)}, {v(vR3+2*j, 2)}")
        for j in range(4*m, 4*m+4): p(f"v_cvt_pk_bf16_f32 {v(vHV+j)}, {v(vACC+2*j)}, {v(vACC+2*j+1)}")
        p(f"buffer_store_dwordx4 {v(vHV+4*m, 4)}, {v(vL16)}, {srd(sWS)}, {s(sT0)} offen offset:{m*1024} sc1")
    for j in range(8):
        p(f"v_dot2c_f32_bf16 v40, {s(sONES)}, {v(vHV+j)}")
        p(f"v_dot2c_f32_bf16 v41, {v(vHV+j)}, {v(vHV+j)}")
    p(f"""
    v_mov_b32 v42, v40
    v_mov_b32 v43, v41
    v_permlane32_swap_b32 v42, v40
    v_permlane32_swap_b32 v43, v41
    v_pk_add_f32 v[40:41], v[40:41], v[42:43]
    s_mov_b32 exec_hi, 0
    """)
    p(f"buffer_store_dwordx2 v[40:41], {v(vT3)}, {srd(sWS)}, {s(sT2)} offen sc1", tag="hst")
    p(f"s_mov_b64 exec, -1")
    for t in range(NBT, NRT): emit(p, w2dma(t, sA, ((t - NBT) % 2)*4096))
    h1w = []
    for g in range(4): h1w += wgrp(sW1, sV1, vDW, 3584, LH1, g, extra=1792, tag="h1w")
    sRT4 = sV0
    vK1, vK2, vSD, vTK = 224, 226, 228, 180
    vSTt, vG = 196, 232
    vWF, vACC = 12, 48
    sHB, sFD = sKB0, sU0
    vH, vPD = 240, 242
    vAC5 = 112
    p(f"""
    s_lshl_b32 {s(sRT4)}, {s(sG)}, 2
    s_add_u32 {s(sRT4)}, {s(sRT4)}, {s(sWAVE)}
    v_and_b32 {v(vPD)}, 3, v1
    v_bfe_u32 {v(vT1)}, v1, 2, 1
    v_lshl_add_u32 {v(vPD)}, {v(vT1)}, 4, {v(vPD)}
    v_lshlrev_b32 {v(vPD)}, 7, {v(vPD)}
    s_mul_i32 {s(sFD)}, {s(sWAVE)}, 7
    s_lshr_b32 {s(sFD)}, {s(sFD)}, 1
    s_lshl_b32 {s(sT0)}, {s(sRT0)}, 4
    s_add_u32 {s(sFD)}, {s(sFD)}, {s(sT0)}
    s_lshl_b32 {s(sFD)}, {s(sFD)}, 7
    s_add_u32 {s(sFD)}, {s(sFD)}, {FD0}
    s_mul_i32 {s(sHB)}, {s(sRT0)}, {224*512}
    s_add_u32 {s(sHB)}, {s(sHB)}, {s(sB14)}
    s_add_u32 {s(sHB)}, {s(sHB)}, {WS_H1}
    s_lshr_b32 {s(sT0)}, {s(sWAVE)}, 1
    s_mul_i32 {s(sT1)}, {s(sT0)}, {224*512}
    v_add_u32 {v(vH)}, {s(sT1)}, {v(vL16)}
    s_sub_u32 {s(sT1)}, {224*512}, {s(sT1)}
    v_add_u32 {v(vH+1)}, {s(sT1)}, {v(vL16)}
    s_mul_i32 {s(sU2)}, {s(sRT4)}, {224*512}
    s_lshl_b32 {s(sT1)}, {s(sM)}, 12
    s_add_u32 {s(sU2)}, {s(sU2)}, {s(sT1)}
    s_add_u32 {s(sU2)}, {s(sU2)}, {WS_H1}
    s_add_u32 {s(sU3)}, {s(sU2)}, {112*512}
    s_lshl_b32 {s(sU1)}, {s(sRT4)}, 4
    s_add_u32 {s(sU1)}, {s(sU1)}, {s(sM)}
    s_lshl_b32 {s(sU1)}, {s(sU1)}, 7
    s_add_u32 {s(sU1)}, {s(sU1)}, {FD0}
    s_lshl_b32 {s(sT0)}, {s(sRT4)}, 11
    s_add_u32 {s(sT0)}, {s(sT0)}, {FC}
    s_mul_i32 {s(sT2)}, {s(sRT4)}, {56*512}
    s_add_u32 {s(sT2)}, {s(sT2)}, {WS_H}
    s_mul_i32 {s(sT1)}, {s(sRT4)}, {14*256}
    s_add_u32 {s(sT1)}, {s(sT1)}, {WS_ST}
    v_mov_b32 {v(vTK+2)}, 0
    v_mov_b32 {v(vTK+3)}, 0
    """)
    for j in range(8):
        p(f"v_lshlrev_b32 {v(vAC5+2*j)}, 16, {v(vHV+j)}\nv_lshlrev_b32 {v(vT4)}, 16, {v(vBV+j)}")
        p(f"v_and_b32 {v(vAC5+2*j+1)}, 0xffff0000, {v(vHV+j)}\nv_and_b32 {v(vT4+1)}, 0xffff0000, {v(vBV+j)}")
        p(f"v_pk_add_f32 {v(vAC5+2*j, 2)}, {v(vAC5+2*j, 2)}, {v(vT4, 2)}")
    p.wait_vm("hst")
    setflag2(sFC)
    S_(8)
    for t in range(NBT, NRT): w2toreg(t, (t - NBT) % 2)
    WD = 4
    def reads4(sx, hb):
        return [f"ds_read_b64_tr_b16 {v(vWF + 8*(sx % WD) + 4*k + 2*h, 2)}, {v(vA + 2*(1 - hb) + k)} offset:{sx*2048 + 512*h}" for k in range(2) for h in range(2)]
    for sx in range(3): emit(p, reads4(sx, 0))
    poll(vPX, s(sT0), "pollC")
    S_(9)
    aHF = 0
    def hld(f):
        r = [f"buffer_load_dwordx4 {a(aHF + 4*f, 4)}, {v(vL16)}, {srd(sWS)}, {s(sT2)} offen offset:{(f % 4)*1024} sc1"]
        if f % 4 == 3: r.append(f"s_add_u32 {s(sT2)}, {s(sT2)}, 4096")
        return r
    for f in range(PF): emit(p, hld(f))
    stl = [f"buffer_load_dwordx2 {v(vSTt + 2*j, 2)}, {v(vT3)}, {srd(sWS)}, {s(sT1)} offen offset:{j*512} sc1" for j in range(7)]
    k1 = -2.0 * math.sqrt(2.0 / math.pi) * LOG2E
    k2 = k1 * 0.044715
    vM, vV = vSTt + 2, vSTt + 3
    def statf(q):
        for j in range(1, 7):
            q(f"v_add_f32 {v(vSTt)}, {v(vSTt)}, {v(vSTt+2*j)}\nv_add_f32 {v(vSTt+1)}, {v(vSTt+1)}, {v(vSTt+2*j+1)}")
        half_sum(q, vSTt, vT1); half_sum(q, vSTt + 1, vT2)
        q(f"""
        v_mul_f32 {v(vM)}, {fl(-1.0/448)}, {v(vSTt)}
        v_mul_f32 {v(vV)}, {fl(1.0/448)}, {v(vSTt+1)}
        v_fma_f32 {v(vV)}, -{v(vM)}, {v(vM)}, {v(vV)}
        v_max_f32 {v(vV)}, 0, {v(vV)}
        v_add_f32 {v(vT1)}, {fl(EPS)}, {v(vV)}
        v_fmamk_f32 {v(vT1)}, {v(vT1)}, {fl(EPS)}, {v(vV)}
        v_rsq_f32 {v(vT2)}, {v(vT1)}
        v_sqrt_f32 {v(vSD)}, {v(vT1)}
        v_mul_f32 {v(vK1)}, {fl(k1)}, {v(vT2)}
        v_mul_f32 {v(vK2)}, {v(vT2)}, {v(vT2)}
        v_mul_f32 {v(vK2)}, {v(vK2)}, {v(vT2)}
        v_mul_f32 {v(vK2)}, {fl(k2)}, {v(vK2)}
        v_cmp_lt_u32 vcc, 31, v1
        """)
        hi_or_lo(q, vTK, vM, vT2); hi_or_lo(q, vTK + 1, vSD, vT2)
    fin = collect(statf)
    def gelu_ops(ct):
        ops = []
        acc = vACC + 16*ct
        bc = "op_sel_hi:[1,0,0]"
        for j0 in range(0, 16, 8):
            for j in range(0, 8, 2): ops.append(f"v_pk_mul_f32 {v(vG+j,2)}, {v(acc+j0+j,2)}, {v(acc+j0+j,2)}")
            for j in range(0, 8, 2): ops.append(f"v_pk_fma_f32 {v(vG+j,2)}, {v(vG+j,2)}, {v(vK2,2)}, {v(vK1,2)} {bc}")
            for j in range(0, 8, 2): ops.append(f"v_pk_mul_f32 {v(vG+j,2)}, {v(vG+j,2)}, {v(acc+j0+j,2)}")
            for j in range(8): ops.append(f"v_exp_f32 {v(vG+j)}, {v(vG+j)}")
            for j in range(0, 8, 2): ops.append(f"v_pk_fma_f32 {v(vG+j,2)}, {v(vG+j,2)}, {v(vSD,2)}, {v(vSD,2)} {bc}")
            for j in range(8): ops.append(f"v_rcp_f32 {v(vG+j)}, {v(vG+j)}")
            for j in range(0, 8, 2): ops.append(f"v_pk_mul_f32 {v(vG+j,2)}, {v(vG+j,2)}, {v(acc+j0+j,2)}")
            for j in range(4): ops.append(f"v_cvt_pk_bf16_f32 {v(acc + j0 + j)}, {v(vG+2*j)}, {v(vG+2*j+1)}")
            so = sU2 if ct < 2 else sU3
            ops.append((f"buffer_store_dwordx4 {v(acc+j0, 4)}, {v(vL16)}, {srd(sWS)}, {s(so)} offen offset:{(ct % 2)*2048 + (j0//8)*1024} sc1", f"h1_{ct}"))
        return ops
    def sprinkle(ops, extra, every):
        for i, o in enumerate(ops):
            emit(p, o)
            if i % every == every - 1 and extra: emit(p, take(extra, 1))
    for sx in range(28):
        fill = []
        if sx + PF < 28: fill.append(hld(sx + PF))
        elif h1w: fill += take(h1w, 1)
        if 4 <= sx < 11: fill.append(stl[sx - 4])
        if sx + 3 < 28: fill += reads4(sx + 3, 0)
        if sx >= 18: fill += take(fin, 5)
        weave(p, [MF(v(vACC + 16*k, 16), v(vWF + 8*(sx % WD) + 4*k, 4), a(aHF + 4*sx, 4), "0" if sx == 0 else None) for k in range(2)], fill)
    emit(p, fin)
    for k in range(2): mfma(p, v(vACC + 16*k, 16), v(vAU + 4*k, 4), v(vTK, 4))
    S_(10)
    sprinkle(gelu_ops(0), h1w, 6)
    emit(p, h1w + gelu_ops(1))
    p.wait_vm("h1w")
    p("s_barrier")
    for sx in range(3): emit(p, reads4(sx, 1))
    dm = []
    for t in range(NRT, 11): dm += w2dma(t, sA, (t - 8)*4096)
    for t in range(11, 14): dm += w2dma(t, sB14, LH0 + (t - 11)*4096)
    for k in range(2): p(MF(v(vACC + 32 + 16*k, 16), v(vAU + 8 + 4*k, 4), v(vTK, 4), "0"))
    for sx in range(28):
        fill = []
        if sx + 3 < 28: fill += reads4(sx + 3, 1)
        if sx == OPT.get("fl0", 10):
            def fl0():
                p.wait_vm("h1_1"); setflag2(sU1); p(f"s_add_u32 {s(sU1)}, {s(sU1)}, {FD1 - FD0}")
            fill.append(fl0)
        elif dm: fill += take(dm, 1)
        weave(p, [MF(v(vACC + 32 + 16*k, 16), v(vWF + 8*(sx % WD) + 4*k, 4), a(aHF + 4*sx, 4)) for k in range(2)], fill)
    emit(p, dm)
    p("s_barrier")
    S_(11)
    RW = 14
    def h1ld(ks):
        half, k = ks // 14, ks % 14
        r = []
        if k % 4 == 0: r.append(f"s_add_u32 {s(sT0)}, {s(sHB)}, {half*112*512 + k*1024}")
        r.append(f"buffer_load_dwordx4 {a(8*(ks % RW), 4)}, {v(vH)}, {srd(sWS)}, {s(sT0)} offen offset:{(k % 4)*1024} sc1")
        return [r, f"buffer_load_dwordx4 {a(8*(ks % RW) + 4, 4)}, {v(vH+1)}, {srd(sWS)}, {s(sT0)} offen offset:{(k % 4)*1024} sc1"]
    p(poll_issue(vPD, s(sFD)))
    g2 = gelu_ops(2)
    emit(p, g2[:41])
    poll_check(vPD, s(sFD), "pollD0")
    p(f"s_add_u32 {s(sFD)}, {s(sFD)}, {FD1 - FD0}")
    P5F = OPT.get("p5f", 7)
    early = []
    for ks in range(P5F): early += h1ld(ks)
    sprinkle(g2[41:] + gelu_ops(3), early, 8)
    emit(p, early)
    S_(12)
    if OPT.get("st1"): stamp(p, 12)
    acc5 = {0: 112, 1: 48, 2: 64, 3: 196}
    vWF = 12
    def wsrc(ks, c):
        tile, e = ks // 2, ks % 2
        if tile < NRT: return a(aW2 + 16*tile + 8*e + 4*c, 4)
        return v(vWF + 8*(ks % 4) + 4*c, 4)
    def reads5(ks):
        tile, e = ks // 2, ks % 2
        if tile < NRT: return []
        reg, slot = (0, tile - 8) if tile < 11 else (1, tile - 11)
        return [lambda: p.wait_vm(f"w2_{tile}")] + [f"ds_read_b64_tr_b16 {v(vWF + 8*(ks % 4) + 4*c + 2*h, 2)}, {v(vA5 + 2*reg + c)} offset:{slot*4096 + e*2048 + 512*h}" for c in range(2) for h in range(2)]
    def m5(ks, j):
        return MF(v(acc5[j], 16), wsrc(ks, j % 2), a(8*(ks % RW) + 4*(j // 2), 4), "0" if (ks == 0 and j != 0) else None)
    CHK = OPT.get("chk", 9)
    FL1 = OPT.get("fl1", 2)
    for ks in range(24):
        fill = []
        if ks == FL1:
            p.wait_vm("h1_3"); setflag2(sU1)
        if ks == CHK - 2: fill.append(poll_issue(vPD, s(sFD)))
        if ks == CHK:
            poll_check(vPD, s(sFD), "pollD1")
            for k2 in range(14, ks + P5F): fill += h1ld(k2)
        if ks + P5F < 28 and (ks + P5F < 14 or ks >= CHK): fill += h1ld(ks + P5F)
        fill += reads5(ks + 2)
        weave(p, [m5(ks, j) for j in (3, 2, 1, 0)], fill)
    def wr5(j): return [f"ds_write_b128 {v(vRW+j-1)}, {v(acc5[j] + 4*q, 4)} offset:{q*1024}" for q in range(4)]
    weave(p, [m5(24, 3), m5(25, 3)], reads5(26) + reads5(27))
    weave(p, [m5(24, 2), m5(25, 2), m5(26, 3), m5(27, 3), m5(26, 2), m5(27, 2)], [f"s_sub_u32 {s(sT0)}, {s(sA)}, {LA}", f"v_add_u32 {v(vT2)}, {s(sT0)}, {v(vL16)}"])
    weave(p, [m5(ks, 1) for ks in range(24, 28)], ["s_nop 5"] + wr5(3))
    weave(p, [m5(ks, 0) for ks in range(24, 28)], wr5(2))
    emit(p, wr5(1))
    p("s_waitcnt lgkmcnt(0)\ns_barrier")
    vRD5 = 48
    for q_ in range(4):
        for w in range(3): p(f"ds_read_b128 {v(vRD5 + 16*w + 4*q_, 4)}, {v(vT2)} offset:{w*4096 + q_*1024}")
    for m in range(2):
        for q_ in (2*m, 2*m+1):
            for w in range(3):
                for j in (2*q_, 2*q_+1): p(f"v_pk_add_f32 {v(vAC5+2*j, 2)}, {v(vAC5+2*j, 2)}, {v(vRD5 + 16*w + 2*j, 2)}")
        for j in range(4): p(f"v_cvt_pk_bf16_f32 {v(vAC5+8*m+j)}, {v(vAC5+8*m+2*j)}, {v(vAC5+8*m+2*j+1)}")
        p(f"buffer_store_dwordx4 {v(vAC5+8*m, 4)}, {v(vXA)}, {srd(sOUT)}, 0 offen offset:{32*m}")
    p.label("L_end")
    if gen2.STAMPS:
        p.reset()
        p("s_mov_b64 exec, -1\ns_waitcnt vmcnt(0)")
        stamp(p, NST - 1)
        p(f"s_memrealtime s[94:95]\ns_waitcnt lgkmcnt(0)")
        for k in range(16): p(f"v_mov_b32 v{4+k}, {s(64 + 2*k)}")
        p(f"""
        s_lshl_b32 s3, s2, 8
        s_lshl_b32 s4, {s(sWAVE)}, 6
        s_add_u32 s3, s3, s4
        s_add_u32 s3, s3, {31 << 20}
        v_mov_b32 v2, s3
        s_mov_b32 {s(sWS+2)}, 0x2000000
        s_mov_b64 exec, 1
        """)
        for k in range(4): p(f"buffer_store_dwordx4 {v(4+4*k, 4)}, v2, {srd(sWS)}, 0 offen offset:{16*k}")
    p("s_waitcnt vmcnt(0)")
    p.label("L_exit")
    p("s_endpgm")
    p.label("L_slow"); p.reset()
    vMX, vC = vRD, vRD + 16
    p(f"s_mov_b32 {s(sKB)}, 0\ns_mov_b32 {s(sCNT)}, 64\nv_mov_b32 {v(vMX)}, 0xff7fffff")
    p.label("L_slow_max")
    emit(p, ldkv(0))
    p(MF(v(vSB, 16), a(aKV, 4), v(vQF, 4), "0")); p(MF(v(vSB, 16), a(aKV + 4, 4), v(vQF + 4, 4)))
    for j in range(0, 16, 2): p(f"v_max3_f32 {v(vMX)}, {v(vMX)}, {v(vSB+j)}, {v(vSB+j+1)}")
    p(f"s_waitcnt vmcnt(0)\ns_sub_u32 {s(sCNT)}, {s(sCNT)}, 1\ns_cmp_lg_u32 {s(sCNT)}, 0\ns_cbranch_scc1 L_slow_max")
    p(f"""
    v_mov_b32 {v(vT1)}, {v(vMX)}
    v_permlane32_swap_b32 {v(vT1)}, {v(vMX)}
    v_max_f32 {v(vMX)}, {v(vMX)}, {v(vT1)}
    s_mov_b32 {s(sKB)}, 0
    s_mov_b32 {s(sCNT)}, 64
    """)
    for j in range(16): p(f"v_sub_f32 {v(vC+j)}, 0, {v(vMX)}\nv_mov_b32 {v(vO+j)}, 0")
    p.label("L_slow_pv")
    emit(p, ldkv(0))
    p(MF(v(vSB, 16), a(aKV, 4), v(vQF, 4), v(vC, 16))); p(MF(v(vSB, 16), a(aKV + 4, 4), v(vQF + 4, 4)))
    for qd in range(4): expcvt(0, qd)
    p(SM(v(vO, 16), a(aKV + 8, 4), v(vSB, 8))); p(SM(v(vO, 16), a(aKV + 12, 4), v(vSB + 8, 8)))
    p(f"s_nop 7\ns_sub_u32 {s(sCNT)}, {s(sCNT)}, 1\ns_cmp_lg_u32 {s(sCNT)}, 0\ns_cbranch_scc1 L_slow_pv")
    p(f"""
    s_nop 7
    v_mov_b32 {v(vT1)}, {v(vO+12)}
    v_mov_b32 {v(vT2)}, {v(vO+12)}
    v_permlane32_swap_b32 {v(vT1)}, {v(vT2)}
    s_branch L_slow_ret
    """)
    return name

def main(outpath):
    p = Prog()
    name = KER(p)
    body = p.finalize()
    hdr = open(f"cdna_kernels/{NAME}.s.ref").read().split("; Override launch")[0]
    hdr += "; @launch grid=(256,1,1) block=(256,1,1) lds=163840\n"
    txt = hdr + '.amdgcn_target "amdgcn-amd-amdhsa--gfx950"\n.text\n.set CODE_LEN, 0x12345\n' + body + f""".section .rodata,"a"
.p2align 6
.amdhsa_kernel {name}
  .amdhsa_next_free_vgpr 512
  .amdhsa_next_free_sgpr 102
  .amdhsa_accum_offset 256
  .amdhsa_group_segment_fixed_size 0
  .amdhsa_kernarg_size 88
  .amdhsa_user_sgpr_count 2
  .amdhsa_user_sgpr_kernarg_segment_ptr 1
  .amdhsa_system_sgpr_workgroup_id_x 1
.end_amdhsa_kernel
"""
    import subprocess, re as _re
    open("_sz.s", "w").write(txt)
    subprocess.run(["clang", "-x", "assembler", "-target", "amdgcn-amd-amdhsa", "-mcpu=gfx950", "-c", "_sz.s", "-o", "_sz.o"], check=True)
    o = subprocess.run(["llvm-objdump", "-h", "-t", "_sz.o"], capture_output=True, text=True).stdout
    sz = int(_re.search(r"\.text\s+([0-9a-f]+)", o).group(1), 16)
    pc0 = int(_re.search(r"([0-9a-f]+) l\s+\.text\s+[0-9a-f]+ L_pc", o).group(1), 16)
    txt = txt.replace(".set CODE_LEN, 0x12345", f".set CODE_LEN, {(sz - pc0 - 64) & ~3}")
    open(outpath, "w").write(txt)
    print("nops inserted:", p.nops, "bytes:", len(txt), "code bytes:", sz)

if __name__ == "__main__":
    for a_ in sys.argv[2:]:
        if a_ == "stamps": gen2.STAMPS = True
        else:
            k_, v_ = a_.split("="); OPT[k_] = int(v_)
    main(sys.argv[1] if len(sys.argv) > 1 else f"cdna_kernels/{NAME}.s")
```
